```python
import torch

def _softmax(x, axis=-1):
    return torch.softmax(x, dim=axis)
def _gelu(x):
    return torch.nn.functional.gelu(x, approximate="tanh")
def _silu(x):
    return torch.nn.functional.silu(x)
def _sigmoid(x):
    return torch.sigmoid(x)
def _layernorm(x, axis=-1, eps=1e-5):
    m = x.mean(dim=axis, keepdim=True)
    v = x.var(dim=axis, keepdim=True, unbiased=False)
    return (x - m) / torch.sqrt(v + eps)
def _scatter_add(tgt, idx, src, axis=0):
    return tgt.clone().index_add_(axis, idx, src)
def _segment_sum(src, seg, n):
    out = torch.zeros((n,) + src.shape[1:], dtype=src.dtype)
    return out.index_add_(0, seg, src)
def _pad(x, pw):
    flat = tuple(v for pair in reversed(pw) for v in pair)
    return torch.nn.functional.pad(x, flat)

kernel_name = 'interleave_layers__sliding_block_cached__dense_activation_gelu__decode'

def setup_inputs():

    _w = (lambda a: (lambda t: t.to(torch.bfloat16) if t.is_floating_point() else t)(torch.as_tensor(a)))
    def _A_setup():
        B, Sq, D = 1, 1, 640
        Hq, Hkv, Sk, Dh = 32, 32, 32768, 192
        assert Hq % Hkv == 0, (Hq, Hkv)
        return {
            "x": _w((lambda *s: torch.randn(*s, dtype=torch.bfloat16) * 0.1)(B, Sq, D)),
            "k_cache": _w((lambda *s: torch.randn(*s, dtype=torch.bfloat16) * 0.8)(B, Hkv, Sk, Dh)),
            "v_cache": _w((lambda *s: torch.randn(*s, dtype=torch.bfloat16) * 1.6)(B, Hkv, Sk, Dh)),
            "wq": _w((lambda *s: torch.randn(*s, dtype=torch.bfloat16) * 0.8)(D, Hq * Dh) * (D ** -0.5)),
            "wo": _w((lambda *s: torch.randn(*s, dtype=torch.bfloat16) * 1.6)(Hq * Dh, D) * ((Hq * Dh) ** -0.5)),
        }
    _A_in = _A_setup()

    def _B_setup():
        B, S, D, F = 1, 1, 640, 1536
        return {
            "x": _w((lambda *s: torch.randn(*s, dtype=torch.bfloat16) * 0.1)(B, S, D)),
            "w1": _w((lambda *s: torch.randn(*s, dtype=torch.bfloat16) * 0.4)(D, F) * (D ** -0.5)),
            "b1": _w((lambda *s: torch.randn(*s, dtype=torch.bfloat16) * 0.4)(F) * 0.01),
            "w2": _w((lambda *s: torch.randn(*s, dtype=torch.bfloat16) * 0.4)(F, D) * (F ** -0.5)),
            "b2": _w((lambda *s: torch.randn(*s, dtype=torch.bfloat16) * 0.4)(D) * 0.01),
        }
    _B_in = _B_setup()

    return {
        "A_x": _A_in["x"],
        "A_k_cache": _A_in["k_cache"],
        "A_v_cache": _A_in["v_cache"],
        "A_wq": _A_in["wq"],
        "A_wo": _A_in["wo"],
        "B_x": _B_in["x"],
        "B_w1": _B_in["w1"],
        "B_b1": _B_in["b1"],
        "B_w2": _B_in["w2"],
        "B_b2": _B_in["b2"],
    }

def reference(A_x, A_k_cache, A_v_cache, A_wq, A_wo, B_x, B_w1, B_b1, B_w2, B_b2):
    def _A_ref(x, k_cache, v_cache, wq, wo):
        B, Sq, D = x.shape
        Hq, Dh = 32, 192
        Hkv, Sk = k_cache.shape[1], k_cache.shape[2]
        W = min(4096, max(256, Sk // 4))
        rep = Hq // Hkv
        q = (lambda x, *d: x.permute(*d))((x @ wq).reshape(B, Sq, Hq, Dh), 0, 2, 1, 3)
        k = (lambda x, n, axis: torch.repeat_interleave(x, n, dim=axis))(k_cache[:, :, Sk - W:, :], rep, axis=1)
        v = (lambda x, n, axis: torch.repeat_interleave(x, n, dim=axis))(v_cache[:, :, Sk - W:, :], rep, axis=1)
        scores = torch.einsum("bhqd,bhkd->bhqk", q, k) * (Dh ** -0.5)
        p = _softmax(scores, axis=-1)
        o = torch.einsum("bhqk,bhkd->bhqd", p, v)
        return (lambda x, *d: x.permute(*d))(o, 0, 2, 1, 3).reshape(B, Sq, Hq * Dh) @ wo

    def _B_ref(x, w1, b1, w2, b2):
        h = torch.einsum("bsd,df->bsf", x, w1) + b1
        h = _gelu(h)
        return torch.einsum("bsf,fd->bsd", h, w2) + b2

    x = A_x
    x = x + _A_ref(_layernorm(x, axis=-1), A_k_cache, A_v_cache, A_wq, A_wo)
    x = x + _B_ref(_layernorm(x, axis=-1), B_w1, B_b1, B_w2, B_b2)
    x = x + _A_ref(_layernorm(x, axis=-1), A_k_cache, A_v_cache, A_wq, A_wo)
    x = x + _B_ref(_layernorm(x, axis=-1), B_w1, B_b1, B_w2, B_b2)
    return x
```

```python
import re, subprocess, os, tempfile

LLVM = "bin"

def vr(a, n=1):
    return "v%d" % a if n == 1 else "v[%d:%d]" % (a, a + n - 1)
def sr(a, n=1):
    return "s%d" % a if n == 1 else "s[%d:%d]" % (a, a + n - 1)

_REG = re.compile(r"^(-|abs\()?([vs])(?:(\d+)|\[(\d+):(\d+)\])\)?$")
def regs(tok):
    tok = tok.strip()
    if tok == "vcc": return {"vcc"}
    if tok == "exec": return {"exec"}
    if tok == "m0": return {"m0"}
    m = _REG.match(tok)
    if not m: return set()
    if m.group(3) is not None: return {m.group(2) + m.group(3)}
    return {m.group(2) + str(i) for i in range(int(m.group(4)), int(m.group(5)) + 1)}

TRANS = ("v_exp_f32", "v_log_f32", "v_rcp_f32", "v_rsq_f32", "v_sqrt_f32", "v_sin_f32", "v_cos_f32")

class Ins:
    def __init__(self, text):
        self.text = text
        t = text.split(";")[0].strip()
        self.label = t[:-1] if t.endswith(":") else None
        self.directive = t.startswith(".") and self.label is None
        self.isins = bool(t) and self.label is None and not self.directive
        self.w = set(); self.r = set(); self.target = None
        self.mn = ""
        self.valu = self.mfma = self.trans = self.dpp = self.perm = self.rdlane = self.vmem = self.ds = self.salu = self.dot = False
        self.wide_store = set(); self.lds_dma = False; self.srcc = set(); self.states = 1
        if not self.isins: return
        parts = t.split(None, 1)
        mn = self.mn = parts[0]
        rest = parts[1] if len(parts) > 1 else ""
        ops = [o.strip() for o in rest.split(",")]
        if ops:
            lastp = ops[-1].split()
        ops = [o.split()[0] if o.split() else "" for o in ops]
        R = [regs(o) for o in ops]
        allr = lambda lst: set().union(*lst) if lst else set()
        if mn == "s_nop": self.states = int(ops[0], 0) + 1
        if mn.startswith("s_cbranch") or mn == "s_branch": self.target = ops[0]
        if mn.startswith("v_smfmac"):
            self.mfma = True; self.w = R[0]; self.srcc = R[0]; self.r = allr(R[1:])
        elif mn.startswith("v_mfma"):
            self.mfma = True; self.w = R[0]; self.srcc = R[3]; self.r = allr(R[1:3])
        elif mn.startswith("v_"):
            self.valu = True
            base = re.sub(r"_(e32|e64|dpp|sdwa)$", "", mn)
            self.trans = base in TRANS
            self.dpp = bool(re.search(r"quad_perm|row_shl|row_shr|row_ror|row_mirror|row_half_mirror|row_bcast|row_newbcast|wave_", rest))
            self.perm = base.startswith("v_permlane")
            self.rdlane = base in ("v_readlane_b32", "v_readfirstlane_b32")
            self.dot = base.startswith("v_dot"); self.ab = allr(R[1:3])
            self.w = set(R[0]); self.r = allr(R[1:])
            if self.perm: self.w |= R[1]; self.r |= R[0]
            if base in ("v_fmac_f32", "v_dot2c_f32_bf16", "v_writelane_b32") or self.dpp: self.r |= R[0]
            if base.startswith("v_cndmask") and len(ops) == 3: self.r |= {"vcc"}
            if base.startswith("v_add_co") or base.startswith("v_addc_co"): self.w |= R[1]
        elif mn.startswith("buffer_") or mn.startswith("global_"):
            self.vmem = True
            toks = rest.replace(",", " ").split()
            self.lds_dma = "lds" in toks
            if self.lds_dma: self.r = allr(R) | {"m0"}
            elif "load" in mn: self.w = R[0]; self.r = allr(R[1:])
            else:
                self.r = allr(R)
                data = R[0] if mn.startswith("buffer_") else R[1]
                if mn.endswith("x3") or mn.endswith("x4"): self.wide_store = data
        elif mn.startswith("ds_"):
            self.ds = True
            if "read" in mn or "permute" in mn or "swizzle" in mn: self.w = R[0]; self.r = allr(R[1:])
            else: self.r = allr(R)
        elif mn.startswith("s_"):
            self.salu = True
            if mn.startswith("s_cmp") or mn.startswith("s_bitcmp") or self.target or mn in ("s_nop", "s_waitcnt", "s_barrier", "s_endpgm", "s_sleep", "s_setprio"):
                self.r = allr(R)
            else:
                self.w = set(R[0]); self.r = allr(R[1:])

def isv(s): return {x for x in s if x[0] == "v" and x != "vcc"}
def iss(s): return {x for x in s if x[0] == "s" or x == "vcc"}

def need(p, c):
    n = 0
    if p.valu:
        wv = isv(p.w); ws = iss(p.w)
        if wv & c.r or (c.mfma and wv & c.srcc):
            if c.dpp or c.perm or c.mfma: n = max(n, 2)
            if c.rdlane: n = max(n, 1)
            if p.trans and c.valu and not c.trans: n = max(n, 1)
        if p.dot and (wv & (c.r | c.w)) and (c.valu or c.mfma or c.vmem or c.ds) and not (c.mn == p.mn and wv & c.r and not wv & c.ab): n = max(n, 3)
        if ws & c.r:
            if c.valu: n = max(n, 4 if c.rdlane else 2)
            if c.vmem: n = max(n, 5)
    if p.mfma:
        if c.mfma:
            if p.w & c.r: n = max(n, 8)
            if p.w & c.srcc and p.w != c.srcc: n = max(n, 6)
        elif (c.valu or c.vmem or c.ds) and (p.w & (c.r | c.w)): n = max(n, 8)
        if c.valu and (p.srcc & c.w): n = max(n, 3)
    if p.salu and "m0" in p.w and c.lds_dma: n = max(n, 1)
    if p.wide_store and (p.wide_store & c.w): n = max(n, 2)
    return n

def fix_hazards(lines):
    L = [Ins(x) for x in lines]
    added = 0
    i = 0
    while i < len(L):
        c = L[i]
        if c.isins:
            srcs = {}
            for k, x in enumerate(L):
                if x.target: srcs.setdefault(x.target, []).append(k)
            deficit = 0
            stack = [(i - 1, 0)]; seen = set()
            while stack:
                k, d = stack.pop()
                while k >= 0 and d < 8:
                    if (k, d) in seen: break
                    seen.add((k, d))
                    x = L[k]
                    if x.label:
                        for s in srcs.get(x.label, []): stack.append((s, d))
                        kk = k - 1
                        while kk >= 0 and not L[kk].isins and not L[kk].label: kk -= 1
                        if kk >= 0 and L[kk].isins and L[kk].mn in ("s_branch", "s_endpgm"): break
                    elif x.isins:
                        deficit = max(deficit, need(x, c) - d)
                        d += x.states
                    k -= 1
            if deficit > 0:
                L.insert(i, Ins("s_nop %d" % (deficit - 1))); added += deficit; i += 1
        i += 1
    return [x.text for x in L], added

def sizes(lines):
    d = tempfile.mkdtemp()
    s = os.path.join(d, "a.s"); o = os.path.join(d, "a.o")
    body = [x for x in lines if not Ins(x).directive]
    open(s, "w").write('.amdgcn_target "amdgcn-amd-amdhsa--gfx950"\n.text\n' + "\n".join(body) + "\n")
    r = subprocess.run([LLVM + "/clang", "-x", "assembler", "-target", "amdgcn-amd-amdhsa", "-mcpu=gfx950", "-c", s, "-o", o], capture_output=True, text=True)
    if r.returncode: print(r.stderr[:3000]); raise SystemExit("size pass failed")
    dis = subprocess.run([LLVM + "/llvm-objdump", "-d", "--mcpu=gfx950", o], capture_output=True, text=True).stdout
    sz = [4 * len(m.group(1).split()) for m in re.finditer(r"//\s+[0-9A-F]{12}:((?: [0-9A-F]{8})+)", dis)]
    out = []; k = 0
    for x in lines:
        if Ins(x).isins: out.append(sz[k]); k += 1
        else: out.append(None)
    assert k == len(sz), (k, len(sz))
    return out

def insert_pads(lines, start_label, end_label, back_label, step=512, stride=1):
    sz = sizes(lines)
    out = []; on = False; pos = 0; nxt = 0; n = 0
    for x, s in zip(lines, sz):
        t = x.strip()
        if t == end_label + ":":
            on = False
        if on and s is not None:
            if pos >= nxt:
                out.append("L_pad%d:" % n); out.append("s_cbranch_execz L_pad%d" % (n + stride)); n += 1
                pos += 4; nxt += step
            pos += s
        out.append(x)
        if t == start_label + ":":
            on = True; pos = 0; nxt = 0
    out = ["s_cbranch_execz " + back_label if y.startswith("s_cbranch_execz L_pad") and y[21:].isdigit() and int(y[21:]) >= n else y for y in out]
    return out, n, pos
```

```python
import sys, math, struct
from asmlib import *

NAME = "interleave_layers__sliding_block_cached__dense_activation_gelu__decode"

def f32(x): return "0x%08x" % struct.unpack("<I", struct.pack("<f", x))[0]

DEF = dict(NS=4, stamps=None, force_global=0, pads=1, preread=19, warm=13, padstep=512)

LOC = 32768
L_O, L_Q1, L_H, L_LSE, L_CAN = 0, 24576, 26112, 26880, 27136
XP = 8 * LOC; XPS = 20480
Q0 = XP + 4 * XPS
WS_BYTES = Q0 + 32 * 384
STAMP_OFF = 1 << 20
P_X, P_K, P_V, P_WQ, P_WO, P_W1, P_B1, P_W2, P_B2, P_OUT, P_DBG, P_WS = 4, 6, 8, 10, 12, 16, 18, 20, 22, 24, 26, 28
sW, sX = 30, 31
R_K, R_V, R_WS, R_WQ, R_WL = 32, 36, 40, 44, 48
sC, sHL, sJ, sFLAG, sBUD, sT0, sT1, sT2, sT3, sRING, sLOC, sXCC = 52, 53, 54, 55, 56, 57, 58, 59, 60, 61, 62, 63
sF = 64
sM0, sM1 = 72, 74
sST = 76
vL, vIDX, vX0, vX1, vB = 0, 1, 2, 3, 4
KB, VB = 64, 160
ONES = "0x3f803f80"

class G:
    def __init__(self, **kw):
        self.o = dict(DEF); self.o.update(kw)
        self.L = []; self.ool = []; self.n = 0; self.vm = []; self.stampn = []
        NS = self.NS = self.o["NS"]
        self.LD_WQ = 0; self.LD_WL = 30720; self.LD_W2 = self.LD_WL + 49152
        self.LD_RING = self.LD_W2 + 12288; self.LD_PP = self.LD_RING + 8 * NS * 2048
        self.LD_ML = self.LD_PP + 5120; self.LD_FLAG = self.LD_ML + 64; self.LDS = self.LD_FLAG + 64
        assert self.LDS <= 163840
    def __call__(self, s): self.L.append(s)
    def lab(self, p="L"):
        self.n += 1; return "%s_%d" % (p, self.n)
    def stamp(self, name):
        st = self.o["stamps"]
        if st and name in st:
            i = st.index(name); self("s_memrealtime %s" % sr(sST + 2 * i, 2))
    def lanefn(self, dst, terms, tmp, s=None, const=0, src=vL):
        a = self; first = True
        for sh, nb, mul in terms:
            t = dst if first else tmp
            p2 = mul & (mul - 1) == 0
            if nb >= 6 - sh and src == vL:
                if sh: a("v_lshrrev_b32 v%d, %d, v%d" % (t, sh, src)); x = t
                else: x = src
            elif sh == 0: a("v_and_b32 v%d, %d, v%d" % (t, (1 << nb) - 1, src)); x = t
            else: a("v_bfe_u32 v%d, v%d, %d, %d" % (t, src, sh, nb)); x = t
            if first:
                if p2:
                    if mul > 1 or x != dst: a("v_lshlrev_b32 v%d, %d, v%d" % (dst, mul.bit_length() - 1, x))
                else: a("v_mul_u32_u24 v%d, %d, v%d" % (dst, mul, x))
            elif p2: a("v_lshl_add_u32 v%d, v%d, %d, v%d" % (dst, x, mul.bit_length() - 1, dst))
            else:
                a("v_mul_u32_u24 v%d, %d, v%d" % (tmp, mul, x)); a("v_add_u32 v%d, v%d, v%d" % (dst, tmp, dst))
            first = False
        if s is not None: a("v_add_u32 v%d, s%d, v%d" % (dst, s, dst))
        if const: a("v_add_u32 v%d, %d, v%d" % (dst, const, dst))
    def srd(self, r, p, nbytes, off=None):
        a = self
        if off is None: a("s_mov_b32 s%d, s%d" % (r, p)); a("s_mov_b32 s%d, s%d" % (r + 1, p + 1))
        else: a("s_add_u32 s%d, s%d, s%d" % (r, p, off)); a("s_addc_u32 s%d, s%d, 0" % (r + 1, p + 1))
        a("s_mov_b32 s%d, %s" % (r + 2, nbytes)); a("s_mov_b32 s%d, 0x20000" % (r + 3))
    def skip_unless(self, cmp, a_, b_):
        l = self.lab("L_skip"); self("s_cmp_%s_u32 %s, %s" % (cmp, a_, b_)); self("s_cbranch_scc0 " + l); return l
    def exec_(self, m):
        if m == -1: self("s_mov_b64 exec, -1")
        elif m < (1 << 31): self("s_mov_b64 exec, 0x%x" % m)
        else: self("s_mov_b32 exec_lo, 0x%x" % (m & 0xffffffff)); self("s_mov_b32 exec_hi, 0x%x" % (m >> 32))
    def local_store(self, ins):
        a = self; l = a.lab("L_gs"); b = a.lab("L_gb")
        a("s_cmp_eq_u32 s%d, 0" % sFLAG); a("s_cbranch_scc1 " + l); a(ins); a(b + ":")
        a.ool += [l + ":", ins + " sc1", "s_branch " + b]
    def budget(self):
        return ["s_sub_u32 s%d, s%d, 1" % (sBUD, sBUD), "s_cbranch_scc1 L_done"]
    def check(self, rs, t):
        a = self; rs = list(rs)
        if len(rs) == 1: a("v_cmp_eq_u32 vcc, -1, v%d" % rs[0]); return
        if len(rs) == 2: a("v_max_u32 v%d, v%d, v%d" % (t, rs[0], rs[1])); rs = []
        else: a("v_max3_u32 v%d, v%d, v%d, v%d" % (t, rs[0], rs[1], rs[2])); rs = rs[3:]
        while len(rs) >= 2: a("v_max3_u32 v%d, v%d, v%d, v%d" % (t, t, rs[0], rs[1])); rs = rs[2:]
        if rs: a("v_max_u32 v%d, v%d, v%d" % (t, t, rs[0]))
        a("v_cmp_eq_u32 vcc, -1, v%d" % t)
    def poll(self, loads, rs, t, shadow=None, issued=False, first_wait=0):
        a = self; w = a.lab("L_pw"); r = a.lab("L_pr")
        if not issued:
            for x in loads: a(x)
        if shadow: shadow()
        if first_wait is not None: a("s_waitcnt vmcnt(%d)" % first_wait)
        a(w + ":")
        a.check(rs, t)
        a("s_cbranch_vccnz " + r)
        a.ool += [r + ":"] + a.budget() + list(loads) + ["s_waitcnt vmcnt(0)", "s_branch " + w]

    def dma_slot(self, s):
        a = self; seg = s % 3; slot = (s % a.NS) * 2048
        a("s_add_u32 m0, s%d, %d" % (sRING, slot))
        if s < 12:
            gA = s // 3; runs = [(4 * (gA // 2) + 2 * (gA % 2) + b) for b in (0, 1)]; vo = (5, 6); R = R_K
        else:
            u = (s - 12) // 3; runs = [(4 * (u // 2) + 2 * aa + u % 2) for aa in (0, 1)]; vo = (7, 7); R = R_V
        for i in (0, 1):
            so = runs[i] * 196608 + seg * 128 - i * 1024
            a("s_mov_b32 s%d, %d" % (sT0 + i, so))
            a("buffer_load_dwordx4 v%d, %s, s%d offen offset:%d nt lds" % (vo[i], sr(R, 4), sT0 + i, i * 1024))
            a.vm.append(("slot", s))
    def wait_vm(self, tag):
        idx = max(i for i, t in enumerate(self.vm) if t == tag)
        n = len(self.vm) - 1 - idx
        self("s_waitcnt vmcnt(%d)" % n); self.vm = self.vm[idx + 1:]
    def step(self, s):
        a = self; seg = s % 3; slot = (s % a.NS) * 2048
        a.wait_vm(("slot", s))
        if s < 12:
            d = KB + 24 * (s // 3) + 8 * seg
            a("ds_read_b128 %s, v8 offset:%d" % (vr(d, 4), slot)); a("ds_read_b128 %s, v9 offset:%d" % (vr(d + 4, 4), slot))
        else:
            u = (s - 12) // 3
            for tt in range(4):
                a("ds_read_b64_tr_b16 %s, v%d offset:%d" % (vr(VB + 8 * (4 * seg + tt) + 2 * u, 2), 8 + tt, slot))
        a("s_waitcnt lgkmcnt(0)")
        if s + a.NS < 24: a.dma_slot(s + a.NS)

    def ln_prefetch(self, nt, base, pitch):
        a = self
        a("s_mul_i32 s%d, s%d, 6144" % (sT0, sW))
        a.lanefn(10, [(4, 2, 32 * pitch), (3, 1, 8 * pitch), (1, 1, 4 * pitch), (2, 1, pitch), (0, 1, 8)], 60, s=sT0, const=base)
        for t in range(nt):
            for u in range(4):
                a("ds_read_b64_tr_b16 %s, v10 offset:%d" % (vr(36 + 8 * t + 2 * u, 2), (16 * (u % 2) + 2 * (u // 2)) * pitch + 16 * t))
        a("s_lshl_b32 s%d, s%d, 10" % (sT0, sW))
        a.lanefn(11, [(0, 6, 16)], 60, s=sT0, const=a.LD_PP)
        for r in range(4): a("v_mov_b32 v%d, %s" % (32 + r, ONES))
        a("v_mov_b32 v61, %s" % ONES)
    def gather_addr(self):
        a = self
        a("s_lshl_b32 s%d, s%d, 9" % (sT0, sW))
        a.lanefn(5, [(5, 1, 2560), (0, 5, 16)], 60, s=sT0)
    def gather(self, ph):
        a = self; w = a.lab("L_gw"); r = a.lab("L_gr"); ok = a.lab("L_gk")
        ld = []
        for n in range(4):
            a("s_mov_b32 s%d, %d" % (sT0 + n, XP + ph * XPS + n * 5120))
            ld.append("buffer_load_dwordx4 %s, v5, %s, s%d offen sc1" % (vr(12 + 4 * n, 4), sr(R_WS, 4), sT0 + n)); a(ld[-1])
        a(w + ":")
        a("s_waitcnt vmcnt(2)")
        a("v_pk_add_f32 v[28:29], v[12:13], v[16:17]"); a("v_pk_add_f32 v[30:31], v[14:15], v[18:19]")
        a("s_waitcnt vmcnt(1)")
        a("v_pk_add_f32 v[28:29], v[28:29], v[20:21]"); a("v_pk_add_f32 v[30:31], v[30:31], v[22:23]")
        a("s_waitcnt vmcnt(0)")
        a("v_pk_add_f32 v[28:29], v[28:29], v[24:25]"); a("v_pk_add_f32 v[30:31], v[30:31], v[26:27]")
        a("v_permlane32_swap_b32 v28, v30"); a("v_permlane32_swap_b32 v29, v31")
        a("v_pk_add_f32 v[28:29], v[28:29], v[30:31]")
        a("v_pk_add_f32 v[28:29], v[28:29], v[%d:%d]" % (vX0, vX1))
        a("v_cmp_u_f32 vcc, v28, v29")
        a("s_cbranch_vccnz " + r)
        a(ok + ":")
        a("v_cvt_pk_bf16_f32 v28, v28, v29")
        o = [r + ":"] + a.budget() + ["s_mov_b64 %s, 0" % sr(sM1, 2)]
        for n in range(4):
            b = 12 + 4 * n; sk = a.lab("L_gn")
            o += ["v_max3_u32 v30, v%d, v%d, v%d" % (b, b + 1, b + 2), "v_max_u32 v30, v30, v%d" % (b + 3),
                  "v_cmp_eq_u32 vcc, -1, v30", "s_cbranch_vccz " + sk,
                  "s_or_b64 %s, %s, vcc" % (sr(sM1, 2), sr(sM1, 2)), "s_mov_b64 exec, vcc", ld[n], "s_mov_b64 exec, -1", sk + ":"]
        o += ["s_cmp_eq_u64 %s, 0" % sr(sM1, 2), "s_cbranch_scc1 " + ok, "s_waitcnt vmcnt(0)", "s_branch " + w]
        a.ool += o
    def unpack_x(self):
        self("v_lshlrev_b32 v%d, 16, v28" % vX0); self("v_and_b32 v%d, 0xffff0000, v28" % vX1)
    def add_b2(self):
        a = self
        a("v_lshlrev_b32 v60, 16, v%d" % vB); a("v_add_f32 v%d, v%d, v60" % (vX0, vX0))
        a("v_and_b32 v60, 0xffff0000, v%d" % vB); a("v_add_f32 v%d, v%d, v60" % (vX1, vX1))
    def ln_front(self, nt):
        a = self
        z = lambda r: a("v_mov_b64 v[%d:%d], 0" % (r, r + 1))
        mm = lambda t: a("v_smfmac_f32_16x16x64_bf16 %s, v[32:35], %s, v%d" % (vr(12 + 4 * t, 4), vr(36 + 8 * t, 8), vIDX))
        z(12); z(14)
        a("v_mov_b32_dpp v32, v28 quad_perm:[0,1,2,3] row_mask:0xf bank_mask:0x1")
        for r in (1, 2, 3): a("v_mov_b32_dpp v%d, v28 row_shl:%d row_mask:0xf bank_mask:0x1" % (32 + r, 4 * r))
        a("v_dot2_f32_bf16 v27, v28, v61, 0"); a("v_dot2_f32_bf16 v62, v28, v28, 0")
        a("s_waitcnt lgkmcnt(0)")
        mm(0); z(16); z(18)
        a("v_permlane32_swap_b32 v27, v62")
        mm(1)
        if nt == 3: z(20); z(22)
        a("v_add_f32 v27, v27, v62"); a("v_mov_b32 v62, v27")
        if nt == 3: mm(2)
        a("v_permlane16_swap_b32 v27, v62")
        a("v_add_f32 v27, v27, v62")
        red = ["v_add_f32_dpp v27, v27, v27 row_ror:%d row_mask:0xf bank_mask:0xf" % k for k in (8, 4, 2, 1)]
        ext = []
        for t in range(nt): ext.append("v_pk_add_f32 %s, %s, %s" % (vr(12 + 4 * t, 2), vr(12 + 4 * t, 2), vr(14 + 4 * t, 2)))
        for t in range(nt): ext.append("v_add_f32_dpp v%d, v%d, v%d row_shl:8 row_mask:0xf bank_mask:0xf bound_ctrl:0" % (24 + t, 13 + 4 * t, 12 + 4 * t))
        a.unpack_x()
        while red or ext:
            if red: a(red.pop(0))
            for _ in range(2):
                if ext: a(ext.pop(0))
        a("ds_write_b128 v11, v[24:27]")
        a("s_waitcnt lgkmcnt(0)")
    def ln_final_addr(self):
        a = self
        a.lanefn(10, [(0, 3, 16), (3, 2, 4), (5, 1, 256)], 60, const=a.LD_PP)
        a("v_mov_b32 v60, %d" % (a.LD_PP + 512 + 12)); a("v_cmp_eq_u32 vcc, 25, v%d" % vL); a("v_cndmask_b32 v10, v10, v60, vcc")
    def ln_final(self):
        a = self
        a("ds_read2st64_b32 v[12:13], v10 offset0:0 offset1:4"); a("ds_read2st64_b32 v[14:15], v10 offset0:8 offset1:12")
        a("ds_read_b32 v16, v10 offset:4096")
        a("s_waitcnt lgkmcnt(1)")
        a("v_pk_add_f32 v[12:13], v[12:13], v[14:15]")
        a("s_waitcnt lgkmcnt(0)")
        a("v_add_f32 v12, v12, v16"); a("v_add_f32 v12, v12, v13")
        a("v_mov_b32 v14, %s" % f32(1.0 / 640))
        a("v_readlane_b32 s%d, v12, 24" % sT0); a("v_readlane_b32 s%d, v12, 25" % sT1)
        a("v_permlane32_swap_b32 v12, v13")
        a("v_mul_f32 v15, s%d, v14" % sT0)
        a("v_mul_f32 v16, s%d, v14" % sT1)
        a("v_fma_f32 v16, -v15, v15, v16"); a("v_max_f32 v16, 0, v16"); a("v_add_f32 v16, %s, v16" % f32(1e-5))
        a("v_rsq_f32 v16, v16")
        a("v_fma_f32 v12, -v15, v13, v12")
        a("v_mul_f32 v12, v12, v16")
    def pack_pairs(self):
        a = self
        a("v_mov_b32_dpp v13, v12 row_shl:1 row_mask:0xf bank_mask:0xf bound_ctrl:0")
        a("v_cvt_pk_bf16_f32 v12, v12, v13"); a("v_min_u32 v12, -2, v12")
    def q_store_addr(self, dst):
        a = self
        a("s_mul_i32 s%d, s%d, 12" % (sT0, sJ))
        a("v_lshrrev_b32 v60, 1, v%d" % vL); a("v_add_u32 v60, s%d, v60" % sT0)
        a.lanefn(dst, [(3, 4, 32), (0, 1, 16), (1, 2, 4)], 61, src=60)
    def q_base(self, l, dst):
        a = self
        if l == 0:
            a("s_lshl_b32 s%d, s%d, 2" % (dst, sX)); a("s_add_u32 s%d, s%d, s%d" % (dst, dst, sHL))
            a("s_mul_i32 s%d, s%d, 384" % (dst, dst)); a("s_add_u32 s%d, s%d, %d" % (dst, dst, Q0))
        else:
            a("s_mul_i32 s%d, s%d, 384" % (dst, sHL)); a("s_add_u32 s%d, s%d, s%d" % (dst, dst, sLOC)); a("s_add_u32 s%d, s%d, %d" % (dst, dst, L_Q1))
    QMASK = 0x555555
    def q_final(self, l):
        a = self
        a.ln_final(); a.pack_pairs(); a.exec_(a.QMASK)
        st = "buffer_store_dword v12, v11, %s, s%d offen" % (sr(R_WS, 4), sT2)
        if l == 0: a(st + " sc1")
        else: a.local_store(st)
        a.exec_(-1)

    def q_loads(self, l, addr=5):
        a = self
        a.q_base(l, sT3)
        a.lanefn(addr, [(4, 2, 32), (1, 1, 16)], 60, s=sT3)
        return ["buffer_load_dwordx4 %s, v%d, %s, 0 offen offset:%d sc1" % (vr(12 + 4 * k, 4), addr, sr(R_WS, 4), 128 * k) for k in range(3)]
    def zero_d(self):
        for r in range(24, 64, 2): self("v_mov_b64 v[%d:%d], 0" % (r, r + 1))
    def qk_softmax(self):
        a = self
        for g in range(4):
            for k in range(3):
                a("v_smfmac_f32_16x16x64_bf16 %s, %s, %s, v%d" % (vr(24 + 4 * g, 4), vr(12 + 4 * k, 4), vr(KB + 24 * g + 8 * k, 8), vIDX))
        c = 192 ** -0.5 * math.log2(math.e)
        a("s_mov_b32 s%d, %s" % (sT0, f32(c)))
        a("s_mov_b32 vcc_lo, 0x55555555"); a("s_mov_b32 vcc_hi, 0x55555555")
        for g in range(4): a("v_add_f32 v%d, v%d, v%d" % (24 + 4 * g, 24 + 4 * g, 26 + 4 * g))
        a("v_max3_f32 v21, v24, v28, v32"); a("v_max_f32 v21, v21, v36")
        sel = ["v_mov_b32_dpp v24, v%d quad_perm:[0,1,2,3] row_mask:0x%x bank_mask:0xf" % (24 + 4 * g, 1 << g) for g in (1, 2, 3)]
        for k in (8, 4, 2, 1):
            if sel: a(sel.pop(0))
            a("v_max_f32_dpp v21, v21, v21 row_ror:%d row_mask:0xf bank_mask:0xf" % k)
        a("v_sub_f32 v24, v24, v21"); a("v_mul_f32 v24, s%d, v24" % sT0); a("v_exp_f32 v22, v24")
        a("v_mul_f32 v20, s%d, v21" % sT0)
        a("v_mov_b32_dpp v23, v22 row_shl:1 row_mask:0xf bank_mask:0xf bound_ctrl:0")
        a("v_cvt_pk_bf16_f32 v23, v22, v23"); a("v_cndmask_b32 v12, 0, v23, vcc")
        a("v_mov_b32 v21, v22")
        for r in (1, 2, 3): a("v_mov_b32_dpp v%d, v12 row_shl:%d row_mask:0xf bank_mask:0xf bound_ctrl:0" % (12 + r, 4 * r))
    def side_ops(self):
        a = self
        o = ["v_mov_b32_dpp v16, v12 row_shr:1 row_mask:0xf bank_mask:0xf bound_ctrl:0"]
        o += ["v_mov_b32_dpp v%d, v12 row_shl:%d row_mask:0xf bank_mask:0xf bound_ctrl:0" % (16 + r, 4 * r - 1) for r in (1, 2, 3)]
        red = ["v_permlane32_swap_b32 v21, v22", "v_add_f32 v21, v21, v22", "v_mov_b32 v22, v21",
               "v_permlane16_swap_b32 v21, v22", "v_add_f32 v21, v21, v22"]
        red += ["v_add_f32_dpp v21, v21, v21 row_ror:%d row_mask:0xf bank_mask:0xf" % k for k in (8, 4, 2, 1)]
        return o, red
    def ml_addr(self):
        self("s_lshl_b32 s%d, s%d, 3" % (sT1, sW)); self("s_add_u32 s%d, s%d, %d" % (sT1, sT1, self.LD_ML)); self("v_mov_b32 v6, s%d" % sT1)
    def pv(self, T):
        self("v_smfmac_f32_16x16x64_bf16 %s, %s, %s, v%d" % (vr(40 + 4 * (T // 2), 4), vr(12 + 4 * (T % 2), 4), vr(VB + 8 * T, 8), vIDX))
    def pv_ext(self, m):
        self("v_pk_add_f32 %s, %s, %s" % (vr(24 + 2 * m, 2), vr(40 + 4 * m, 2), vr(42 + 4 * m, 2)))
    def oc_addr(self):
        self.lanefn(36, [(0, 4, 16)], 60, s=sRING)
    def oc_write(self, tq):
        self("ds_write_b128 v36, %s offset:%d" % (vr(24 + 4 * tq, 4), 256 * tq))
    def ml_calc(self, l):
        a = self
        a.lanefn(37, [(0, 3, 8)], 60, const=a.LD_ML)
        a("ds_read_b64 v[38:39], v37")
        a("s_lshl_b32 s%d, s%d, 3" % (sT0, sHL)); a("s_add_u32 s%d, s%d, s%d" % (sT0, sT0, sJ)); a("s_lshl_b32 s%d, s%d, 2" % (sT0, sT0))
        a("v_mov_b32 v23, s%d" % sT0)
        a("s_add_u32 s%d, s%d, %d" % (sT0, sLOC, L_LSE + 128 * l))
        a("s_waitcnt lgkmcnt(0)")
        a("v_max_f32_dpp v37, v38, v38 row_ror:4 row_mask:0xf bank_mask:0xf")
        for k in (2, 1): a("v_max_f32_dpp v37, v37, v37 row_ror:%d row_mask:0xf bank_mask:0xf" % k)
        a("v_sub_f32 v38, v38, v37"); a("v_exp_f32 v38, v38"); a("v_mul_f32 v39, v38, v39")
        for k in (4, 2, 1): a("v_add_f32_dpp v39, v39, v39 row_ror:%d row_mask:0xf bank_mask:0xf" % k)
        a("v_log_f32 v22, v39"); a("v_rcp_f32 v39, v39")
        a("v_add_f32 v22, v22, v37"); a("v_min_u32 v22, -2, v22"); a("v_mul_f32 v38, v38, v39")
        sk = a.skip_unless("eq", "s%d" % sW, 0)
        a.exec_(1)
        a.local_store("buffer_store_dword v22, v23, %s, s%d offen" % (sr(R_WS, 4), sT0))
        a.exec_(-1)
        a(sk + ":")
        for w in range(8): a("v_readlane_b32 s%d, v38, %d" % (sF + w, w))
    def combine_addr(self, l):
        a = self
        a("s_mul_i32 s%d, s%d, 48" % (sT0, sW)); a("v_add_u32 v38, s%d, v%d" % (sT0, vL))
        a.lanefn(5, [(5, 2, 256), (0, 4, 16), (4, 1, 8)], 39, const=a.LD_RING, src=38)
        a("s_lshr_b32 s%d, s%d, 1" % (sT0, sJ)); a("s_lshl_b32 s%d, s%d, 2" % (sT0, sT0)); a("s_and_b32 s%d, s%d, 1" % (sT1, sJ))
        a("s_add_u32 s%d, s%d, s%d" % (sT0, sT0, sT1))
        a("s_lshl_b32 s%d, s%d, 4" % (sT1, sT0)); a("s_lshl_b32 s%d, s%d, 3" % (sT0, sT0))
        a.lanefn(6, [(3, 2, 256), (2, 1, 32), (0, 2, 4)], 39, s=sT1)
        a.lanefn(38, [(3, 1, 256), (1, 1, 128), (2, 1, 16), (0, 1, 4)], 39, s=sT0, const=1024)
        a("v_cmp_gt_u32 vcc, 32, v%d" % vL); a("v_cndmask_b32 v6, v38, v6, vcc")
        a("s_lshl_b32 s%d, s%d, 1" % (sT0, sHL)); a("s_add_u32 s%d, s%d, s%d" % (sT0, sT0, sW)); a("s_mul_i32 s%d, s%d, 1536" % (sT0, sT0))
        a("s_add_u32 s%d, s%d, s%d" % (sT0, sT0, sLOC)); a("s_add_u32 s%d, s%d, %d" % (sT0, sT0, L_O + l * 12288))
        a("v_add_u32 v6, s%d, v6" % sT0)
    def combine(self):
        a = self
        a.exec_((1 << 48) - 1)
        for w in range(8): a("ds_read_b64 %s, v5 offset:%d" % (vr(40 + 2 * w, 2), w * a.NS * 2048))
        for w in range(8):
            a("s_waitcnt lgkmcnt(%d)" % (7 - w))
            op = "v_mul_f32" if w == 0 else "v_fmac_f32"
            a("%s v56, s%d, v%d" % (op, sF + w, 40 + 2 * w)); a("%s v57, s%d, v%d" % (op, sF + w, 41 + 2 * w))
        a("v_cvt_pk_bf16_f32 v56, v56, v57"); a("v_min_u32 v56, -2, v56")
        a.local_store("buffer_store_dword v56, v6, %s, 0 offen" % sr(R_WS, 4))
        a.exec_(-1)

    def canary_store(self, ph):
        a = self
        a("s_lshl_b32 s%d, s%d, 2" % (sT0, sC)); a("s_add_u32 s%d, s%d, s%d" % (sT0, sT0, sLOC)); a("s_add_u32 s%d, s%d, %d" % (sT0, sT0, L_CAN + 128 * ph))
        a.exec_(1)
        a.local_store("buffer_store_dword v%d, v%d, %s, s%d offen" % (vL, vL, sr(R_WS, 4), sT0))
        a.exec_(-1)
    def canary_poll(self, ph):
        a = self
        a("s_add_u32 s%d, s%d, %d" % (sT0, sLOC, L_CAN + 128 * ph))
        a("v_min_u32 v6, 19, v%d" % vL); a("v_lshlrev_b32 v6, 2, v6")
        a.poll(["buffer_load_dword v12, v6, %s, s%d offen sc1" % (sr(R_WS, 4), sT0)], [12], 13)
    def p3(self, l):
        a = self
        a("s_lshr_b32 s%d, s%d, 1" % (sT0, sW)); a("s_lshl_b32 s%d, s%d, 5" % (sT0, sT0)); a("s_add_u32 s%d, s%d, s%d" % (sT0, sT0, sLOC))
        a("s_add_u32 s%d, s%d, %d" % (sT2, sT0, L_LSE + 128 * l))
        a.lanefn(5, [(0, 3, 4)], 60); a.lanefn(6, [(4, 2, 8)], 60)
        lse = ["buffer_load_dword v18, v5, %s, s%d offen sc1" % (sr(R_WS, 4), sT2), "buffer_load_dwordx2 v[20:21], v6, %s, s%d offen sc1" % (sr(R_WS, 4), sT2)]
        def sh1():
            a("s_mul_i32 s%d, s%d, 6144" % (sT0, sW))
            a.lanefn(7, [(2, 4, 64), (4, 1, 32), (0, 2, 8)], 60, s=sT0, const=a.LD_WL)
            a("v_xor_b32 v8, 32, v7")
            a("s_mul_i32 s%d, s%d, 1536" % (sT3, sW)); a("s_add_u32 s%d, s%d, s%d" % (sT3, sT3, sLOC)); a("s_add_u32 s%d, s%d, %d" % (sT3, sT3, L_O + l * 12288))
            a("v_lshlrev_b32 v9, 4, v%d" % vL); a("v_lshlrev_b32 v10, 3, v%d" % vL)
            if l == 0: a("s_waitcnt vmcnt(2)")
            for t in range(2):
                for m in range(6): a("ds_read_b64_tr_b16 %s, v%d offset:%d" % (vr(36 + 12 * t + 2 * m, 2), 7 + t, 1024 * m))
            for r in range(24, 32, 2): a("v_mov_b64 v[%d:%d], 0" % (r, r + 1))
            a("s_lshl_b32 s%d, s%d, 8" % (sT0, sW))
            a.lanefn(11, [(0, 6, 4)], 60, s=sT0, const=a.LD_PP)
        a.poll(lse, [18, 20, 21], 19, shadow=sh1)
        ol = ["buffer_load_dwordx4 v[12:15], v9, %s, s%d offen sc1" % (sr(R_WS, 4), sT3),
              "buffer_load_dwordx2 v[16:17], v10, %s, s%d offen offset:1024 sc1" % (sr(R_WS, 4), sT3)]
        def sh2():
            a("v_max_f32_dpp v19, v18, v18 row_ror:4 row_mask:0xf bank_mask:0xf")
            for k in (2, 1): a("v_max_f32_dpp v19, v19, v19 row_ror:%d row_mask:0xf bank_mask:0xf" % k)
            for r in (18, 20, 21): a("v_sub_f32 v%d, v%d, v19" % (r, r))
            for r in (18, 20, 21): a("v_exp_f32 v%d, v%d" % (r, r))
            for k in (4, 2, 1): a("v_add_f32_dpp v18, v18, v18 row_ror:%d row_mask:0xf bank_mask:0xf" % k)
            a("v_rcp_f32 v18, v18"); a("v_mul_f32 v20, v20, v18"); a("v_mul_f32 v21, v21, v18")
            a("s_waitcnt lgkmcnt(0)")
        a.poll(ol, range(12, 18), 19, shadow=sh2)
        a.stamp("o_in%d" % l)
        for t in range(2): a("v_smfmac_f32_16x16x64_bf16 %s, v[12:15], %s, v%d" % (vr(24 + 4 * t, 4), vr(36 + 12 * t, 8), vIDX))
        for t in range(2): a("v_smfmac_f32_16x16x32_bf16 %s, v[16:17], %s, v%d" % (vr(24 + 4 * t, 4), vr(44 + 12 * t, 4), vIDX))
        for t in range(2): a("v_pk_add_f32 %s, %s, %s" % (vr(24 + 4 * t, 2), vr(24 + 4 * t, 2), vr(26 + 4 * t, 2)))
        for t in range(2): a("v_mul_f32 v%d, v%d, v20" % (24 + 4 * t, 24 + 4 * t))
        for t in range(2): a("v_fmac_f32 v%d, v%d, v21" % (24 + 4 * t, 25 + 4 * t))
        a("v_permlane32_swap_b32 v24, v28"); a("v_add_f32 v24, v24, v28")
        a("ds_write_b32 v11, v24")
        a.lanefn(5, [(0, 6, 4)], 60, const=a.LD_PP)
        a("s_mul_i32 s%d, s%d, 2560" % (sT2, sX)); a("s_lshl_b32 s%d, s%d, 7" % (sT1, sC)); a("s_add_u32 s%d, s%d, s%d" % (sT2, sT2, sT1))
        a("s_add_u32 s%d, s%d, %d" % (sT2, sT2, XP + 2 * l * XPS - 64))
        a("v_lshlrev_b32 v6, 2, v%d" % vL)
        a("s_waitcnt lgkmcnt(0)")
        a("s_barrier")
        sk = a.skip_unless("eq", "s%d" % sW, 2)
        for n in range(4): a("ds_read2st64_b32 %s, v5 offset0:%d offset1:%d" % (vr(12 + 2 * n, 2), 2 * n, 2 * n + 1))
        a("s_waitcnt lgkmcnt(2)"); a("v_pk_add_f32 v[12:13], v[12:13], v[14:15]")
        a("s_waitcnt lgkmcnt(0)"); a("v_pk_add_f32 v[16:17], v[16:17], v[18:19]")
        a("v_pk_add_f32 v[12:13], v[12:13], v[16:17]"); a("v_add_f32 v12, v12, v13"); a("v_mov_b32 v13, v12")
        a("v_permlane16_swap_b32 v12, v13"); a("v_add_f32 v12, v12, v13"); a("v_min_u32 v12, -2, v12")
        a.exec_(0xffffffff << 16)
        a("buffer_store_dword v12, v6, %s, s%d offen sc1" % (sr(R_WS, 4), sT2))
        a.stamp("xp_pub%d" % (2 * l))
        a.canary_store(2 * l)
        a(sk + ":")
    def p4b(self, l):
        a = self
        a("s_sub_u32 s%d, s%d, 5" % (sT3, sW))
        a("s_mul_i32 s%d, s%d, 6144" % (sT2, sT3)); a("s_add_u32 s%d, s%d, %d" % (sT2, sT2, a.LD_W2))
        if l == 0:
            a.srd(R_WQ, P_W2, 1536 * 1280)
            a("s_mul_i32 s%d, s%d, %d" % (sT0, sX, 192 * 1280)); a("s_lshl_b32 s%d, s%d, 6" % (sT1, sC)); a("s_add_u32 s%d, s%d, s%d" % (sT0, sT0, sT1))
            a("s_lshl_b32 s%d, s%d, 5" % (sT1, sT3)); a("s_add_u32 s%d, s%d, s%d" % (sT0, sT0, sT1))
            a.lanefn(5, [(1, 5, 1280), (0, 1, 16)], 60, s=sT0)
            for m in range(6):
                a("s_add_u32 m0, s%d, %d" % (sT2, 1024 * m)); a("s_mov_b32 s%d, %d" % (sT0, m * 32 * 1280))
                a("buffer_load_dwordx4 v5, %s, s%d offen nt lds" % (sr(R_WQ, 4), sT0))
        a.lanefn(7, [(5, 1, 16 * 32), (4, 1, 4 * 32), (3, 1, 8 * 32), (2, 1, 32), (0, 2, 8)], 60, s=sT2)
        a("s_add_u32 s%d, s%d, %d" % (sT2, sLOC, L_H + 384 * l))
        a.lanefn(5, [(4, 2, 32), (1, 1, 16)], 60)
        a("v_mov_b64 v[24:25], 0"); a("v_mov_b64 v[26:27], 0")
        a("s_mul_i32 s%d, s%d, 2560" % (sT0, sX)); a("s_lshl_b32 s%d, s%d, 7" % (sT1, sC)); a("s_add_u32 s%d, s%d, s%d" % (sT0, sT0, sT1))
        a("s_lshl_b32 s%d, s%d, 6" % (sT3, sT3)); a("s_add_u32 s%d, s%d, s%d" % (sT3, sT3, sT0)); a("s_add_u32 s%d, s%d, %d" % (sT3, sT3, XP + (2 * l + 1) * XPS))
        a("v_lshlrev_b32 v6, 2, v%d" % vL)
        if l == 0: a("s_waitcnt vmcnt(0)")
        for k in range(3):
            for u in range(4):
                a("ds_read_b64_tr_b16 %s, v7 offset:%d" % (vr(36 + 8 * k + 2 * u, 2), (64 * k + 32 * (u // 2) + 2 * (u % 2)) * 32))
        hl = ["buffer_load_dwordx4 %s, v5, %s, s%d offen offset:%d sc1" % (vr(12 + 4 * k, 4), sr(R_WS, 4), sT2, 128 * k) for k in range(3)]
        a.poll(hl, range(12, 24), 28, shadow=lambda: a("s_waitcnt lgkmcnt(0)"))
        a.stamp("h_in%d" % l)
        for k in range(3): a("v_smfmac_f32_16x16x64_bf16 v[24:27], %s, %s, v%d" % (vr(12 + 4 * k, 4), vr(36 + 8 * k, 8), vIDX))
        a("v_add_f32 v24, v24, v26"); a("v_min_u32 v24, -2, v24")
        a.exec_(0xffff)
        a("buffer_store_dword v24, v6, %s, s%d offen sc1" % (sr(R_WS, 4), sT3))
        a.stamp("xp_pub%d" % (2 * l + 1))
        sk = a.skip_unless("eq", "s%d" % sW, 6)
        a.canary_store(2 * l + 1)
        a(sk + ":")
        a.exec_(-1)
    def p4a(self, l):
        a = self
        sk = a.skip_unless("lt", "s%d" % sW, 5)
        if l == 0: a("s_waitcnt vmcnt(0)")
        a.ln_prefetch(2, a.LD_WL, 32); a.gather_addr()
        a.canary_poll(2 * l)
        a.stamp("can%d" % (2 * l))
        a.gather(2 * l)
        a.stamp("xp_in%d" % (2 * l))
        a.ln_front(2)
        a(sk + ":")
        sk = a.skip_unless("eq", "s%d" % sW, 5)
        a.ln_final_addr()
        a("s_sub_u32 s%d, s%d, 20" % (sT2, sC)); a("s_lshl_b32 s%d, s%d, 5" % (sT2, sT2)); a("s_add_u32 s%d, s%d, s%d" % (sT2, sT2, sLOC))
        a("s_add_u32 s%d, s%d, %d" % (sT2, sT2, L_H + 384 * l))
        a("v_lshlrev_b32 v11, 1, v%d" % vL)
        k2 = -2.0 * math.log2(math.e) * math.sqrt(2.0 / math.pi)
        a("v_mov_b32 v18, %s" % f32(k2)); a("v_mov_b32 v19, %s" % f32(k2 * 0.044715))
        a(sk + ":")
        a("s_barrier")
        sk = a.skip_unless("eq", "s%d" % sW, 5)
        a.ln_final()
        a("v_add_f32 v12, v12, v%d" % vB)
        a("v_mul_f32 v13, v12, v12"); a("v_fma_f32 v13, v13, v19, v18"); a("v_mul_f32 v13, v13, v12")
        a("v_exp_f32 v13, v13"); a("v_add_f32 v13, 1.0, v13"); a("v_rcp_f32 v13, v13"); a("v_mul_f32 v12, v12, v13")
        a.pack_pairs(); a.exec_(0x5555)
        a.local_store("buffer_store_dword v12, v11, %s, s%d offen" % (sr(R_WS, 4), sT2))
        a.stamp("h_pub%d" % l)
        a.exec_(-1)
        a(sk + ":")

    def build(self):
        a = self; NS = a.NS; o = a.o
        a.stamp("start")
        a("s_load_dwordx16 s[4:19], s[0:1], 0"); a("s_load_dwordx8 s[20:27], s[0:1], 64"); a("s_load_dwordx2 s[28:29], s[0:1], 96")
        a("s_cmp_ge_u32 s2, 256"); a("s_cbranch_scc1 L_exit")
        a("v_lshrrev_b32 v5, 6, v0"); a("v_and_b32 v0, 63, v0"); a("v_readfirstlane_b32 s%d, v5" % sW)
        a("s_and_b32 s%d, s2, 7" % sX); a("s_lshr_b32 s%d, s2, 3" % sC); a("s_and_b32 s%d, s%d, 3" % (sHL, sC)); a("s_lshr_b32 s%d, s%d, 2" % (sJ, sC))
        a.lanefn(8, [(5, 1, 4), (4, 1, 1)], 60); a("v_and_b32 v9, 7, v0"); a("v_xor_b32 v8, v8, v9")
        a.lanefn(10, [(3, 3, 384)], 60); a("v_lshl_add_u32 v5, v8, 4, v10"); a("v_xor_b32 v6, 32, v5")
        a.lanefn(8, [(4, 2, 2)], 60); a("v_xor_b32 v8, v8, v9"); a("v_lshl_add_u32 v7, v8, 4, v10")
        a("s_lshl_b32 s%d, s%d, 2" % (sT0, sX)); a("s_add_u32 s%d, s%d, s%d" % (sT0, sT0, sHL)); a("s_mul_i32 s%d, s%d, 12582912" % (sT0, sT0))
        a("s_lshl_b32 s%d, s%d, 3" % (sT1, sJ)); a("s_add_u32 s%d, s%d, s%d" % (sT1, sT1, sW)); a("s_mul_i32 s%d, s%d, 3072" % (sT1, sT1))
        a("s_add_u32 s%d, s%d, s%d" % (sT0, sT0, sT1)); a("s_add_u32 s%d, s%d, 11010048" % (sT0, sT0))
        a("s_sub_u32 s%d, 1572864, s%d" % (sT1, sT1))
        a("s_mul_i32 s%d, s%d, %d" % (sRING, sW, NS * 2048)); a("s_add_u32 s%d, s%d, %d" % (sRING, sRING, a.LD_RING))
        a("s_lshl_b32 s%d, s%d, 15" % (sLOC, sX))
        a("s_mov_b32 s%d, 0x40000" % sBUD); a("s_mov_b32 s%d, 0" % sFLAG)
        a("s_getreg_b32 s%d, hwreg(20, 0, 3)" % sXCC)
        for r in (11, 14, 63): a("v_mov_b32 v%d, 0" % r)
        a("s_waitcnt lgkmcnt(0)")
        a.srd(R_K, P_K, "s%d" % sT1, off=sT0); a.srd(R_V, P_V, "s%d" % sT1, off=sT0); a.srd(R_WS, P_WS, WS_BYTES)
        sk = a.skip_unless("eq", "s%d" % sW, 5)
        for r in range(12, 16): a("v_mov_b32 v%d, -1" % r)
        a("v_lshlrev_b32 v10, 4, v0")
        a("s_lshl_b32 s%d, s%d, 10" % (sT0, sC)); a("s_add_u32 s%d, s%d, s%d" % (sT0, sT0, sLOC))
        a("buffer_store_dwordx4 v[12:15], v10, %s, s%d offen sc1" % (sr(R_WS, 4), sT0))
        a("s_mul_i32 s%d, s2, 320" % sT0); a("s_add_u32 s%d, s%d, %d" % (sT0, sT0, XP))
        a.exec_((1 << 20) - 1)
        a("buffer_store_dwordx4 v[12:15], v10, %s, s%d offen sc1" % (sr(R_WS, 4), sT0))
        a.exec_(-1)
        a.q_store_addr(11); a.q_base(0, sT2)
        a.exec_(a.QMASK)
        a("buffer_store_dword v12, v11, %s, s%d offen sc1" % (sr(R_WS, 4), sT2))
        a.exec_(-1)
        a(sk + ":")
        for s in range(NS): a.dma_slot(s)
        a.lanefn(8, [(1, 3, 1)], 60); a("v_lshrrev_b32 v9, 4, v0"); a("v_xor_b32 v9, v8, v9")
        a.lanefn(8, [(2, 1, 1024), (3, 1, 512), (0, 2, 128)], 60, s=sRING); a("v_lshl_add_u32 v8, v9, 4, v8"); a("v_xor_b32 v9, 64, v8")
        a.lanefn(vIDX, [(1, 1, 0xAAAA)], 60, const=0x4444)
        sk = a.skip_unless("lt", "s%d" % sW, 5)
        a.srd(R_WQ, P_WQ, 640 * 12288)
        a("s_lshl_b32 s%d, s%d, 2" % (sT2, sX)); a("s_add_u32 s%d, s%d, s%d" % (sT2, sT2, sHL)); a("s_mul_i32 s%d, s%d, 384" % (sT2, sT2))
        a("s_mul_i32 s%d, s%d, 48" % (sT3, sJ)); a("s_add_u32 s%d, s%d, s%d" % (sT2, sT2, sT3))
        a("s_mul_i32 s%d, s%d, %d" % (sT3, sW, 128 * 12288)); a("s_add_u32 s%d, s%d, s%d" % (sT2, sT2, sT3))
        a("s_add_u32 s%d, s%d, %d" % (sT3, sT2, 64 * 12288 - 3072))
        a("s_mul_i32 s%d, s%d, 6144" % (sT0, sW))
        for m in range(3):
            a("v_add_u32 v12, %d, v0" % (64 * m)); a("v_mul_u32_u24 v13, 0xAAAB, v12"); a("v_lshrrev_b32 v13, 17, v13")
            a("v_mul_u32_u24 v14, %d, v13" % (12288 - 48)); a("v_lshl_add_u32 v14, v12, 4, v14")
            a("s_add_u32 m0, s%d, %d" % (sT0, a.LD_WQ + 1024 * m))
            a("buffer_load_dwordx4 v14, %s, s%d offen nt lds" % (sr(R_WQ, 4), sT2))
            a("buffer_load_dwordx4 v14, %s, s%d offen offset:3072 nt lds" % (sr(R_WQ, 4), sT3))
        a("s_lshl_b32 s%d, s%d, 8" % (sT0, sW))
        a.lanefn(12, [(0, 5, 8), (5, 1, 4)], 60, s=sT0)
        a("global_load_dword v28, v12, %s" % sr(P_X, 2)); a("global_load_dword v%d, v12, %s" % (vB, sr(P_B2, 2)))
        a(sk + ":")
        sk = a.skip_unless("eq", "s%d" % sW, 5)
        a("s_lshl_b32 s%d, s%d, 3" % (sT0, sXCC)); a("s_lshl_b64 %s, 1, s%d" % (sr(sM0, 2), sT0))
        a("v_mov_b32 v12, s%d" % sM0); a("v_mov_b32 v13, s%d" % (sM0 + 1))
        a("s_lshl_b32 s%d, s%d, 3" % (sT0, sX)); a("v_mov_b32 v14, s%d" % sT0)
        a("s_waitcnt vmcnt(%d)" % (2 * NS))
        a.exec_(1)
        a("global_atomic_add_x2 v14, v[12:13], %s sc1" % sr(P_DBG, 2))
        a.exec_(-1)
        a("s_max_u32 s%d, s%d, 20" % (sT0, sC)); a("s_sub_u32 s%d, s%d, 20" % (sT0, sT0)); a("s_lshl_b32 s%d, s%d, 5" % (sT0, sT0))
        a("s_mul_i32 s%d, s%d, 384" % (sT1, sX)); a("s_add_u32 s%d, s%d, s%d" % (sT0, sT0, sT1))
        a.lanefn(12, [(0, 4, 2)], 60, s=sT0)
        a("global_load_ushort v%d, v12, %s" % (vB, sr(P_B1, 2)))
        a.ln_final_addr()
        a(sk + ":")

        cnt_ld = "global_load_dwordx2 v[12:13], v14, %s sc1" % sr(P_DBG, 2)
        s_p1, s_cnt = NS, 2 * NS + 1
        s_qk = max(12, s_cnt + NS + 1)
        qld = None
        for s in range(21):
            if s == 12:
                a.lanefn(8, [(2, 4, 128), (3, 2, 32), (0, 2, 8)], 60, s=sRING)
                for tt in (1, 2, 3): a("v_xor_b32 v%d, %d, v8" % (8 + tt, 32 * tt))
            a.step(s)
            if s == s_p1:
                sk = a.skip_unless("lt", "s%d" % sW, 5)
                a.ln_prefetch(3, a.LD_WQ, 48); a.ln_front(3)
                a(sk + ":")
                a("s_barrier")
                sk = a.skip_unless("eq", "s%d" % sW, 5)
                a.q_base(0, sT2); a.q_final(0)
                a("v_lshlrev_b32 v%d, 16, v%d" % (vB, vB))
                a.lanefn(14, [(0, 3, 8)], 60); a(cnt_ld)
                a.stamp("q0_pub")
                a(sk + ":")
            if s == s_cnt:
                sk = a.skip_unless("eq", "s%d" % sW, 5)
                w = a.lab("L_cw"); r = a.lab("L_cr")
                a(w + ":")
                a("v_sad_u8 v15, v12, 0, 0"); a("v_sad_u8 v15, v13, 0, v15"); a("v_cmp_ne_u32 vcc, 32, v15")
                a("s_cbranch_vccnz " + r)
                a.ool += [r + ":"] + a.budget() + [cnt_ld, "s_waitcnt vmcnt(0)", "s_branch " + w]
                a("v_readlane_b32 s%d, v12, s%d" % (sM1, sX)); a("v_readlane_b32 s%d, v13, s%d" % (sM1 + 1, sX))
                a("s_lshl_b64 %s, %s, 5" % (sr(sM0, 2), sr(sM0, 2)))
                a("s_cmp_eq_u64 %s, %s" % (sr(sM0, 2), sr(sM1, 2)))
                a("s_cselect_b32 s%d, %d, 0" % (sT0, 0 if o["force_global"] else 1))
                a("v_mov_b32 v12, s%d" % sT0); a("v_mov_b32 v13, %d" % a.LD_FLAG); a("ds_write_b32 v13, v12"); a("s_waitcnt lgkmcnt(0)")
                a(sk + ":")
                a("s_barrier")
                a("v_mov_b32 v13, %d" % a.LD_FLAG); a("ds_read_b32 v24, v13")
                qld = a.q_loads(0, addr=63)
                for x in qld: a(x); a.vm.append("q")
                a("s_waitcnt lgkmcnt(0)"); a("v_readfirstlane_b32 s%d, v24" % sFLAG)
                a.stamp("cnt_ok")
            if s == s_qk:
                assert "q" not in a.vm
                a.poll(qld, range(12, 24), 24, issued=True, first_wait=None)
                a.zero_d(); a.ml_addr(); a.qk_softmax()
                hi, red = a.side_ops()
                for x in hi + red: a(x)
                a("ds_write_b64 v6, v[20:21]"); a("s_waitcnt lgkmcnt(0)"); a("s_barrier")
                sk = a.skip_unless("lt", "s%d" % sW, 2)
                a.ml_calc(0); a.combine_addr(0)
                a(sk + ":")
                a.oc_addr()
                a.stamp("qk0")
            if s == o["warm"] and o["pads"]:
                sk = a.skip_unless("eq", "s%d" % sW, 6)
                a("s_mov_b64 exec, 0"); a("s_cbranch_execz L_pad0"); a("L_padback:"); a("s_mov_b64 exec, -1")
                a(sk + ":")
            if s == o["preread"]:
                sk = a.skip_unless("eq", "s%d" % sW, 7)
                a("s_lshl_b32 s%d, s%d, 10" % (sT0, sC)); a("s_add_u32 s%d, s%d, s%d" % (sT0, sT0, sLOC))
                a("v_lshlrev_b32 v37, 4, v0")
                a("buffer_load_dword v37, v37, %s, s%d offen sc1" % (sr(R_WS, 4), sT0))
                a(sk + ":")
            if s == 23 - NS:
                lb = a.lab("L_wb"); le = a.lab("L_we")
                a("s_mul_i32 s%d, s%d, 6144" % (sT2, sW)); a("s_add_u32 s%d, s%d, %d" % (sT2, sT2, a.LD_WL))
                a("s_cmp_lt_u32 s%d, 20" % sC); a("s_cbranch_scc0 " + lb)
                a.srd(R_WL, P_WO, 6144 * 1280)
                a("s_mul_i32 s%d, s%d, 768" % (sT0, sX)); a("s_mul_i32 s%d, s%d, 96" % (sT1, sW)); a("s_add_u32 s%d, s%d, s%d" % (sT0, sT0, sT1))
                a("s_mul_i32 s%d, s%d, 1280" % (sT0, sT0)); a("s_lshl_b32 s%d, s%d, 6" % (sT1, sC)); a("s_add_u32 s%d, s%d, s%d" % (sT0, sT0, sT1))
                a.lanefn(38, [(4, 1, 2)], 39); a("v_xor_b32 v38, v38, v0"); a("v_and_b32 v38, 3, v38")
                a.lanefn(7, [(5, 1, 8 * 1280), (4, 1, 2 * 1280), (3, 1, 4 * 1280), (2, 1, 16 * 1280)], 39, s=sT0); a("v_lshl_add_u32 v7, v38, 4, v7")
                for m in range(6):
                    a("s_add_u32 m0, s%d, %d" % (sT2, 1024 * m)); a("s_mov_b32 s%d, %d" % (sT0, (32 * (m // 2) + m % 2) * 1280))
                    a("buffer_load_dwordx4 v7, %s, s%d offen nt lds" % (sr(R_WL, 4), sT0)); a.vm.append("wl")
                a("s_branch " + le)
                a(lb + ":")
                a.srd(R_WL, P_W1, 640 * 3072)
                a("s_mul_i32 s%d, s%d, 384" % (sT0, sX)); a("s_sub_u32 s%d, s%d, 20" % (sT1, sC)); a("s_lshl_b32 s%d, s%d, 5" % (sT1, sT1)); a("s_add_u32 s%d, s%d, s%d" % (sT0, sT0, sT1))
                a("s_mul_i32 s%d, s%d, %d" % (sT1, sW, 128 * 3072)); a("s_add_u32 s%d, s%d, s%d" % (sT0, sT0, sT1))
                a.lanefn(7, [(1, 5, 3072), (0, 1, 16)], 39, s=sT0)
                a("v_mov_b32 v38, 0x7ffffff0")
                for m in range(6):
                    a("s_add_u32 m0, s%d, %d" % (sT2, 1024 * m)); a("s_mov_b32 s%d, %d" % (sT0, m * 32 * 3072 if m < 4 else 0))
                    a("buffer_load_dwordx4 v%d, %s, s%d offen nt lds" % (7 if m < 4 else 38, sr(R_WL, 4), sT0))
                a(le + ":")
        a("s_branch L_tail")
        a(".p2align 10")
        a("L_tail:")
        for s in (21, 22, 23):
            a.step(s)
            if s == 23: a.stamp("v_in")
            seg = s - 21
            for T in range(4 * seg, 4 * seg + 4): a.pv(T)
            a.pv_ext(2 * seg); a.pv_ext(2 * seg + 1)
        a.exec_(0xffff)
        for tq in range(3): a.oc_write(tq)
        a.exec_(-1)
        for l in (0, 1):
            a("s_waitcnt lgkmcnt(0)")
            a("L_b2_%d:" % l)
            a("s_barrier")
            sk = a.skip_unless("lt", "s%d" % sW, 2)
            a.combine()
            a.stamp("o_pub%d" % l)
            a(sk + ":")
            tb = "L_typeB_%d" % l
            a("s_cmp_lt_u32 s%d, 20" % sC); a("s_cbranch_scc0 " + tb)
            a.p3(l)
            a("s_sub_u32 s%d, s%d, 5" % (sT0, sW))
            sk = a.skip_unless("lt", "s%d" % sT0, 2)
            a.p4b(l)
            a(sk + ":")
            if l == 1:
                a("s_branch L_done")
            else:
                sk = a.skip_unless("lt", "s%d" % sW, 5)
                a.ln_prefetch(3, a.LD_WQ, 48); a.gather_addr()
                a(sk + ":")
                a("s_barrier")
                a("s_cmp_lt_u32 s%d, 5" % sW); a("s_cbranch_scc0 L_p1_skip")
                a.gather(0); a.unpack_x(); a.add_b2()
                a("s_branch L_p1")
            a(tb + ":")
            a.p4a(l)
            if l == 1:
                a("s_sub_u32 s%d, s%d, 20" % (sT0, sC)); a("s_cmp_eq_u32 s%d, s%d" % (sT0, sW)); a("s_cbranch_scc0 L_done")
                a("s_cmp_lt_u32 s%d, 5" % sW); a("s_cbranch_scc0 L_done")
                a("s_cmp_eq_u32 s%d, 0" % sX); a("s_cbranch_scc0 L_done")
                a.add_b2()
                a("s_lshl_b32 s%d, s%d, 8" % (sT0, sW))
                a.lanefn(7, [(0, 5, 8), (5, 1, 4)], 60, s=sT0)
                a.canary_poll(3)
                a.stamp("can3")
                a.gather(3)
                a("global_store_dword v7, v28, %s" % sr(P_OUT, 2))
                a.stamp("out")
                a("s_branch L_done")
                break
            a("s_cmp_lt_u32 s%d, 5" % sW); a("s_cbranch_scc0 L_p1_skip")
            a.ln_prefetch(3, a.LD_WQ, 48); a.add_b2()
            a.canary_poll(1)
            a.stamp("can1")
            a("L_p1:")
            a.gather(1)
            a.stamp("xp_in1")
            a.ln_front(3)
            a("L_p1_skip:")
            sk = a.skip_unless("eq", "s%d" % sW, 5)
            a.ln_final_addr(); a.q_store_addr(11); a.q_base(1, sT2)
            a(sk + ":")
            a("s_barrier")
            sk = a.skip_unless("eq", "s%d" % sW, 5)
            a.q_final(1)
            a.stamp("q1_pub")
            a(sk + ":")
            qld = a.q_loads(1)
            def sh(): a.zero_d(); a.ml_addr()
            a.poll(qld, range(12, 24), 7, shadow=sh)
            a.stamp("q1_in")
            a.qk_softmax()
            hi, red = a.side_ops()
            side = hi + red + ["ds_write_b64 v6, v[20:21]"]
            order = [0, 2, 4, 6, 8, 10, 1, 3, 5, 7, 9, 11]
            for n, T in enumerate(order):
                a.pv(T)
                for _ in range(2):
                    if side: a(side.pop(0))
                if n == 7: a.oc_addr()
                if n == 9:
                    sk = a.skip_unless("ge", "s%d" % sW, 4)
                    a("s_waitcnt lgkmcnt(0)"); a("s_barrier")
                    a(sk + ":")
            assert not side
            for m in range(6): a.pv_ext(m)
            a.exec_(0xffff)
            for tq in range(3): a.oc_write(tq)
            a.exec_(-1)
            a.stamp("pv1")
            a("s_cmp_lt_u32 s%d, 4" % sW); a("s_cbranch_scc1 L_old")
            keep = a.L; a.L = []
            a("L_old:")
            a("s_waitcnt lgkmcnt(0)"); a("s_barrier")
            a("s_cmp_lt_u32 s%d, 2" % sW); a("s_cbranch_scc0 L_b2_1")
            a.ml_calc(1); a.combine_addr(1)
            a("s_branch L_b2_1")
            old = a.L; a.L = keep; a.ool += old
        for x in a.ool: a(x)
        a("L_tail_end:")
        a("L_done:")
        if o["stamps"]:
            n = len(o["stamps"])
            a("s_mov_b64 exec, -1"); a("s_waitcnt lgkmcnt(0)")
            for i in range(n): a("v_writelane_b32 v12, s%d, %d" % (sST + 2 * i, i))
            a("v_writelane_b32 v12, s%d, 14" % sBUD); a("v_writelane_b32 v12, s%d, 15" % sFLAG)
            a("s_lshl_b32 s%d, s2, 3" % sT0); a("s_add_u32 s%d, s%d, s%d" % (sT0, sT0, sW)); a("s_lshl_b32 s%d, s%d, 6" % (sT0, sT0))
            a("s_add_u32 s%d, s%d, %d" % (sT0, sT0, STAMP_OFF))
            a.lanefn(13, [(0, 6, 4)], 60, s=sT0)
            a.exec_(0xffff)
            a("global_store_dword v13, v12, %s" % sr(P_WS, 2))
        a("L_exit:")
        a("s_endpgm")
        L = a.L
        if o["stamps"]:
            pre = ["s_mov_b64 %s, 0" % sr(sST + 2 * i, 2) for i in range(len(o["stamps"]))]
            L = pre + L
        if o["pads"]:
            L0 = [x.replace("L_pad0", "L_padback") for x in L]
            L1, nops = fix_hazards(L0)
            L1, npad, tb = insert_pads(L1, "L_tail", "L_tail_end", "L_padback", o["padstep"])
            k = L1.index("s_cbranch_execz L_padback"); L1[k] = "s_cbranch_execz L_pad0"
            L = L1; self.info = (nops, npad, tb)
        else:
            L, nops = fix_hazards(L); self.info = (nops, 0, 0)
        return L

def render(name=NAME + "_kernel", **kw):
    g = G(**kw); L = g.build()
    ref = open("cdna_kernels/%s.s.ref" % NAME).read().split("\n") if name.startswith(NAME) else []
    head = [x for x in ref if x.startswith(";") and "@launch" not in x and "Override" not in x and "grid=ceil" not in x]
    out = head + ["; Generated by gen/gen.py (hand-written generator): one persistent launch, K/V held in registers across both layers.",
                  "; @launch grid=(256,1,1) block=(512,1,1) lds=%d" % g.LDS,
                  '.amdgcn_target "amdgcn-amd-amdhsa--gfx950"', ".text", ".globl " + name, ".p2align 8", ".type %s,@function" % name, name + ":"]
    out += [x if x.endswith(":") or x.startswith(".") else "    " + x for x in L]
    out += ['.section .rodata,"a"', ".p2align 6", ".amdhsa_kernel " + name, "  .amdhsa_next_free_vgpr 256", "  .amdhsa_next_free_sgpr 102",
            "  .amdhsa_accum_offset 256", "  .amdhsa_group_segment_fixed_size 0", "  .amdhsa_kernarg_size 104", "  .amdhsa_user_sgpr_count 2",
            "  .amdhsa_user_sgpr_kernarg_segment_ptr 1", "  .amdhsa_system_sgpr_workgroup_id_x 1", "  .amdhsa_float_denorm_mode_32 3", ".end_amdhsa_kernel"]
    return "\n".join(out) + "\n", g

if __name__ == "__main__":
    kw = {}
    path = "cdna_kernels/%s.s" % NAME
    for x in sys.argv[1:]:
        k, v = x.split("=")
        if k == "out": path = v
        else: kw[k] = int(v)
    txt, g = render(**kw)
    open(path, "w").write(txt)
    print("wrote", path, "lds", g.LDS, "nops/pads/tailbytes", g.info)
```

```python
import sys, math, struct
from asmlib import *

NAME = "interleave_layers__sliding_block_cached__dense_activation_gelu__decode"

def f32(x): return "0x%08x" % struct.unpack("<I", struct.pack("<f", x))[0]

DEF = dict(R=4, stamps=None, force_global=0, pads=1, padstep=512, l2warm=1, budget=0x10000, diag_hold=0, diag_x=-1, strip=0,
           W=28, Wb=30, Wr=34, burst_from=99, prio=3, ilv=1,
           qpos=(1, 2),
           wl0=3, nwl=20,
           go_s=0, go_i=3, arr_s=6, ga_i=8, ga_c=10, arr_c=12, q_c=15, warm=3, preread=19,
           wqf='nt', wlf='nt', qf='sc1 nt', pref='sc1 nt')

LOC = 83968
CLR = 1792
L_O, L_Q1, L_H, L_CS1, L_ST1, L_STH, L_LSE, L_CAN = 0, 24576, 36864, 49152, 55296, 55552, 55808, 56064
L_Q0 = 32 * CLR; Q0S = 6400
LOC_B = 8 * LOC
XP = 16 * LOC; XPS = 20480
ARR = XP + 4 * XPS
WS_BYTES = ARR + 8 * 256
STAMP_OFF = 2 << 20
P_X, P_K, P_V, P_WQ, P_WO, P_W1, P_B1, P_W2, P_B2, P_OUT, P_DBG, P_WS = 4, 6, 8, 10, 12, 16, 18, 20, 22, 24, 26, 28
sW, sX = 30, 31
R_K, R_V, R_WS, R_WQ, R_WL = 32, 36, 40, 44, 48
sC, sHL, sJ, sFLAG, sBUD, sT0, sT1, sT2, sT3, sRING, sLOC, sXCC = 52, 53, 54, 55, 56, 57, 58, 59, 60, 61, 62, 63
sF = 64
sARR, sH, sM1 = 72, 73, 74
sST = 76
sWA, sWB, sAI = 14, 15, 3
LOADER, CTRL, QFETCH = 6, 5, 4
vL, vIDX, vX0, vX1, vB, vKC = 0, 1, 2, 3, 4, 6
KB, VB = 64, 160
ONES = "0x3f803f80"

class G:
    def __init__(self, **kw):
        self.o = dict(DEF); self.o.update(kw)
        self.L = []; self.ool = []; self.cold = []; self.n = 0; self.vm = []; self.stampn = []
        R = self.R = self.o["R"]
        self.LD_WQ = 0; self.LD_WL = 30720; self.LD_W2 = self.LD_WL + 49152
        self.LD_RING = self.LD_W2 + 12288; self.LD_PP = self.LD_RING + R * 16384
        self.LD_ML = self.LD_PP + 2048; self.LD_FLAG = self.LD_ML + 64; self.LD_XB = self.LD_FLAG + 64; self.LDS = self.LD_XB + 384
        assert self.LDS <= 163840
    def __call__(self, s): self.L.append(s)
    def lab(self, p="L"):
        self.n += 1; return "%s_%d" % (p, self.n)
    def stamp(self, name):
        st = self.o["stamps"]
        if st and name in st:
            i = st.index(name); self("s_memrealtime %s" % sr(sST + 2 * i, 2))
        if st and "c_" + name in st:
            i = st.index("c_" + name); self("s_memtime %s" % sr(sST + 2 * i, 2))
    def lanefn(self, dst, terms, tmp, s=None, const=0, src=vL):
        a = self; first = True
        for sh, nb, mul in terms:
            t = dst if first else tmp
            p2 = mul & (mul - 1) == 0
            if nb >= 6 - sh and src == vL:
                if sh: a("v_lshrrev_b32 v%d, %d, v%d" % (t, sh, src)); x = t
                else: x = src
            elif sh == 0: a("v_and_b32 v%d, %d, v%d" % (t, (1 << nb) - 1, src)); x = t
            else: a("v_bfe_u32 v%d, v%d, %d, %d" % (t, src, sh, nb)); x = t
            if first:
                if p2:
                    if mul > 1 or x != dst: a("v_lshlrev_b32 v%d, %d, v%d" % (dst, mul.bit_length() - 1, x))
                else: a("v_mul_u32_u24 v%d, %d, v%d" % (dst, mul, x))
            elif p2: a("v_lshl_add_u32 v%d, v%d, %d, v%d" % (dst, x, mul.bit_length() - 1, dst))
            else:
                a("v_mul_u32_u24 v%d, %d, v%d" % (tmp, mul, x)); a("v_add_u32 v%d, v%d, v%d" % (dst, tmp, dst))
            first = False
        if s is not None: a("v_add_u32 v%d, s%d, v%d" % (dst, s, dst))
        if const: a("v_add_u32 v%d, %d, v%d" % (dst, const, dst))
    def srd(self, r, p, nbytes, off=None):
        a = self
        if off is None: a("s_mov_b32 s%d, s%d" % (r, p)); a("s_mov_b32 s%d, s%d" % (r + 1, p + 1))
        else: a("s_add_u32 s%d, s%d, s%d" % (r, p, off)); a("s_addc_u32 s%d, s%d, 0" % (r + 1, p + 1))
        a("s_mov_b32 s%d, %s" % (r + 2, nbytes)); a("s_mov_b32 s%d, 0x20000" % (r + 3))
    def skip_unless(self, cmp, a_, b_):
        l = self.lab("L_skip"); self("s_cmp_%s_u32 %s, %s" % (cmp, a_, b_)); self("s_cbranch_scc0 " + l); return l
    def exec_(self, m):
        if m == -1: self("s_mov_b64 exec, -1")
        elif m < (1 << 31): self("s_mov_b64 exec, 0x%x" % m)
        else: self("s_mov_b32 exec_lo, 0x%x" % (m & 0xffffffff)); self("s_mov_b32 exec_hi, 0x%x" % (m >> 32))
    def local_store(self, ins):
        a = self; l = a.lab("L_gs"); b = a.lab("L_gb")
        a("s_cmp_eq_u32 s%d, 0" % sFLAG); a("s_cbranch_scc1 " + l); a(ins); a(b + ":")
        a.ool += [l + ":", ins + " sc1", "s_branch " + b]
    def budget(self):
        return ["s_sub_u32 s%d, s%d, 1" % (sBUD, sBUD), "s_cbranch_scc1 L_done"]
    def check(self, rs, t):
        a = self; rs = list(rs)
        if len(rs) == 1: a("v_cmp_eq_u32 vcc, -1, v%d" % rs[0]); return
        if len(rs) == 2: a("v_max_u32 v%d, v%d, v%d" % (t, rs[0], rs[1])); rs = []
        else: a("v_max3_u32 v%d, v%d, v%d, v%d" % (t, rs[0], rs[1], rs[2])); rs = rs[3:]
        while len(rs) >= 2: a("v_max3_u32 v%d, v%d, v%d, v%d" % (t, t, rs[0], rs[1])); rs = rs[2:]
        if rs: a("v_max_u32 v%d, v%d, v%d" % (t, t, rs[0]))
        a("v_cmp_eq_u32 vcc, -1, v%d" % t)
    def poll(self, loads, rs, t, shadow=None, issued=False, first_wait=0):
        a = self; w = a.lab("L_pw"); r = a.lab("L_pr")
        if not issued:
            for x in loads: a(x)
        if shadow: shadow()
        if first_wait is not None: a("s_waitcnt vmcnt(%d)" % first_wait)
        a(w + ":")
        a.check(rs, t)
        a("s_cbranch_vccnz " + r)
        a.ool += [r + ":"] + a.budget() + list(loads) + ["s_waitcnt vmcnt(0)", "s_branch " + w]

    def dma_loop(self, n, lds, R, vo, so, step, flags, pace):
        a = self; k = len(so); l = a.lab("L_dma")
        for i, x in enumerate(so):
            if isinstance(x, int): a("s_mov_b32 s%d, %d" % (sT0 + i, x - 1024 * i))
            else: x(sT0 + i)
        a("s_mov_b32 m0, %d" % lds)
        a(l + ":")
        for i in range(k):
            if pace: a("s_waitcnt vmcnt(%d)" % (pace - 1))
            a("buffer_load_dwordx4 v%d, %s, s%d offen offset:%d %s lds" % (vo[i], sr(R, 4), sT0 + i, 1024 * i, flags))
        for i in range(k): a("s_add_u32 s%d, s%d, %s" % (sT0 + i, sT0 + i, step))
        a("s_add_u32 m0, m0, %d" % (1024 * k))
        a("s_cmp_lg_u32 m0, %d" % (lds + 1024 * k * n)); a("s_cbranch_scc1 " + l)
    def block(self, b, pace):
        a = self; o = a.o
        if isinstance(b, int):
            seg = b % 3
            if b < 12: gA = b // 3; runs = [4 * (gA // 2) + 2 * (gA % 2) + i for i in (0, 1)]; vo = (5, 6); R = R_K
            else: u = (b - 12) // 3; runs = [4 * (u // 2) + 2 * i + u % 2 for i in (0, 1)]; vo = (7, 7); R = R_V
            a.dma_loop(8, a.LD_RING + (b % a.R) * 16384, R, vo, [r * 196608 + seg * 128 for r in runs], "24576" if o["ilv"] else "3072", "nt", pace)
        elif b[0] == "q":
            n = int(b[1])
            a.dma_loop(5, a.LD_WQ + n * 15360, R_WQ, (vX0,) * 3, [n * 5 * 98304 + 128 * i + 2048 for i in range(3)], "98304", o["wqf"], pace)
        elif b[0] == "w":
            n = int(b[1:])
            a("s_mul_i32 s%d, s%d, %d" % (sT0, sWA, n // 2))
            if n % 2: a("s_add_u32 s%d, s%d, s%d" % (sT0, sT0, sWB))
            a("s_mov_b32 m0, %d" % (a.LD_WL + (n & ~1) * 1024))
            if pace: a("s_waitcnt vmcnt(%d)" % (pace - 1))
            a("buffer_load_dwordx4 v%d, %s, s%d offen offset:%d %s lds" % (vX1, sr(R_WL, 4), sT0, 1024 * (n % 2), o["wlf"]))
        else:
            n0 = o["nwl"] // 2; h = (24 - n0 + 1) // 2; n, cnt = (n0, h) if b == "r0" else (n0 + h, 24 - n0 - h)
            if pace: pace = max(pace, o["Wr"])
            f0 = lambda d: a("s_mul_i32 s%d, s%d, %d" % (d, sWA, n))
            f1 = lambda d: a("s_add_u32 s%d, s%d, s%d" % (d, sT0, sWB))
            a.dma_loop(cnt, a.LD_WL + n * 2048, R_WL, (vX1, vX1), [f0, f1], "s%d" % sWA, o["wlf"], pace)
    def reads(self, s):
        a = self; seg = s % 3; slot = (s % a.R) * 16384
        if s < 12:
            d = KB + 24 * (s // 3) + 8 * seg
            a("ds_read_b128 %s, v8 offset:%d" % (vr(d, 4), slot)); a("ds_read_b128 %s, v9 offset:%d" % (vr(d + 4, 4), slot))
        else:
            u = (s - 12) // 3
            for tt in range(4):
                a("ds_read_b64_tr_b16 %s, v%d offset:%d" % (vr(VB + 8 * (4 * seg + tt) + 2 * u, 2), 8 + tt, slot))
    def plan(self):
        o = self.o; order = []
        qp = list(o["qpos"]); nwl = o["nwl"]; assert nwl % 2 == 0
        per = -(-nwl // (23 - o["wl0"])) if nwl > 0 else 1
        for s in range(-1, 24):
            if s >= 0: order.append(s)
            order += ["q%d" % i for i, p in enumerate(qp) if p == s] + ["w%d" % i for i in range(nwl) if o["wl0"] + i // per == s]
        if 0 <= nwl < 46: order += ["r0", "r1"]
        h = (24 - nwl // 2 + 1) // 2
        size = lambda b: 16 if isinstance(b, int) else {"q": 15, "w": 1, "r": 2 * h if b == "r0" else 48 - nwl - 2 * h}[b[0]]
        upto = []; k = 0
        for s in range(24):
            p = order.index(s); k = max(k, p + 1)
            while k < len(order) and sum(map(size, order[p + 1:k])) < o["Wb"]:
                if isinstance(order[k], int) and order[k] - self.R + 1 > s - 1 and order[k] >= self.R: break
                k += 1
            upto.append(k)
        wait = [sum(map(size, order[order.index(s) + 1:upto[s]])) for s in range(24)]
        return order, upto, wait

    def gather(self, ph):
        a = self; w = a.lab("L_gw"); r = a.lab("L_gr"); ok = a.lab("L_gk")
        ld = []
        for n in range(4):
            a("s_mov_b32 s%d, %d" % (sT0 + n, XP + ph * XPS + n * 5120))
            ld.append("buffer_load_dwordx4 %s, v5, %s, s%d offen sc1" % (vr(12 + 4 * n, 4), sr(R_WS, 4), sT0 + n)); a(ld[-1])
        a(w + ":")
        a("s_waitcnt vmcnt(2)")
        a("v_pk_add_f32 v[28:29], v[12:13], v[16:17]"); a("v_pk_add_f32 v[30:31], v[14:15], v[18:19]")
        a("s_waitcnt vmcnt(1)")
        a("v_pk_add_f32 v[28:29], v[28:29], v[20:21]"); a("v_pk_add_f32 v[30:31], v[30:31], v[22:23]")
        a("s_waitcnt vmcnt(0)")
        a("v_pk_add_f32 v[28:29], v[28:29], v[24:25]"); a("v_pk_add_f32 v[30:31], v[30:31], v[26:27]")
        a("v_permlane32_swap_b32 v28, v30"); a("v_permlane32_swap_b32 v29, v31")
        a("v_pk_add_f32 v[28:29], v[28:29], v[30:31]")
        a("v_pk_add_f32 v[28:29], v[28:29], v[%d:%d]" % (vX0, vX1))
        a("v_cmp_u_f32 vcc, v28, v29")
        a("s_cbranch_vccnz " + r)
        a(ok + ":")
        a("v_cvt_pk_bf16_f32 v28, v28, v29")
        o = [r + ":"] + a.budget() + ["s_mov_b64 %s, 0" % sr(sM1, 2)]
        for n in range(4):
            b = 12 + 4 * n; sk = a.lab("L_gn")
            o += ["v_max3_u32 v30, v%d, v%d, v%d" % (b, b + 1, b + 2), "v_max_u32 v30, v30, v%d" % (b + 3),
                  "v_cmp_eq_u32 vcc, -1, v30", "s_cbranch_vccz " + sk,
                  "s_or_b64 %s, %s, vcc" % (sr(sM1, 2), sr(sM1, 2)), "s_mov_b64 exec, vcc", ld[n], "s_mov_b64 exec, -1", sk + ":"]
        o += ["s_cmp_eq_u64 %s, 0" % sr(sM1, 2), "s_cbranch_scc1 " + ok, "s_waitcnt vmcnt(0)", "s_branch " + w]
        a.ool += o
    def unpack_x(self):
        self("v_lshlrev_b32 v%d, 16, v28" % vX0); self("v_and_b32 v%d, 0xffff0000, v28" % vX1)
    def add_b2(self):
        a = self
        a("v_lshlrev_b32 v60, 16, v%d" % vB); a("v_add_f32 v%d, v%d, v60" % (vX0, vX0))
        a("v_and_b32 v60, 0xffff0000, v%d" % vB); a("v_add_f32 v%d, v%d, v60" % (vX1, vX1))
    def pack_pairs(self):
        a = self
        a("v_mov_b32_dpp v13, v12 row_shl:1 row_mask:0xf bank_mask:0xf bound_ctrl:0")
        a("v_cvt_pk_bf16_f32 v12, v12, v13"); a("v_min_u32 v12, -2, v12")
    def q_base(self, l, dst, st, kind="q"):
        a = self
        if kind == "h":
            a("s_add_u32 s%d, s%d, %d" % (dst, sLOC, L_H + 6144 * l)); a("s_add_u32 s%d, s%d, %d" % (st, sLOC, L_STH + 128 * l))
        elif l == 0:
            a("s_mul_i32 s%d, s%d, %d" % (dst, sHL, Q0S)); a("s_add_u32 s%d, s%d, s%d" % (dst, dst, sLOC)); a("s_add_u32 s%d, s%d, %d" % (dst, dst, L_Q0))
            a("s_add_u32 s%d, s%d, 6144" % (st, dst))
        else:
            a("s_mul_i32 s%d, s%d, 3072" % (dst, sHL)); a("s_add_u32 s%d, s%d, s%d" % (dst, dst, sLOC)); a("s_add_u32 s%d, s%d, %d" % (dst, dst, L_Q1))
            a("s_lshl_b32 s%d, s%d, 6" % (st, sHL)); a("s_add_u32 s%d, s%d, s%d" % (st, st, sLOC)); a("s_add_u32 s%d, s%d, %d" % (st, st, L_ST1))
    def slice_addr(self, dst, unit, hi):
        a = self
        a("v_and_b32 v60, 31, v%d" % vL); a("v_min_u32 v60, 19, v60"); a("s_mul_i32 s%d, s%d, %d" % (sT0, sJ, 20 * unit))
        a.lanefn(dst, [(5, 1, hi)], 61, s=sT0); a("v_lshl_add_u32 v%d, v60, %d, v%d" % (dst, unit.bit_length() - 1, dst))
    def p1_slice_pre(self, l, kind="q"):
        a = self
        a("v_and_b32 v60, 31, v%d" % vL); a("v_cmp_gt_u32 %s, 20, v60" % sr(sF, 2)); a("v_min_u32 v60, 19, v60")
        a.lanefn(35, [(5, 1, 4)], 61, const=a.LD_XB); a("v_lshl_add_u32 v35, v60, 3, v35")
        a.q_base(l, sF + 2, sF + 3, kind)
        a("s_lshl_b32 s%d, s%d, 3" % (sT0, sJ)); a.lanefn(34, [(5, 1, 4)], 61, s=sT0)
        a("v_mov_b32 v61, %s" % ONES)
    def p1_slice_write(self):
        self("ds_write_b32 v35, v28"); self("s_waitcnt lgkmcnt(0)")
    def p1_slice_stats(self):
        a = self
        a.unpack_x()
        a("v_cndmask_b32 v28, 0, v28, %s" % sr(sF, 2))
        a("v_dot2_f32_bf16 v27, v28, v61, 0"); a("v_dot2_f32_bf16 v62, v28, v28, 0")
        a("v_permlane32_swap_b32 v27, v62"); a("v_add_f32 v27, v27, v62"); a("v_mov_b32 v62, v27")
        a("v_permlane16_swap_b32 v27, v62"); a("v_add_f32 v27, v27, v62")
        for k in (8, 4, 2, 1): a("v_add_f32_dpp v27, v27, v27 row_ror:%d row_mask:0xf bank_mask:0xf" % k)
        a("v_min_u32 v27, -2, v27")
        a.exec_((1 << 32) | 1)
        a.local_store("buffer_store_dword v27, v34, %s, s%d offen" % (sr(R_WS, 4), sF + 3))
        a.exec_(-1)
    def p1_prefetch(self, l, kind="q"):
        a = self
        base, seg, rb = (a.LD_WQ, 1024, (128, 256, 512, 3072, 6144, 12288, 24576)) if kind == "q" else (a.LD_WL, 128, (384, 1024, 2048, 4096, 8192, 16384, 32768))
        a("s_lshr_b32 s%d, s%d, 1" % (sT0, sW)); a("s_mul_i32 s%d, s%d, %d" % (sT0, sT0, seg)); a("s_and_b32 s%d, s%d, 1" % (sT1, sW))
        a("s_lshl_b32 s%d, s%d, 6" % (sT1, sT1)); a("s_add_u32 s%d, s%d, s%d" % (sT0, sT0, sT1))
        a.lanefn(18, [(5, 1, rb[4]), (3, 1, rb[3]), (4, 1, rb[2]), (2, 1, rb[0]), (0, 2, 8)], 60, s=sT0, const=base)
        a.lanefn(19, [(4, 1, rb[3]), (3, 1, rb[2]), (2, 1, rb[0]), (0, 2, 8)], 60, s=sT0, const=base + rb[6])
        for t in range(2):
            for u in range(4): a("ds_read_b64_tr_b16 %s, v18 offset:%d" % (vr(36 + 12 * t + 2 * u, 2), (u // 2) * rb[5] + (u % 2) * rb[1] + 32 * t))
            for u in range(2): a("ds_read_b64_tr_b16 %s, v19 offset:%d" % (vr(44 + 12 * t + 2 * u, 2), u * rb[1] + 32 * t))
        a.lanefn(32, [(4, 2, 32), (1, 1, 16), (0, 1, 192)], 60, const=a.LD_XB)
        a.lanefn(33, [(4, 2, 16), (1, 1, 8), (0, 1, 192)], 60, const=a.LD_XB + 128)
        a.zero(24, 32)
        if kind == "q":
            a("s_lshr_b32 s%d, s%d, 1" % (sT0, sJ)); a("s_lshl_b32 s%d, s%d, 2" % (sT0, sT0)); a("s_and_b32 s%d, s%d, 1" % (sT1, sJ))
            a("s_add_u32 s%d, s%d, s%d" % (sT0, sT0, sT1)); a("s_lshl_b32 s%d, s%d, 4" % (sT0, sT0))
            a("s_lshl_b32 s%d, s%d, 9" % (sT1, sW)); a("s_add_u32 s%d, s%d, s%d" % (sT0, sT0, sT1))
            a.lanefn(34, [(4, 1, 256), (1, 1, 32), (2, 2, 4), (5, 1, 3072)], 60, s=sT0)
        else:
            a("s_lshr_b32 s%d, s%d, 1" % (sT0, sW)); a("s_lshl_b32 s%d, s%d, 11" % (sT0, sT0)); a("s_and_b32 s%d, s%d, 1" % (sT1, sW))
            a("s_lshl_b32 s%d, s%d, 9" % (sT1, sT1)); a("s_add_u32 s%d, s%d, s%d" % (sT0, sT0, sT1))
            a("s_lshr_b32 s%d, s%d, 2" % (sT1, sJ)); a("s_lshl_b32 s%d, s%d, 10" % (sT1, sT1)); a("s_add_u32 s%d, s%d, s%d" % (sT0, sT0, sT1))
            a("s_and_b32 s%d, s%d, 3" % (sT1, sJ)); a("s_lshl_b32 s%d, s%d, 2" % (sT1, sT1)); a("s_add_u32 s%d, s%d, s%d" % (sT0, sT0, sT1))
            a.lanefn(34, [(0, 5, 16)], 60, s=sT0)
        a.q_base(l, sT2, sT3, kind)
    def p1_mat(self, l, kind="q"):
        a = self; z = 1 if kind == "c" else 0
        a("ds_read_b128 v[12:15], v32"); a("ds_read_b64 v[16:17], v33")
        a("s_waitcnt lgkmcnt(1)")
        for t in range(2): a("v_smfmac_f32_16x16x64_bf16 %s, v[12:15], %s, v%d" % (vr(24 + 4 * t, 4), vr(36 + 12 * t, 8), vIDX))
        a("s_waitcnt lgkmcnt(0)")
        for t in range(2): a("v_smfmac_f32_16x16x32_bf16 %s, v[16:17], %s, v%d" % (vr(24 + 4 * t, 4), vr(44 + 12 * t, 4), vIDX))
        if kind == "c": a("s_add_u32 s%d, s%d, %d" % (sT3, sLOC, L_CS1))
        a("v_add_f32 v12, v%d, v%d" % (24 + z, 26 + z))
        a("v_add_f32_dpp v12, v%d, v%d quad_perm:[0,1,2,3] row_mask:0x2 bank_mask:0xf" % (28 + z, 30 + z))
        if kind == "q":
            if l == 0:
                a("v_add_f32_dpp v12, v25, v27 quad_perm:[0,1,2,3] row_mask:0x4 bank_mask:0xf")
                a("v_add_f32_dpp v12, v29, v31 quad_perm:[0,1,2,3] row_mask:0x8 bank_mask:0xf")
            a.pack_pairs(); a.exec_(0x5555555555555555 if l == 0 else 0x55555555)
        else:
            a("v_min_u32 v12, -2, v12"); a.exec_(0xffffffff)
        a.local_store("buffer_store_dword v12, v34, %s, s%d offen" % (sr(R_WS, 4), sT3 if kind == "c" else sT2))
        a.exec_(-1)
        if kind == "c": a.zero(24, 32)

    def q_loads(self, l, addr, addr2, st):
        a = self
        a.q_base(l, sT2, sT3)
        a.lanefn(addr, [(0, 6, 16)], 60, s=sT2); a.lanefn(addr2, [(0, 3, 8)], 60, s=sT3)
        ld = ["buffer_load_dwordx2 %s, v%d, %s, 0 offen sc1" % (vr(st, 2), addr2, sr(R_WS, 4))]
        ld += ["buffer_load_dwordx4 %s, v%d, %s, 0 offen offset:%d sc1" % (vr(12 + 4 * k, 4), addr, sr(R_WS, 4), 1024 * k) for k in range(3)]
        return ld
    def zero(self, lo, hi):
        for r in range(lo, hi, 2): self("v_mov_b64 v[%d:%d], 0" % (r, r + 1))
    def qk(self, A, dst, side=()):
        a = self; side = list(side)
        ext = lambda g: ["v_pk_add_f32 %s, %s, %s" % (vr(24 + 4 * g, 2), vr(24 + 4 * g, 2), vr(26 + 4 * g, 2)), "v_add_f32 v%d, v%d, v%d" % (24 + 4 * g, 24 + 4 * g, 25 + 4 * g)]
        for n, g in enumerate((0, 2, 1, 3)):
            for k in range(3):
                a("v_smfmac_f32_16x16x64_bf16 %s, %s, %s, v%d" % (vr(24 + 4 * g, 4), vr(A + 4 * k, 4), vr(KB + 24 * g + 8 * k, 8), vIDX))
                if n == 3 and k == 0: side += ext(0) + ext(2)
                for _ in range(2):
                    if side: a(side.pop(0))
        for x in side: a(x)
        a("v_permlane32_swap_b32 v24, v32"); a("v_add_f32 v24, v24, v32")
        for x in ext(1) + ext(3): a(x)
        a("v_permlane32_swap_b32 v28, v36"); a("v_add_f32 v28, v28, v36")
        a("v_permlane16_swap_b32 v24, v28"); a("v_add_f32 v%d, v24, v28" % dst)
    def stats_ops(self, st, att=True):
        c = 192 ** -0.5 * math.log2(math.e); o = []
        for k in (4, 2, 1):
            o += ["v_add_f32_dpp v%d, v%d, v%d row_ror:%d row_mask:0xf bank_mask:0xf" % (r, r, r, k) for r in (st, st + 1)]
        o += ["v_mul_f32 v%d, %s, v%d" % (r, f32(1.0 / 640), r) for r in (st, st + 1)]
        o += ["v_fma_f32 v%d, -v%d, v%d, v%d" % (st + 1, st, st, st + 1), "v_max_f32 v%d, 0, v%d" % (st + 1, st + 1),
              "v_add_f32 v%d, %s, v%d" % (st + 1, f32(1e-5), st + 1), "v_rsq_f32 v%d, v%d" % (st + 1, st + 1)]
        if att: o += ["s_mov_b32 vcc_lo, 0x55555555", "v_mul_f32 v%d, %s, v%d" % (st + 1, f32(c), st + 1), "s_mov_b32 vcc_hi, 0x55555555"]
        return o
    def softmax(self, st):
        a = self
        a("v_fma_f32 v24, -v%d, v%d, v24" % (st, vKC))
        a("v_max_f32_dpp v21, v24, v24 row_ror:8 row_mask:0xf bank_mask:0xf")
        for k in (4, 2, 1): a("v_max_f32_dpp v21, v21, v21 row_ror:%d row_mask:0xf bank_mask:0xf" % k)
        a("v_max_f32_dpp v21, v21, v21 row_bcast:15 row_mask:0xa bank_mask:0xf")
        a("v_max_f32_dpp v21, v21, v21 row_bcast:31 row_mask:0xc bank_mask:0xf")
        a("v_readlane_b32 s%d, v21, 63" % sT0)
        a("v_subrev_f32 v24, s%d, v24" % sT0); a("v_mul_f32 v24, v24, v%d" % (st + 1)); a("v_exp_f32 v22, v24")
        a("v_mul_f32 v20, s%d, v%d" % (sT0, st + 1))
        a("v_mov_b32_dpp v23, v22 row_shl:1 row_mask:0xf bank_mask:0xf bound_ctrl:0")
        a("v_cvt_pk_bf16_f32 v23, v22, v23"); a("v_cndmask_b32 v12, 0, v23, vcc")
        a("v_mov_b32 v21, v22")
        for r in (1, 2, 3): a("v_mov_b32_dpp v%d, v12 row_shl:%d row_mask:0xf bank_mask:0xf bound_ctrl:0" % (12 + r, 4 * r))
    def side_ops(self):
        a = self
        o = ["v_mov_b32_dpp v16, v12 row_shr:1 row_mask:0xf bank_mask:0xf bound_ctrl:0"]
        o += ["v_mov_b32_dpp v%d, v12 row_shl:%d row_mask:0xf bank_mask:0xf bound_ctrl:0" % (16 + r, 4 * r - 1) for r in (1, 2, 3)]
        red = ["v_permlane32_swap_b32 v21, v22", "v_add_f32 v21, v21, v22", "v_mov_b32 v22, v21",
               "v_permlane16_swap_b32 v21, v22", "v_add_f32 v21, v21, v22"]
        red += ["v_add_f32_dpp v21, v21, v21 row_ror:%d row_mask:0xf bank_mask:0xf" % k for k in (8, 4, 2, 1)]
        return o, red
    def ml_addr(self, dst):
        self("s_lshl_b32 s%d, s%d, 3" % (sT1, sW)); self("s_add_u32 s%d, s%d, %d" % (sT1, sT1, self.LD_ML)); self("v_mov_b32 v%d, s%d" % (dst, sT1))
    def pv(self, T):
        self("v_smfmac_f32_16x16x64_bf16 %s, %s, %s, v%d" % (vr(40 + 4 * (T // 2), 4), vr(12 + 4 * (T % 2), 4), vr(VB + 8 * T, 8), vIDX))
    def pv_ext(self, m):
        self("v_pk_add_f32 %s, %s, %s" % (vr(24 + 2 * m, 2), vr(40 + 4 * m, 2), vr(42 + 4 * m, 2)))
    def oc_addr(self):
        self.lanefn(36, [(0, 4, 16)], 60, s=sRING, const=(22 % self.R) * 16384)
    def oc_write(self, tq):
        self("ds_write_b128 v36, %s offset:%d" % (vr(24 + 4 * tq, 4), 256 * tq))
    def ml_calc(self, l):
        a = self
        a.lanefn(37, [(0, 3, 8)], 60, const=a.LD_ML)
        a("ds_read_b64 v[38:39], v37")
        a("s_lshl_b32 s%d, s%d, 3" % (sT0, sHL)); a("s_add_u32 s%d, s%d, s%d" % (sT0, sT0, sJ)); a("s_lshl_b32 s%d, s%d, 2" % (sT0, sT0))
        a("v_mov_b32 v23, s%d" % sT0)
        a("s_add_u32 s%d, s%d, %d" % (sT0, sLOC, L_LSE + 128 * l))
        a("s_waitcnt lgkmcnt(0)")
        a("v_max_f32_dpp v37, v38, v38 row_ror:4 row_mask:0xf bank_mask:0xf")
        for k in (2, 1): a("v_max_f32_dpp v37, v37, v37 row_ror:%d row_mask:0xf bank_mask:0xf" % k)
        a("v_sub_f32 v38, v38, v37"); a("v_exp_f32 v38, v38"); a("v_mul_f32 v39, v38, v39")
        for k in (4, 2, 1): a("v_add_f32_dpp v39, v39, v39 row_ror:%d row_mask:0xf bank_mask:0xf" % k)
        a("v_log_f32 v22, v39"); a("v_rcp_f32 v39, v39")
        a("v_add_f32 v22, v22, v37"); a("v_min_u32 v22, -2, v22"); a("v_mul_f32 v38, v38, v39")
        sk = a.skip_unless("eq", "s%d" % sW, 0)
        a.exec_(1)
        a.local_store("buffer_store_dword v22, v23, %s, s%d offen" % (sr(R_WS, 4), sT0))
        a.exec_(-1)
        a(sk + ":")
        for w in range(8): a("v_readlane_b32 s%d, v38, %d" % (sF + w, w))
    def combine_addr(self, l):
        a = self
        a("s_mul_i32 s%d, s%d, 48" % (sT0, sW)); a("v_add_u32 v38, s%d, v%d" % (sT0, vL))
        a.lanefn(20, [(5, 2, 256), (0, 4, 16), (4, 1, 8)], 39, const=a.LD_RING + (22 % a.R) * 16384, src=38)
        a("s_lshr_b32 s%d, s%d, 1" % (sT0, sJ)); a("s_lshl_b32 s%d, s%d, 2" % (sT0, sT0)); a("s_and_b32 s%d, s%d, 1" % (sT1, sJ))
        a("s_add_u32 s%d, s%d, s%d" % (sT0, sT0, sT1))
        a("s_lshl_b32 s%d, s%d, 4" % (sT1, sT0)); a("s_lshl_b32 s%d, s%d, 3" % (sT0, sT0))
        a.lanefn(21, [(3, 2, 256), (2, 1, 32), (0, 2, 4)], 39, s=sT1)
        a.lanefn(38, [(3, 1, 256), (1, 1, 128), (2, 1, 16), (0, 1, 4)], 39, s=sT0, const=1024)
        a("v_cmp_gt_u32 vcc, 32, v%d" % vL); a("v_cndmask_b32 v21, v38, v21, vcc")
        a("s_lshl_b32 s%d, s%d, 1" % (sT0, sHL)); a("s_add_u32 s%d, s%d, s%d" % (sT0, sT0, sW)); a("s_mul_i32 s%d, s%d, 1536" % (sT0, sT0))
        a("s_add_u32 s%d, s%d, s%d" % (sT0, sT0, sLOC)); a("s_add_u32 s%d, s%d, %d" % (sT0, sT0, L_O + l * 12288))
        a("v_add_u32 v21, s%d, v21" % sT0)
    def combine(self):
        a = self
        a.exec_((1 << 48) - 1)
        for w in range(8): a("ds_read_b64 %s, v20 offset:%d" % (vr(40 + 2 * w, 2), w * 2048))
        for w in range(8):
            a("s_waitcnt lgkmcnt(%d)" % (7 - w))
            op = "v_mul_f32" if w == 0 else "v_fmac_f32"
            a("%s v56, s%d, v%d" % (op, sF + w, 40 + 2 * w)); a("%s v57, s%d, v%d" % (op, sF + w, 41 + 2 * w))
        a("v_cvt_pk_bf16_f32 v56, v56, v57"); a("v_min_u32 v56, -2, v56")
        a.local_store("buffer_store_dword v56, v21, %s, 0 offen" % sr(R_WS, 4))
        a.exec_(-1)

    def canary_store(self, ph):
        a = self
        a("s_lshl_b32 s%d, s%d, 2" % (sT0, sAI)); a("s_add_u32 s%d, s%d, s%d" % (sT0, sT0, sLOC)); a("s_add_u32 s%d, s%d, %d" % (sT0, sT0, L_CAN + 128 * ph))
        a.exec_(1)
        a.local_store("buffer_store_dword v%d, v%d, %s, s%d offen" % (vL, vL, sr(R_WS, 4), sT0))
        a.exec_(-1)
    def canary_poll(self, ph):
        a = self
        a("s_add_u32 s%d, s%d, %d" % (sT0, sLOC, L_CAN + 128 * ph))
        a("v_min_u32 v9, 19, v%d" % vL); a("v_lshlrev_b32 v9, 2, v9")
        a.poll(["buffer_load_dword v12, v9, %s, s%d offen sc1" % (sr(R_WS, 4), sT0)], [12], 13)
    def p3(self, l):
        a = self
        a("s_lshr_b32 s%d, s%d, 1" % (sT0, sW)); a("s_lshl_b32 s%d, s%d, 5" % (sT0, sT0)); a("s_add_u32 s%d, s%d, s%d" % (sT0, sT0, sLOC))
        a("s_add_u32 s%d, s%d, %d" % (sT2, sT0, L_LSE + 128 * l))
        a.lanefn(5, [(0, 3, 4)], 60); a.lanefn(22, [(4, 2, 8)], 60)
        lse = ["buffer_load_dword v18, v5, %s, s%d offen sc1" % (sr(R_WS, 4), sT2), "buffer_load_dwordx2 v[20:21], v22, %s, s%d offen sc1" % (sr(R_WS, 4), sT2)]
        def sh1():
            a("s_mul_i32 s%d, s%d, 6144" % (sT0, sW))
            a.lanefn(7, [(2, 4, 64), (4, 1, 32), (0, 2, 8)], 60, s=sT0, const=a.LD_WL)
            a("v_xor_b32 v8, 32, v7")
            a("s_mul_i32 s%d, s%d, 1536" % (sT3, sW)); a("s_add_u32 s%d, s%d, s%d" % (sT3, sT3, sLOC)); a("s_add_u32 s%d, s%d, %d" % (sT3, sT3, L_O + l * 12288))
            a("v_lshlrev_b32 v9, 4, v%d" % vL); a("v_lshlrev_b32 v10, 3, v%d" % vL)
            for t in range(2):
                for m in range(6): a("ds_read_b64_tr_b16 %s, v%d offset:%d" % (vr(36 + 12 * t + 2 * m, 2), 7 + t, 1024 * m))
            for r in range(24, 32, 2): a("v_mov_b64 v[%d:%d], 0" % (r, r + 1))
            a("s_lshl_b32 s%d, s%d, 8" % (sT0, sW))
            a.lanefn(11, [(0, 6, 4)], 60, s=sT0, const=a.LD_PP)
        a.poll(lse, [18, 20, 21], 19, shadow=sh1)
        ol = ["buffer_load_dwordx4 v[12:15], v9, %s, s%d offen sc1" % (sr(R_WS, 4), sT3),
              "buffer_load_dwordx2 v[16:17], v10, %s, s%d offen offset:1024 sc1" % (sr(R_WS, 4), sT3)]
        def sh2():
            a("v_max_f32_dpp v19, v18, v18 row_ror:4 row_mask:0xf bank_mask:0xf")
            for k in (2, 1): a("v_max_f32_dpp v19, v19, v19 row_ror:%d row_mask:0xf bank_mask:0xf" % k)
            for r in (18, 20, 21): a("v_sub_f32 v%d, v%d, v19" % (r, r))
            for r in (18, 20, 21): a("v_exp_f32 v%d, v%d" % (r, r))
            for k in (4, 2, 1): a("v_add_f32_dpp v18, v18, v18 row_ror:%d row_mask:0xf bank_mask:0xf" % k)
            a("v_rcp_f32 v18, v18"); a("v_mul_f32 v20, v20, v18"); a("v_mul_f32 v21, v21, v18")
            a("s_waitcnt lgkmcnt(0)")
        a.poll(ol, range(12, 18), 19, shadow=sh2)
        a.stamp("o_in%d" % l)
        for t in range(2): a("v_smfmac_f32_16x16x64_bf16 %s, v[12:15], %s, v%d" % (vr(24 + 4 * t, 4), vr(36 + 12 * t, 8), vIDX))
        for t in range(2): a("v_smfmac_f32_16x16x32_bf16 %s, v[16:17], %s, v%d" % (vr(24 + 4 * t, 4), vr(44 + 12 * t, 4), vIDX))
        for t in range(2): a("v_pk_add_f32 %s, %s, %s" % (vr(24 + 4 * t, 2), vr(24 + 4 * t, 2), vr(26 + 4 * t, 2)))
        for t in range(2): a("v_mul_f32 v%d, v%d, v20" % (24 + 4 * t, 24 + 4 * t))
        for t in range(2): a("v_fmac_f32 v%d, v%d, v21" % (24 + 4 * t, 25 + 4 * t))
        a("v_permlane32_swap_b32 v24, v28"); a("v_add_f32 v24, v24, v28")
        a("ds_write_b32 v11, v24")
        a.lanefn(5, [(0, 6, 4)], 60, const=a.LD_PP)
        a("s_mul_i32 s%d, s%d, 2560" % (sT2, sX)); a("s_lshl_b32 s%d, s%d, 7" % (sT1, sAI)); a("s_add_u32 s%d, s%d, s%d" % (sT2, sT2, sT1))
        a("s_add_u32 s%d, s%d, %d" % (sT2, sT2, XP + 2 * l * XPS - 64))
        a("v_lshlrev_b32 v9, 2, v%d" % vL)
        a("s_waitcnt lgkmcnt(0)")
        a("s_barrier")
        sk = a.skip_unless("eq", "s%d" % sW, 2)
        for n in range(4): a("ds_read2st64_b32 %s, v5 offset0:%d offset1:%d" % (vr(12 + 2 * n, 2), 2 * n, 2 * n + 1))
        a("s_waitcnt lgkmcnt(2)"); a("v_pk_add_f32 v[12:13], v[12:13], v[14:15]")
        a("s_waitcnt lgkmcnt(0)"); a("v_pk_add_f32 v[16:17], v[16:17], v[18:19]")
        a("v_pk_add_f32 v[12:13], v[12:13], v[16:17]"); a("v_add_f32 v12, v12, v13"); a("v_mov_b32 v13, v12")
        a("v_permlane16_swap_b32 v12, v13"); a("v_add_f32 v12, v12, v13"); a("v_min_u32 v12, -2, v12")
        a.exec_(0xffffffff << 16)
        a("buffer_store_dword v12, v9, %s, s%d offen sc1" % (sr(R_WS, 4), sT2))
        a.stamp("xp_pub%d" % (2 * l))
        a.canary_store(2 * l)
        a(sk + ":")
    def p4b(self, l):
        a = self
        a("s_sub_u32 s%d, s%d, 5" % (sT3, sW))
        a("s_mul_i32 s%d, s%d, 6144" % (sT2, sT3)); a("s_add_u32 s%d, s%d, %d" % (sT2, sT2, a.LD_W2))
        if l == 0:
            a.srd(R_WQ, P_W2, 1536 * 1280)
            a("s_mul_i32 s%d, s%d, %d" % (sT0, sX, 192 * 1280)); a("s_lshl_b32 s%d, s%d, 6" % (sT1, sAI)); a("s_add_u32 s%d, s%d, s%d" % (sT0, sT0, sT1))
            a("s_lshl_b32 s%d, s%d, 5" % (sT1, sT3)); a("s_add_u32 s%d, s%d, s%d" % (sT0, sT0, sT1))
            a.lanefn(5, [(1, 5, 1280), (0, 1, 16)], 60, s=sT0)
            for m in range(6):
                a("s_add_u32 m0, s%d, %d" % (sT2, 1024 * m)); a("s_mov_b32 s%d, %d" % (sT0, m * 32 * 1280))
                a("buffer_load_dwordx4 v5, %s, s%d offen nt lds" % (sr(R_WQ, 4), sT0))
        a("s_mul_i32 s%d, s%d, 384" % (sT0, sX))
        a.lanefn(5, [(0, 6, 2)], 60, s=sT0)
        for k in range(3): a("global_load_ushort v%d, v5, %s offset:%d" % (8 + k, sr(P_B1, 2), 128 * k))
        a("v_lshlrev_b32 v11, 4, v%d" % vL)
        a.lanefn(7, [(4, 2, 8 * 32), (2, 2, 32), (0, 2, 8)], 60, s=sT2)
        a("s_mul_i32 s%d, s%d, 2560" % (sT0, sX)); a("s_lshl_b32 s%d, s%d, 7" % (sT1, sAI)); a("s_add_u32 s%d, s%d, s%d" % (sT0, sT0, sT1))
        a("s_lshl_b32 s%d, s%d, 6" % (sT3, sT3)); a("s_add_u32 s%d, s%d, s%d" % (sT3, sT3, sT0)); a("s_add_u32 s%d, s%d, %d" % (sT3, sT3, XP + (2 * l + 1) * XPS))
        six = lambda: ["buffer_load_dwordx4 %s, v11, %s, s%d offen offset:%d sc1" % (vr(12 + 4 * n, 4), sr(R_WS, 4), sT1 + n // 3, 1024 * (n % 3)) for n in range(6)]
        def sums(d, waits):
            o = []
            for k in range(3):
                b = 12 + 8 * k
                if waits: o.append("s_waitcnt vmcnt(%d)" % (4 - 2 * k))
                o += ["v_pk_add_f32 %s, %s, %s" % (vr(b, 2), vr(b, 2), vr(b + 2, 2)), "v_pk_add_f32 %s, %s, %s" % (vr(b + 4, 2), vr(b + 4, 2), vr(b + 6, 2)),
                      "v_pk_add_f32 %s, %s, %s" % (vr(b, 2), vr(b, 2), vr(b + 4, 2)), "v_add_f32 v%d, v%d, v%d" % (d[k], b, b + 1)]
            return o
        a("s_add_u32 s%d, s%d, %d" % (sT1, sLOC, L_CS1)); a("s_add_u32 s%d, s%d, 3072" % (sT2, sT1))
        a.poll(six(), range(12, 36), 60)
        for k in range(3):
            for u in range(4):
                a("ds_read_b64_tr_b16 %s, v7 offset:%d" % (vr(36 + 8 * k + 2 * u, 2), (64 * k + 32 * (u // 2) + 4 * (u % 2)) * 32))
        for x in sums((4, 5, 7), False): a(x)
        for k in range(3): a("v_lshlrev_b32 v%d, 16, v%d" % (8 + k, 8 + k))
        a.zero(60, 64)
        a.q_base(l, sT1, sT0, "h"); a("s_add_u32 s%d, s%d, 3072" % (sT2, sT1))
        k2 = -2.0 * math.log2(math.e) * math.sqrt(2.0 / math.pi)
        a("s_mov_b32 s%d, %s" % (sF, f32(k2 * 0.044715)))
        a.lanefn(12, [(0, 3, 8)], 60)
        a.poll(["buffer_load_dwordx2 v[2:3], v12, %s, s%d offen sc1" % (sr(R_WS, 4), sT0)], [2, 3], 13, shadow=lambda: a("s_waitcnt lgkmcnt(0)"))
        for x in six(): a(x)
        for x in a.stats_ops(2, False): a(x)
        a("v_mul_f32 v2, v2, v3")
        for k, c in enumerate((4, 5, 7)): a("v_fma_f32 v%d, -v2, v%d, v%d" % (8 + k, c, 8 + k))
        a("v_lshlrev_b32 v7, 2, v%d" % vL); a("v_mov_b32 v2, %s" % f32(k2))
        r = a.lab("L_hr"); ok = a.lab("L_hk")
        for x in sums((12, 13, 14), True): a(x)
        a("v_add_f32 v15, v12, v13"); a("v_cmp_u_f32 vcc, v15, v14"); a("s_cbranch_vccnz " + r)
        a(ok + ":")
        keep = a.L; a.L = []
        a(r + ":"); a.poll(six(), range(12, 36), 4)
        for x in sums((12, 13, 14), False): a(x)
        a("s_branch " + ok)
        blk = a.L; a.L = keep; a.ool += blk
        a.stamp("h_in%d" % l)
        H = (12, 13, 14); T = (16, 17, 18)
        for k in range(3): a("v_fma_f32 v%d, v%d, v3, v%d" % (H[k], H[k], 8 + k))
        for k in range(3): a("v_mul_f32 v%d, v%d, v%d" % (T[k], H[k], H[k]))
        for k in range(3): a("v_fma_f32 v%d, v%d, s%d, v2" % (T[k], T[k], sF))
        for k in range(3): a("v_mul_f32 v%d, v%d, v%d" % (T[k], T[k], H[k]))
        for k in range(3): a("v_exp_f32 v%d, v%d" % (T[k], T[k]))
        for k in range(3): a("v_add_f32 v%d, 1.0, v%d" % (T[k], T[k]))
        for k in range(3): a("v_rcp_f32 v%d, v%d" % (T[k], T[k]))
        for k in range(3): a("v_mul_f32 v%d, v%d, v%d" % (H[k], H[k], T[k]))
        for k in range(3): a("v_mov_b32_dpp v%d, v%d row_shl:1 row_mask:0xf bank_mask:0xf bound_ctrl:0" % (T[k], H[k]))
        for k in range(3): a("v_cvt_pk_bf16_f32 v%d, v%d, v%d" % (20 + 4 * k, H[k], T[k]))
        mm = lambda k: a("v_smfmac_f32_16x16x64_bf16 v[60:63], %s, %s, v%d" % (vr(20 + 4 * k, 4), vr(36 + 8 * k, 8), vIDX))
        for k in range(3):
            for r_ in (1, 2, 3): a("v_mov_b32_dpp v%d, v%d row_shl:%d row_mask:0xf bank_mask:0xf bound_ctrl:0" % (20 + 4 * k + r_, 20 + 4 * k, 4 * r_))
            if k: mm(k - 1)
        mm(2)
        a("v_add_f32 v60, v60, v62"); a("v_min_u32 v60, -2, v60")
        a.exec_(0xffff)
        a("buffer_store_dword v60, v7, %s, s%d offen sc1" % (sr(R_WS, 4), sT3))
        a.stamp("xp_pub%d" % (2 * l + 1))
        sk = a.skip_unless("eq", "s%d" % sW, 6)
        a.canary_store(2 * l + 1)
        a(sk + ":")
        a.exec_(-1)
    def slab(self, l, kind, ph, lazy=False):
        a = self
        sk = a.skip_unless("lt", "s%d" % sW, 6)
        a.p1_prefetch(l, kind)
        if kind == "h" and l == 0: a.p1_mat(l, "c")
        a(sk + ":")
        sk = a.skip_unless("eq", "s%d" % sW, 7)
        a.slice_addr(5, 16, 2560); a.p1_slice_pre(l, kind)
        if lazy:
            sk2 = a.skip_unless("lg", "s%d" % sHL, 3)
            a("s_add_u32 s%d, s%d, %d" % (sT0, sLOC, L_STH)); a("v_mov_b32 v9, 0")
            a.poll(["buffer_load_dword v12, v9, %s, s%d offen sc1" % (sr(R_WS, 4), sT0)], [12], 13)
            a.gather(ph - 1); a.unpack_x()
            a(sk2 + ":")
        if kind == "q": a.add_b2()
        a.canary_poll(ph)
        a.stamp("can%d" % ph)
        a.gather(ph)
        a.stamp("xp_in%d" % ph)
        a.p1_slice_write()
        a(sk + ":")
        a("s_barrier")
        if a.o["stamps"] and "bx%d" % ph in a.o["stamps"]: a.stamp("bx%d" % ph); a("s_waitcnt lgkmcnt(0)")
        sk = a.skip_unless("lt", "s%d" % sW, 6)
        a.p1_mat(l, kind)
        a.stamp("q1_pub" if kind == "q" else "h_pub%d" % l)
        a(sk + ":")
        sk = a.skip_unless("eq", "s%d" % sW, 7)
        a.p1_slice_stats()
        a(sk + ":")

    def build(self):
        a = self; o = a.o
        W = lambda w: a.skip_unless("eq", "s%d" % sW, w)
        a.stamp("start")
        if o["diag_hold"]: a("s_memrealtime s[100:101]")
        a("s_load_dwordx16 s[4:19], s[0:1], 0"); a("s_load_dwordx8 s[20:27], s[0:1], 64"); a("s_load_dwordx2 s[28:29], s[0:1], 96")
        a("s_cmp_ge_u32 s2, 256"); a("s_cbranch_scc1 L_exit")
        if o["l2warm"]:
            a("s_getpc_b64 %s" % sr(sM1, 2)); a("L_pc:")
            a("v_lshlrev_b32 v5, 6, v0"); a("v_min_u32 v5, L_exit-L_pc, v5")
            a("global_load_dword v59, v5, %s" % sr(sM1, 2))
        a("v_lshrrev_b32 v5, 6, v0"); a("v_and_b32 v0, 63, v0"); a("v_readfirstlane_b32 s%d, v5" % sW)
        a("s_and_b32 s%d, s2, 7" % sX); a("s_lshr_b32 s%d, s2, 3" % sC); a("s_and_b32 s%d, s%d, 3" % (sHL, sC)); a("s_lshr_b32 s%d, s%d, 2" % (sJ, sC))
        a("s_lshl_b32 s%d, s%d, 2" % (sH, sX)); a("s_add_u32 s%d, s%d, s%d" % (sH, sH, sHL))
        a("s_mul_i32 s%d, s%d, 3" % (sAI, sJ)); a("s_add_u32 s%d, s%d, s%d" % (sAI, sAI, sHL)); a("s_cmp_eq_u32 s%d, 3" % sHL); a("s_cselect_b32 s%d, 31, s%d" % (sAI, sAI))
        a.lanefn(8, [(5, 1, 4), (4, 1, 1)], 60); a("v_and_b32 v9, 7, v0"); a("v_xor_b32 v8, v8, v9")
        a.lanefn(10, [(3, 3, 384)], 60); a("v_lshl_add_u32 v5, v8, 4, v10"); a("v_xor_b32 v6, 32, v5")
        a.lanefn(8, [(4, 2, 2)], 60); a("v_xor_b32 v8, v8, v9"); a("v_lshl_add_u32 v7, v8, 4, v10")
        a.lanefn(vX0, [(3, 3, 12288), (0, 3, 16)], 60)
        a("s_mul_i32 s%d, s%d, 12582912" % (sT0, sH)); a("s_mul_i32 s%d, s%d, %d" % (sT1, sJ, 3072 if o["ilv"] else 24576))
        a("s_add_u32 s%d, s%d, s%d" % (sT0, sT0, sT1)); a("s_add_u32 s%d, s%d, 11010048" % (sT0, sT0))
        a("s_sub_u32 s%d, 1572864, s%d" % (sT1, sT1))
        a("s_mul_i32 s%d, s%d, 384" % (sT2, sH)); a("s_mul_i32 s%d, s%d, %d" % (sT3, sJ, 80 * 12288)); a("s_add_u32 s%d, s%d, s%d" % (sT2, sT2, sT3))
        a("s_sub_u32 s%d, %d, s%d" % (sT3, 640 * 12288 + 2048, sT2))
        a("s_lshl_b32 s%d, s%d, 11" % (sRING, sW)); a("s_add_u32 s%d, s%d, %d" % (sRING, sRING, a.LD_RING))
        a("s_mul_i32 s%d, s%d, %d" % (sLOC, sX, LOC))
        a("s_lshl_b32 s%d, s%d, 8" % (sARR, sX)); a("s_add_u32 s%d, s%d, %d" % (sARR, sARR, ARR))
        a("s_mov_b32 s%d, %d" % (sBUD, o["budget"])); a("s_mov_b32 s%d, 1" % sFLAG)
        a("s_getreg_b32 s%d, hwreg(20, 0, 3)" % sXCC)
        for r in (11, vX1, 21, 34, 62, 63): a("v_mov_b32 v%d, 0" % r)
        a("v_mov_b64 v[12:13], -1"); a("v_mov_b64 v[14:15], -1"); a("v_lshlrev_b32 v10, 4, v0")
        a("s_waitcnt lgkmcnt(0)")
        a.srd(R_K, P_K, "s%d" % sT1, off=sT0); a.srd(R_V, P_V, "s%d" % sT1, off=sT0); a.srd(R_WS, P_WS, WS_BYTES)
        a.srd(R_WQ, P_WQ, "s%d" % sT3, off=sT2); a("s_sub_u32 s%d, s%d, 2048" % (R_WQ, R_WQ)); a("s_subb_u32 s%d, s%d, 0" % (R_WQ + 1, R_WQ + 1))
        a.stamp("pre_dma")
        order, upto, wait = a.plan(); done = [0]
        def wl_setup():
            lb = a.lab("L_wb"); le = a.lab("L_we")
            a("s_cmp_lg_u32 s%d, 3" % sHL); a("s_cbranch_scc0 " + lb)
            a("s_mul_i32 s%d, s%d, %d" % (sT0, sX, 768 * 1280)); a("s_lshl_b32 s%d, s%d, 6" % (sT1, sAI)); a("s_add_u32 s%d, s%d, s%d" % (sT0, sT0, sT1))
            a.lanefn(38, [(4, 1, 2)], 39); a("v_xor_b32 v38, v38, v0"); a("v_and_b32 v38, 3, v38")
            a.lanefn(vX1, [(5, 1, 8 * 1280), (4, 1, 2 * 1280), (3, 1, 4 * 1280), (2, 1, 16 * 1280)], 39, s=sT0); a("v_lshl_add_u32 v%d, v38, 4, v%d" % (vX1, vX1))
            a("s_mov_b32 s%d, %d" % (sWA, 32 * 1280)); a("s_mov_b32 s%d, %d" % (sWB, 1280 - 1024))
            a("s_branch " + le)
            a(lb + ":")
            a("s_mul_i32 s%d, s%d, 384" % (sT0, sX)); a("s_mul_i32 s%d, s%d, %d" % (sT1, sJ, 80 * 3072)); a("s_add_u32 s%d, s%d, s%d" % (sT0, sT0, sT1))
            a.lanefn(vX1, [(0, 6, 16)], 39, s=sT0)
            a("v_mov_b32 v38, %d" % (3072 - 384)); a("v_cmp_lt_u32 vcc, 23, v0"); a("v_cndmask_b32 v38, 0, v38, vcc"); a("v_add_u32 v%d, v38, v%d" % (vX1, vX1))
            a("v_mov_b32 v38, 0x7f000000"); a("v_cmp_lt_u32 vcc, 47, v0"); a("v_cndmask_b32 v%d, v%d, v38, vcc" % (vX1, vX1))
            a("s_mov_b32 s%d, %d" % (sWA, 4 * 3072)); a("s_mov_b32 s%d, %d" % (sWB, 2 * 3072 - 1024))
            a(le + ":")
        def issue(k, burst=False, first=False):
            if done[0] >= k: return
            sk = W(LOADER)
            if first and o["prio"]: a("s_setprio %d" % o["prio"])
            for i in range(done[0], k):
                if order[i] == ("w0" if o["nwl"] else "r0"): wl_setup()
                a.block(order[i], None if burst or i >= o["burst_from"] else o["W"])
            a(sk + ":"); done[0] = k
        issue(upto[0], first=True)
        a.stamp("post_dma")
        assert "w0" not in order[:upto[0]]
        a("s_cmp_lt_u32 s%d, 20" % sAI); a("s_cselect_b32 s%d, %d, 0" % (sT0, 6144 * 1280))
        a("s_add_u32 s%d, s%d, 1" % (sT1, sJ)); a("s_mul_i32 s%d, s%d, %d" % (sT1, sT1, 80 * 3072))
        a("s_cmp_lg_u32 s%d, 3" % sHL); a("s_cselect_b64 %s, %s, %s" % (sr(R_WL, 2), sr(P_WO, 2), sr(P_W1, 2)))
        a("s_cselect_b32 s%d, s%d, s%d" % (R_WL + 2, sT0, sT1)); a("s_mov_b32 s%d, 0x20000" % (R_WL + 3))
        sk = W(9 if o["strip"] & 2 else CTRL)
        sk2 = a.skip_unless("eq", "s%d" % sC, 31)
        a.exec_(0xffff)
        a("buffer_store_dwordx4 v[12:15], v10, %s, s%d offen sc1" % (sr(R_WS, 4), sARR))
        a(sk2 + ":")
        a("s_mul_i32 s%d, s2, 320" % sT1); a("s_add_u32 s%d, s%d, %d" % (sT1, sT1, XP))
        a.exec_((1 << 20) - 1)
        a("buffer_store_dwordx4 v[12:15], v10, %s, s%d offen sc1" % (sr(R_WS, 4), sT1))
        def clear_local(ad, fl):
            a("s_mul_i32 s%d, s%d, %d" % (sT0, sC, CLR)); a("s_add_u32 s%d, s%d, s%d" % (sT0, sT0, sLOC))
            a.exec_((1 << ((CLR - 1024) // 16)) - 1)
            a("buffer_store_dwordx4 v[12:15], v%d, %s, s%d offen offset:1024 %s" % (ad, sr(R_WS, 4), sT0, fl))
            a.exec_(-1)
            a("buffer_store_dwordx4 v[12:15], v%d, %s, s%d offen %s" % (ad, sr(R_WS, 4), sT0, fl))
        clear_local(10, "")
        a("v_subrev_u32 v16, 8, v0"); a("v_cmp_gt_u32 vcc, 40, v16"); a("v_mov_b32 v16, %s" % ONES); a("v_cndmask_b32 v18, 0, v16, vcc")
        a("v_min_u32 v16, 55, v0"); a("v_lshlrev_b32 v16, 2, v16"); a("v_add_u32 v16, %d, v16" % (a.LD_XB + 160))
        a("ds_write_b32 v16, v18")
        a.lanefn(vX1, [(0, 3, 32)], 60)
        a(sk + ":")
        sk = W(7); a.slice_addr(16, 8, 4)
        a("global_load_dword v28, v16, %s" % sr(P_X, 2)); a("global_load_dword v%d, v16, %s" % (vB, sr(P_B2, 2)))
        a(sk + ":")
        a.lanefn(8, [(1, 3, 1)], 60); a("v_lshrrev_b32 v9, 4, v0"); a("v_xor_b32 v9, v8, v9")
        a.lanefn(8, [(2, 1, 1024), (3, 1, 512), (0, 2, 128)], 60, s=sRING); a("v_lshl_add_u32 v8, v9, 4, v8"); a("v_xor_b32 v9, 64, v8")
        a.lanefn(vIDX, [(1, 1, 0xAAAA)], 60, const=0x4444)

        go_ld = "global_load_dword v%d, v%d, %s sc1" % (vX0, vX1, sr(P_DBG, 2))
        arr_ld = "buffer_load_dwordx4 v[24:27], v%d, %s, 0 offen sc1" % (vX1, sr(R_WS, 4))
        e = {k: o[k] for k in ("go_s", "go_i", "arr_s", "ga_i", "ga_c", "arr_c", "q_c", "warm", "preread")}
        e["p1"] = max(3, max(o["qpos"]) + 1 if o["qpos"] else 0)
        e["dec"] = e["arr_c"] + 1; e["kc"] = e["q_c"] + 1; e["qk"] = e["kc"] + 1; e["ml"] = e["qk"] + 1
        assert e["go_s"] < e["go_i"] < e["arr_s"] < e["ga_i"] < e["ga_c"] < e["arr_c"] and e["go_s"] < e["p1"] < e["arr_s"] - 1
        assert e["dec"] < e["q_c"] and e["kc"] >= 12 and e["ml"] <= e["preread"] <= 20
        late = "r0" in order
        self.sched = dict(order=order, upto=upto, wait=wait, ev=e)
        STG = a.LD_W2; qld = None
        for s in range(24):
            if s == 21:
                a("s_branch L_tail"); a(".p2align 10"); a("L_tail:")
            a("s_waitcnt vmcnt(%d)" % wait[s])
            a("s_barrier")
            a.reads(s)
            if s < 21 or o["strip"]: issue(upto[s + 1] if s < 23 else len(order), burst=s in (e["kc"], e["qk"]) and not o["strip"])
            a("s_waitcnt lgkmcnt(0)")
            a.stamp("v_in" if s == 23 else "st%d" % s)
            if s == 11:
                a.lanefn(8, [(2, 4, 128), (3, 2, 32), (0, 2, 8)], 60, s=sRING)
                for tt in (1, 2, 3): a("v_xor_b32 v%d, %d, v8" % (8 + tt, 32 * tt))
            if s == e["warm"] and o["pads"]:
                sk = W(3)
                a("s_mov_b64 exec, 0"); a("s_cbranch_execz L_pad0"); a("L_padback:"); a("s_mov_b64 exec, -1")
                a(sk + ":")
            if o["strip"]:
                if s == 23: a("s_waitcnt vmcnt(0)"); a.stamp("out"); a("s_branch L_done")
                continue
            if s == e["go_s"]:
                sk = W(CTRL); sk2 = a.skip_unless("eq", "s%d" % sC, 31)
                a("s_lshl_b32 s%d, s%d, 5" % (sT0, sX)); a("v_mov_b32 v16, s%d" % sT0)
                a("s_waitcnt vmcnt(3)")
                a.stamp("clr_ack")
                a.exec_(1); a("global_store_dword v16, v12, %s sc1" % sr(P_DBG, 2)); a.exec_(-1)
                a(sk2 + ":"); a(sk + ":")
            if s == e["p1"] - 1:
                sk = W(7); a.p1_slice_pre(0); a("s_waitcnt vmcnt(0)"); a.p1_slice_write(); a(sk + ":")
            def p1_layer0():
                sk = W(7); a.p1_slice_stats(); a(sk + ":")
                sk = a.skip_unless("lt", "s%d" % sW, 6)
                a.p1_prefetch(0); a.p1_mat(0)
                a(sk + ":")
            def arrive(off):
                a("s_lshl_b32 s%d, s%d, 2" % (sT0, sC)); a("s_add_u32 s%d, s%d, s%d" % (sT0, sT0, sARR)); a("v_mov_b32 v13, s%d" % sXCC)
                a.exec_(1); a("buffer_store_dword v13, v0, %s, s%d offen offset:%d sc1" % (sr(R_WS, 4), sT0, off)); a.exec_(-1)
            if s == e["p1"]:
                p1_layer0(); a.stamp("q0_pub")
            if s == e["go_i"] or s == e["ga_i"]:
                sk = W(CTRL); a(go_ld); a(sk + ":")
            if s == e["arr_s"] - 1:
                sk = a.skip_unless("lg", "s%d" % sW, LOADER); a("s_waitcnt vmcnt(0)"); a(sk + ":")
            if s == e["arr_s"]:
                sk = W(CTRL)
                w = a.lab("L_cw"); r = a.lab("L_cr")
                a(w + ":")
                a("v_readlane_b32 s%d, v%d, s%d" % (sT0, vX0, sX)); a("s_cmp_eq_u32 s%d, 0" % sT0); a("s_cbranch_scc1 " + r)
                a.ool += [r + ":"] + a.budget() + [go_ld, "s_waitcnt vmcnt(0)", "s_branch " + w]
                arrive(0)
                a.stamp("go_ok")
                a(sk + ":")
            if s == e["ga_c"]:
                sk = W(CTRL)
                w = a.lab("L_cw"); r = a.lab("L_cr")
                a(w + ":"); a("s_waitcnt vmcnt(0)")
                a("v_cmp_eq_u32 vcc, 0, v%d" % vX0); a("s_cbranch_vccnz " + r)
                a.ool += [r + ":"] + a.budget() + [go_ld, "s_branch " + w]
                a.lanefn(vX1, [(3, 3, 256), (0, 3, 16)], vX0, const=ARR)
                a(arr_ld)
                a(sk + ":")
            if s == e["arr_c"]:
                sk = W(CTRL)
                a.poll([arr_ld], range(24, 28), 28, issued=True)
                for k in range(24, 28): a("v_xor_b32 v%d, s%d, v%d" % (k, sXCC, k))
                a("v_or3_b32 v24, v24, v25, v26"); a("v_or_b32 v24, v24, v27"); a("v_cmp_ne_u32 vcc, 0, v24")
                a("s_lshl_b32 s%d, s%d, 3" % (sT0, sX)); a("s_lshr_b64 vcc, vcc, s%d" % sT0); a("s_and_b32 s%d, vcc_lo, 0xff" % sT0)
                a("s_cselect_b32 s%d, 0, %d" % (sT0, 0 if o["force_global"] else 1))
                a("v_mov_b32 v37, %d" % a.LD_FLAG); a("v_mov_b32 v38, s%d" % sT0); a("ds_write_b32 v37, v38"); a("s_waitcnt lgkmcnt(0)")
                a.stamp("arr_ok")
                a(sk + ":")
            if s == e["dec"]:
                a("v_mov_b32 v41, %d" % a.LD_FLAG); a("ds_read_b32 v42, v41"); a("s_waitcnt lgkmcnt(0)"); a("v_readfirstlane_b32 s%d, v42" % sFLAG)
                a("s_cmp_eq_u32 s%d, 0" % sFLAG); a("s_cbranch_scc1 L_spread"); a("L_spread_back:")
                keep = a.L; a.L = []
                a("L_spread:")
                a("s_add_u32 s%d, s%d, %d" % (sLOC, sLOC, LOC_B))
                sk = W(CTRL)
                a("v_mov_b64 v[12:13], -1"); a("v_mov_b64 v[14:15], -1"); a("v_lshlrev_b32 v16, 4, v0"); clear_local(16, "sc1")
                a(sk + ":")
                sk = W(7); a.p1_slice_pre(0); a("v_cvt_pk_bf16_f32 v28, v%d, v%d" % (vX0, vX1)); a(sk + ":")
                p1_layer0()
                a("s_waitcnt vmcnt(0)"); a("s_barrier")
                sk = W(CTRL)
                arrive(128); a.lanefn(16, [(0, 5, 4)], 39)
                a.poll(["buffer_load_dword v17, v16, %s, s%d offen offset:128 sc1" % (sr(R_WS, 4), sARR)], [17], 18)
                a(sk + ":")
                a("s_barrier"); a("s_branch L_spread_back")
                self.cold = a.L; a.L = keep
                sk = W(QFETCH)
                a.q_base(0, sT2, sT3); a("v_lshlrev_b32 v16, 4, v0"); a("s_add_u32 s%d, s%d, 3072" % (sT3, sT2))
                for h in range(2):
                    a("s_mov_b32 m0, %d" % (STG + 3072 * h))
                    for k in range(3 + h):
                        if k == 3: a.exec_(0xf)
                        a("buffer_load_dwordx4 v16, %s, s%d offen offset:%d %s lds" % (sr(R_WS, 4), sT2 + h, 1024 * k, o["qf"]))
                a.exec_(-1)
                a(sk + ":")
            if s == e["q_c"]:
                sk = W(QFETCH); a("s_waitcnt vmcnt(0)"); a.stamp("q0_in"); a(sk + ":")
            if s == e["kc"]:
                a.lanefn(40, [(0, 6, 16)], 39, const=STG)
                for k in range(3): a("ds_read_b128 %s, v40 offset:%d" % (vr(12 + 4 * k, 4), 3072 + 1024 * k))
                a.zero(24, 40); a("s_waitcnt lgkmcnt(0)")
                a.qk(12, vKC)
            if s == e["qk"]:
                a.lanefn(41, [(0, 3, 8)], 39, const=STG + 6144)
                for k in range(3): a("ds_read_b128 %s, v40 offset:%d" % (vr(12 + 4 * k, 4), 1024 * k))
                a("ds_read_b64 v[52:53], v41")
                a.zero(24, 40); a("s_waitcnt lgkmcnt(0)")
                a.qk(12, 24, a.stats_ops(52)); a.softmax(52)
                a.zero(40, 64); a.ml_addr(37)
                hi, red = a.side_ops()
                for x in hi + red: a(x)
                a("ds_write_b64 v37, v[20:21]")
                a.oc_addr(); a("s_waitcnt lgkmcnt(0)")
                a.stamp("qk0")
            if s == e["ml"]:
                sk = a.skip_unless("lt", "s%d" % sW, 2)
                a.ml_calc(0); a.combine_addr(0)
                a(sk + ":")
            if s == e["preread"]:
                sk = W(2)
                a("s_mul_i32 s%d, s%d, %d" % (sT0, sC, CLR)); a("s_add_u32 s%d, s%d, s%d" % (sT0, sT0, sLOC))
                a("v_min_u32 v37, %d, v0" % (CLR // 128 - 1)); a("v_lshlrev_b32 v37, 7, v37")
                a("buffer_load_dword v37, v37, %s, s%d offen %s" % (sr(R_WS, 4), sT0, o["pref"]))
                a(sk + ":")
            if s >= 21:
                seg = s - 21
                for T in range(4 * seg, 4 * seg + 4): a.pv(T)
                if s < 23: issue(upto[s + 1])
                assert s < 23 or done[0] == len(order)
                a.pv_ext(2 * seg); a.pv_ext(2 * seg + 1)
        if o["prio"]: a("s_setprio 0")
        a.exec_(0xffff)
        for tq in range(3): a.oc_write(tq)
        a.exec_(-1)
        for l in (0, 1):
            a("s_waitcnt lgkmcnt(0)")
            a("L_b2_%d:" % l)
            a("s_barrier")
            if o["stamps"] and "b2_%d" % l in o["stamps"]: a.stamp("b2_%d" % l); a("s_waitcnt lgkmcnt(0)")
            sk = a.skip_unless("lt", "s%d" % sW, 2)
            a.combine()
            a.stamp("o_pub%d" % l)
            a(sk + ":")
            if l == 0 and late:
                sk = W(LOADER); a("s_waitcnt vmcnt(0)"); a(sk + ":"); a("s_barrier")
            tb = "L_typeB_%d" % l
            nxt = "L_done" if l == 1 else "L_p1"
            a("s_cmp_lt_u32 s%d, 20" % sAI); a("s_cbranch_scc0 " + tb)
            a.p3(l)
            a("s_sub_u32 s%d, s%d, 5" % (sT0, sW))
            sk = a.skip_unless("lt", "s%d" % sT0, 2)
            a.p4b(l)
            a(sk + ":")
            a("s_branch " + nxt)
            a(tb + ":")
            a("s_cmp_eq_u32 s%d, 3" % sHL); a("s_cbranch_scc0 " + nxt)
            a.slab(l, "h", 2 * l)
            if l == 1:
                a("s_cmp_eq_u32 s%d, 7" % sW); a("s_cbranch_scc0 L_done")
                a("s_cmp_eq_u32 s%d, 0" % sX); a("s_cbranch_scc0 L_done")
                a.add_b2(); a.slice_addr(7, 8, 4)
                a.canary_poll(3)
                a.stamp("can3")
                a.gather(3)
                a("global_store_dword v7, v28, %s" % sr(P_OUT, 2))
                a.stamp("out")
                a("s_branch L_done")
                break
            a("L_p1:")
            a.slab(1, "q", 1, lazy=True)
            qld = a.q_loads(1, 5, 7, 8)
            def sh(): a.zero(24, 64); a.ml_addr(10)
            a.poll(qld, [8, 9] + list(range(12, 24)), 11, shadow=sh)
            a.stamp("q1_in")
            a.qk(12, 24, a.stats_ops(8)); a.stamp("qk_end"); a.softmax(8); a.stamp("sm_end")
            hi, red = a.side_ops()
            side = hi + red + ["ds_write_b64 v10, v[20:21]"]
            order = [0, 2, 4, 6, 8, 10, 1, 3, 5, 7, 9, 11]
            for n, T in enumerate(order):
                a.pv(T)
                for _ in range(2):
                    if side: a(side.pop(0))
                if n == 7: a.oc_addr()
                if n == 9:
                    sk = a.skip_unless("ge", "s%d" % sW, 4)
                    a("s_waitcnt lgkmcnt(0)"); a("s_barrier"); a.stamp("b1")
                    a(sk + ":")
            assert not side
            for m in range(6): a.pv_ext(m)
            a.exec_(0xffff)
            for tq in range(3): a.oc_write(tq)
            a.exec_(-1)
            a.stamp("pv1")
            a("s_cmp_lt_u32 s%d, 4" % sW); a("s_cbranch_scc1 L_old")
            keep = a.L; a.L = []
            a("L_old:")
            a("s_waitcnt lgkmcnt(0)"); a("s_barrier"); a.stamp("b1")
            a("s_cmp_lt_u32 s%d, 2" % sW); a("s_cbranch_scc0 L_b2_1")
            a.ml_calc(1); a.combine_addr(1); a.stamp("ml_end")
            a("s_branch L_b2_1")
            old = a.L; a.L = keep; a.ool += old
        for x in a.ool: a(x)
        a("L_tail_end:")
        for x in a.cold: a(x)
        a("L_done:")
        if o["diag_hold"]:
            if o["diag_x"] >= 0: a("s_cmp_eq_u32 s%d, %d" % (sXCC, o["diag_x"])); a("s_cbranch_scc0 L_exit")
            a("L_hold:"); a("s_memrealtime s[98:99]"); a("s_waitcnt lgkmcnt(0)"); a("s_sub_u32 s98, s98, s100")
            a("s_cmp_lt_u32 s98, %d" % o["diag_hold"]); a("s_cbranch_scc1 L_hold")
        if o["stamps"]:
            n = len(o["stamps"])
            a("s_mov_b64 exec, -1"); a("s_waitcnt lgkmcnt(0)")
            for i in range(n): a("v_writelane_b32 v12, s%d, %d" % (sST + 2 * i, i))
            a("s_getreg_b32 s%d, hwreg(4)" % sT0); a("v_writelane_b32 v12, s%d, 13" % sT0)
            a("v_writelane_b32 v12, s%d, 14" % sBUD); a("v_writelane_b32 v12, s%d, 15" % sFLAG)
            a("s_lshl_b32 s%d, s2, 3" % sT0); a("s_add_u32 s%d, s%d, s%d" % (sT0, sT0, sW)); a("s_lshl_b32 s%d, s%d, 6" % (sT0, sT0))
            a("s_add_u32 s%d, s%d, %d" % (sT0, sT0, STAMP_OFF))
            a.lanefn(13, [(0, 6, 4)], 60, s=sT0)
            a.exec_(0xffff)
            a("global_store_dword v13, v12, %s" % sr(P_WS, 2))
        a("L_exit:")
        a("s_endpgm")
        L = a.L
        if o["stamps"]:
            pre = ["s_mov_b64 %s, 0" % sr(sST + 2 * i, 2) for i in range(len(o["stamps"]))]
            L = pre + L
        if o["pads"]:
            L0 = [x.replace("L_pad0", "L_padback") for x in L]
            L1, nops = fix_hazards(L0)
            L1, npad, tb = insert_pads(L1, "L_tail", "L_tail_end", "L_padback", o["padstep"])
            k = L1.index("s_cbranch_execz L_padback"); L1[k] = "s_cbranch_execz L_pad0"
            L = L1; self.info = (nops, npad, tb)
        else:
            L, nops = fix_hazards(L); self.info = (nops, 0, 0)
        return L

def render(name=NAME + "_kernel", **kw):
    g = G(**kw); L = g.build()
    ref = open("cdna_kernels/%s.s.ref" % NAME).read().split("\n") if name.startswith(NAME) else []
    head = [x for x in ref if x.startswith(";") and "@launch" not in x and "Override" not in x and "grid=ceil" not in x]
    out = head + ["; Generated by gen/gen.py (hand-written generator): one persistent launch, K/V held in registers across both layers.",
                  "; @launch grid=(256,1,1) block=(512,1,1) lds=%d" % g.LDS,
                  '.amdgcn_target "amdgcn-amd-amdhsa--gfx950"', ".text", ".fill 64, 4, 0xbf800000", ".globl " + name, ".p2align 8", ".type %s,@function" % name, name + ":"]
    out += [x if x.endswith(":") or x.startswith(".") else "    " + x for x in L]
    out += ['.section .rodata,"a"', ".p2align 6", ".amdhsa_kernel " + name, "  .amdhsa_next_free_vgpr 256", "  .amdhsa_next_free_sgpr 102",
            "  .amdhsa_accum_offset 256", "  .amdhsa_group_segment_fixed_size 0", "  .amdhsa_kernarg_size 104", "  .amdhsa_user_sgpr_count 2",
            "  .amdhsa_user_sgpr_kernarg_segment_ptr 1", "  .amdhsa_system_sgpr_workgroup_id_x 1", "  .amdhsa_float_denorm_mode_32 3", ".end_amdhsa_kernel"]
    return "\n".join(out) + "\n", g

if __name__ == "__main__":
    kw = {}
    path = "cdna_kernels/%s.s" % NAME
    for x in sys.argv[1:]:
        k, v = x.split("=")
        if k == "out": path = v
        else: kw[k] = int(v) if v.lstrip('-').isdigit() else tuple(int(t) for t in v.split(',') if t) if ',' in v else v
    txt, g = render(**kw)
    open(path, "w").write(txt)
    print("wrote", path, "lds", g.LDS, "nops/pads/tailbytes", g.info, g.sched)
```

```python
import sys, math, struct
from asmlib import *

NAME = "interleave_layers__sliding_block_cached__dense_activation_gelu__decode"

def f32(x): return "0x%08x" % struct.unpack("<I", struct.pack("<f", x))[0]

DEF = dict(R=4, stamps=None, force_global=0, pads=1, padstep=512, l2warm=1, budget=0x10000, diag_hold=0, diag_x=-1, diag_at='start', strip=0,
           W=28, Wb=30, Wr=34, burst_from=99, prio=3, ilv=1,
           qpos=(1, 2),
           wl0=3, nwl=20,
           go_s=0, go_i=3, arr_s=6, ga_i=8, ga_c=10, arr_c=12, q_c=15, warm=3, preread=19,
           wqf='nt', wlf='nt', qf='sc1 nt', pref='sc1 nt')

LOC = 83968
CLR = 1792
L_O, L_Q1, L_H, L_CS1, L_ST1, L_STH, L_LSE, L_CAN = 0, 24576, 36864, 49152, 55296, 55552, 55808, 56064
L_Q0 = 32 * CLR; Q0S = 6400
LOC_B = 8 * LOC
XP = 16 * LOC; XPS = 20480
ARR = XP + 4 * XPS
WS_BYTES = ARR + 8 * 256
STAMP_OFF = 2 << 20
P_X, P_K, P_V, P_WQ, P_WO, P_W1, P_B1, P_W2, P_B2, P_OUT, P_DBG, P_WS = 4, 6, 8, 10, 12, 16, 18, 20, 22, 24, 26, 28
sW, sX = 30, 31
R_K, R_V, R_WS, R_WQ, R_WL = 32, 36, 40, 44, 48
sC, sHL, sJ, sFLAG, sBUD, sT0, sT1, sT2, sT3, sRING, sLOC, sXCC = 52, 53, 54, 55, 56, 57, 58, 59, 60, 61, 62, 63
sF = 64
sARR, sH, sM1 = 72, 73, 74
sST = 76
sWA, sWB, sAI = 14, 15, 3
LOADER, CTRL, QFETCH = 6, 5, 4
vL, vIDX, vX0, vX1, vB, vKC = 0, 1, 2, 3, 4, 6
KB, VB = 64, 160
ONES = "0x3f803f80"

class G:
    def __init__(self, **kw):
        self.o = dict(DEF); self.o.update(kw)
        self.L = []; self.ool = []; self.cold = []; self.n = 0; self.vm = []; self.stampn = []
        R = self.R = self.o["R"]
        self.LD_WQ = 0; self.LD_WL = 30720; self.LD_W2 = self.LD_WL + 49152
        self.LD_RING = self.LD_W2 + 12288; self.LD_PP = self.LD_RING + R * 16384
        self.LD_ML = self.LD_PP + 2048; self.LD_FLAG = self.LD_ML + 64; self.LD_XB = self.LD_FLAG + 64; self.LDS = self.LD_XB + 384
        assert self.LDS <= 163840
    def __call__(self, s): self.L.append(s)
    def lab(self, p="L"):
        self.n += 1; return "%s_%d" % (p, self.n)
    def stamp(self, name):
        if self.o["diag_hold"] and name == self.o["diag_at"]: self("s_memrealtime s[100:101]")
        st = self.o["stamps"]
        if st and name in st:
            i = st.index(name); self("s_memrealtime %s" % sr(sST + 2 * i, 2))
        if st and "c_" + name in st:
            i = st.index("c_" + name); self("s_memtime %s" % sr(sST + 2 * i, 2))
    def lanefn(self, dst, terms, tmp, s=None, const=0, src=vL):
        a = self; first = True
        for sh, nb, mul in terms:
            t = dst if first else tmp
            p2 = mul & (mul - 1) == 0
            if nb >= 6 - sh and src == vL:
                if sh: a("v_lshrrev_b32 v%d, %d, v%d" % (t, sh, src)); x = t
                else: x = src
            elif sh == 0: a("v_and_b32 v%d, %d, v%d" % (t, (1 << nb) - 1, src)); x = t
            else: a("v_bfe_u32 v%d, v%d, %d, %d" % (t, src, sh, nb)); x = t
            if first:
                if p2:
                    if mul > 1 or x != dst: a("v_lshlrev_b32 v%d, %d, v%d" % (dst, mul.bit_length() - 1, x))
                else: a("v_mul_u32_u24 v%d, %d, v%d" % (dst, mul, x))
            elif p2: a("v_lshl_add_u32 v%d, v%d, %d, v%d" % (dst, x, mul.bit_length() - 1, dst))
            else:
                a("v_mul_u32_u24 v%d, %d, v%d" % (tmp, mul, x)); a("v_add_u32 v%d, v%d, v%d" % (dst, tmp, dst))
            first = False
        if s is not None: a("v_add_u32 v%d, s%d, v%d" % (dst, s, dst))
        if const: a("v_add_u32 v%d, %d, v%d" % (dst, const, dst))
    def srd(self, r, p, nbytes, off=None):
        a = self
        if off is None: a("s_mov_b32 s%d, s%d" % (r, p)); a("s_mov_b32 s%d, s%d" % (r + 1, p + 1))
        else: a("s_add_u32 s%d, s%d, s%d" % (r, p, off)); a("s_addc_u32 s%d, s%d, 0" % (r + 1, p + 1))
        a("s_mov_b32 s%d, %s" % (r + 2, nbytes)); a("s_mov_b32 s%d, 0x20000" % (r + 3))
    def skip_unless(self, cmp, a_, b_):
        l = self.lab("L_skip"); self("s_cmp_%s_u32 %s, %s" % (cmp, a_, b_)); self("s_cbranch_scc0 " + l); return l
    def exec_(self, m):
        if m == -1: self("s_mov_b64 exec, -1")
        elif m < (1 << 31): self("s_mov_b64 exec, 0x%x" % m)
        else: self("s_mov_b32 exec_lo, 0x%x" % (m & 0xffffffff)); self("s_mov_b32 exec_hi, 0x%x" % (m >> 32))
    def local_store(self, ins):
        a = self; l = a.lab("L_gs"); b = a.lab("L_gb")
        a("s_cmp_eq_u32 s%d, 0" % sFLAG); a("s_cbranch_scc1 " + l); a(ins); a(b + ":")
        a.ool += [l + ":", ins + " sc1", "s_branch " + b]
    def budget(self):
        return ["s_sub_u32 s%d, s%d, 1" % (sBUD, sBUD), "s_cbranch_scc1 L_done"]
    def check(self, rs, t):
        a = self; rs = list(rs)
        if len(rs) == 1: a("v_cmp_eq_u32 vcc, -1, v%d" % rs[0]); return
        if len(rs) == 2: a("v_max_u32 v%d, v%d, v%d" % (t, rs[0], rs[1])); rs = []
        else: a("v_max3_u32 v%d, v%d, v%d, v%d" % (t, rs[0], rs[1], rs[2])); rs = rs[3:]
        while len(rs) >= 2: a("v_max3_u32 v%d, v%d, v%d, v%d" % (t, t, rs[0], rs[1])); rs = rs[2:]
        if rs: a("v_max_u32 v%d, v%d, v%d" % (t, t, rs[0]))
        a("v_cmp_eq_u32 vcc, -1, v%d" % t)
    def poll(self, loads, rs, t, shadow=None, issued=False, first_wait=0):
        a = self; w = a.lab("L_pw"); r = a.lab("L_pr")
        if not issued:
            for x in loads: a(x)
        if shadow: shadow()
        if first_wait is not None: a("s_waitcnt vmcnt(%d)" % first_wait)
        a(w + ":")
        a.check(rs, t)
        a("s_cbranch_vccnz " + r)
        a.ool += [r + ":"] + a.budget() + list(loads) + ["s_waitcnt vmcnt(0)", "s_branch " + w]

    def dma_loop(self, n, lds, R, vo, so, step, flags, pace):
        a = self; k = len(so); l = a.lab("L_dma")
        for i, x in enumerate(so):
            if isinstance(x, int): a("s_mov_b32 s%d, %d" % (sT0 + i, x - 1024 * i))
            else: x(sT0 + i)
        a("s_mov_b32 m0, %d" % lds)
        a(l + ":")
        for i in range(k):
            if pace: a("s_waitcnt vmcnt(%d)" % (pace - 1))
            a("buffer_load_dwordx4 v%d, %s, s%d offen offset:%d %s lds" % (vo[i], sr(R, 4), sT0 + i, 1024 * i, flags))
        for i in range(k): a("s_add_u32 s%d, s%d, %s" % (sT0 + i, sT0 + i, step))
        a("s_add_u32 m0, m0, %d" % (1024 * k))
        a("s_cmp_lg_u32 m0, %d" % (lds + 1024 * k * n)); a("s_cbranch_scc1 " + l)
    def block(self, b, pace):
        a = self; o = a.o
        if isinstance(b, int):
            seg = b % 3
            if b < 12: gA = b // 3; runs = [4 * (gA // 2) + 2 * (gA % 2) + i for i in (0, 1)]; vo = (5, 6); R = R_K
            else: u = (b - 12) // 3; runs = [4 * (u // 2) + 2 * i + u % 2 for i in (0, 1)]; vo = (7, 7); R = R_V
            a.dma_loop(8, a.LD_RING + (b % a.R) * 16384, R, vo, [r * 196608 + seg * 128 for r in runs], "24576" if o["ilv"] else "3072", "nt", pace)
        elif b[0] == "q":
            n = int(b[1])
            a.dma_loop(5, a.LD_WQ + n * 15360, R_WQ, (vX0,) * 3, [n * 5 * 98304 + 128 * i + 2048 for i in range(3)], "98304", o["wqf"], pace)
        elif b[0] == "w":
            n = int(b[1:])
            a("s_mul_i32 s%d, s%d, %d" % (sT0, sWA, n // 2))
            if n % 2: a("s_add_u32 s%d, s%d, s%d" % (sT0, sT0, sWB))
            a("s_mov_b32 m0, %d" % (a.LD_WL + (n & ~1) * 1024))
            if pace: a("s_waitcnt vmcnt(%d)" % (pace - 1))
            a("buffer_load_dwordx4 v%d, %s, s%d offen offset:%d %s lds" % (vX1, sr(R_WL, 4), sT0, 1024 * (n % 2), o["wlf"]))
        else:
            n0 = o["nwl"] // 2; h = (24 - n0 + 1) // 2; n, cnt = (n0, h) if b == "r0" else (n0 + h, 24 - n0 - h)
            if pace: pace = max(pace, o["Wr"])
            f0 = lambda d: a("s_mul_i32 s%d, s%d, %d" % (d, sWA, n))
            f1 = lambda d: a("s_add_u32 s%d, s%d, s%d" % (d, sT0, sWB))
            a.dma_loop(cnt, a.LD_WL + n * 2048, R_WL, (vX1, vX1), [f0, f1], "s%d" % sWA, o["wlf"], pace)
    def reads(self, s):
        a = self; seg = s % 3; slot = (s % a.R) * 16384
        if s < 12:
            d = KB + 24 * (s // 3) + 8 * seg
            a("ds_read_b128 %s, v8 offset:%d" % (vr(d, 4), slot)); a("ds_read_b128 %s, v9 offset:%d" % (vr(d + 4, 4), slot))
        else:
            u = (s - 12) // 3
            for tt in range(4):
                a("ds_read_b64_tr_b16 %s, v%d offset:%d" % (vr(VB + 8 * (4 * seg + tt) + 2 * u, 2), 8 + tt, slot))
    def plan(self):
        o = self.o; order = []
        qp = list(o["qpos"]); nwl = o["nwl"]; assert nwl % 2 == 0
        per = -(-nwl // (23 - o["wl0"])) if nwl > 0 else 1
        for s in range(-1, 24):
            if s >= 0: order.append(s)
            order += ["q%d" % i for i, p in enumerate(qp) if p == s] + ["w%d" % i for i in range(nwl) if o["wl0"] + i // per == s]
        if 0 <= nwl < 46: order += ["r0", "r1"]
        h = (24 - nwl // 2 + 1) // 2
        size = lambda b: 16 if isinstance(b, int) else {"q": 15, "w": 1, "r": 2 * h if b == "r0" else 48 - nwl - 2 * h}[b[0]]
        upto = []; k = 0
        for s in range(24):
            p = order.index(s); k = max(k, p + 1)
            while k < len(order) and sum(map(size, order[p + 1:k])) < o["Wb"]:
                if isinstance(order[k], int) and order[k] - self.R + 1 > s - 1 and order[k] >= self.R: break
                k += 1
            upto.append(k)
        wait = [sum(map(size, order[order.index(s) + 1:upto[s]])) for s in range(24)]
        return order, upto, wait

    def gather(self, ph):
        a = self; w = a.lab("L_gw"); r = a.lab("L_gr"); ok = a.lab("L_gk")
        ld = []
        for n in range(4):
            a("s_mov_b32 s%d, %d" % (sT0 + n, XP + ph * XPS + n * 5120))
            ld.append("buffer_load_dwordx4 %s, v5, %s, s%d offen sc1" % (vr(12 + 4 * n, 4), sr(R_WS, 4), sT0 + n)); a(ld[-1])
        a(w + ":")
        a("s_waitcnt vmcnt(2)")
        a("v_pk_add_f32 v[28:29], v[12:13], v[16:17]"); a("v_pk_add_f32 v[30:31], v[14:15], v[18:19]")
        a("s_waitcnt vmcnt(1)")
        a("v_pk_add_f32 v[28:29], v[28:29], v[20:21]"); a("v_pk_add_f32 v[30:31], v[30:31], v[22:23]")
        a("s_waitcnt vmcnt(0)")
        a("v_pk_add_f32 v[28:29], v[28:29], v[24:25]"); a("v_pk_add_f32 v[30:31], v[30:31], v[26:27]")
        a("v_permlane32_swap_b32 v28, v30"); a("v_permlane32_swap_b32 v29, v31")
        a("v_pk_add_f32 v[28:29], v[28:29], v[30:31]")
        a("v_pk_add_f32 v[28:29], v[28:29], v[%d:%d]" % (vX0, vX1))
        a("v_cmp_u_f32 vcc, v28, v29")
        a("s_cbranch_vccnz " + r)
        a(ok + ":")
        a("v_cvt_pk_bf16_f32 v28, v28, v29")
        o = [r + ":"] + a.budget() + ["s_mov_b64 %s, 0" % sr(sM1, 2)]
        for n in range(4):
            b = 12 + 4 * n; sk = a.lab("L_gn")
            o += ["v_max3_u32 v30, v%d, v%d, v%d" % (b, b + 1, b + 2), "v_max_u32 v30, v30, v%d" % (b + 3),
                  "v_cmp_eq_u32 vcc, -1, v30", "s_cbranch_vccz " + sk,
                  "s_or_b64 %s, %s, vcc" % (sr(sM1, 2), sr(sM1, 2)), "s_mov_b64 exec, vcc", ld[n], "s_mov_b64 exec, -1", sk + ":"]
        o += ["s_cmp_eq_u64 %s, 0" % sr(sM1, 2), "s_cbranch_scc1 " + ok, "s_waitcnt vmcnt(0)", "s_branch " + w]
        a.ool += o
    def unpack_x(self):
        self("v_lshlrev_b32 v%d, 16, v28" % vX0); self("v_and_b32 v%d, 0xffff0000, v28" % vX1)
    def add_b2(self):
        a = self
        a("v_lshlrev_b32 v60, 16, v%d" % vB); a("v_add_f32 v%d, v%d, v60" % (vX0, vX0))
        a("v_and_b32 v60, 0xffff0000, v%d" % vB); a("v_add_f32 v%d, v%d, v60" % (vX1, vX1))
    def pack_pairs(self):
        a = self
        a("v_mov_b32_dpp v13, v12 row_shl:1 row_mask:0xf bank_mask:0xf bound_ctrl:0")
        a("v_cvt_pk_bf16_f32 v12, v12, v13"); a("v_min_u32 v12, -2, v12")
    def q_base(self, l, dst, st, kind="q"):
        a = self
        if kind == "h":
            a("s_add_u32 s%d, s%d, %d" % (dst, sLOC, L_H + 6144 * l)); a("s_add_u32 s%d, s%d, %d" % (st, sLOC, L_STH + 128 * l))
        elif l == 0:
            a("s_mul_i32 s%d, s%d, %d" % (dst, sHL, Q0S)); a("s_add_u32 s%d, s%d, s%d" % (dst, dst, sLOC)); a("s_add_u32 s%d, s%d, %d" % (dst, dst, L_Q0))
            a("s_add_u32 s%d, s%d, 6144" % (st, dst))
        else:
            a("s_mul_i32 s%d, s%d, 3072" % (dst, sHL)); a("s_add_u32 s%d, s%d, s%d" % (dst, dst, sLOC)); a("s_add_u32 s%d, s%d, %d" % (dst, dst, L_Q1))
            a("s_lshl_b32 s%d, s%d, 6" % (st, sHL)); a("s_add_u32 s%d, s%d, s%d" % (st, st, sLOC)); a("s_add_u32 s%d, s%d, %d" % (st, st, L_ST1))
    def slice_addr(self, dst, unit, hi):
        a = self
        a("v_and_b32 v60, 31, v%d" % vL); a("v_min_u32 v60, 19, v60"); a("s_mul_i32 s%d, s%d, %d" % (sT0, sJ, 20 * unit))
        a.lanefn(dst, [(5, 1, hi)], 61, s=sT0); a("v_lshl_add_u32 v%d, v60, %d, v%d" % (dst, unit.bit_length() - 1, dst))
    def p1_slice_pre(self, l, kind="q"):
        a = self
        a("v_and_b32 v60, 31, v%d" % vL); a("v_cmp_gt_u32 %s, 20, v60" % sr(sF, 2)); a("v_min_u32 v60, 19, v60")
        a.lanefn(35, [(5, 1, 4)], 61, const=a.LD_XB); a("v_lshl_add_u32 v35, v60, 3, v35")
        a.q_base(l, sF + 2, sF + 3, kind)
        a("s_lshl_b32 s%d, s%d, 3" % (sT0, sJ)); a.lanefn(34, [(5, 1, 4)], 61, s=sT0)
        a("v_mov_b32 v61, %s" % ONES)
    def p1_slice_write(self):
        self("ds_write_b32 v35, v28"); self("s_waitcnt lgkmcnt(0)")
    def p1_slice_stats(self):
        a = self
        a.unpack_x()
        a("v_cndmask_b32 v28, 0, v28, %s" % sr(sF, 2))
        a("v_dot2_f32_bf16 v27, v28, v61, 0"); a("v_dot2_f32_bf16 v62, v28, v28, 0")
        a("v_permlane32_swap_b32 v27, v62"); a("v_add_f32 v27, v27, v62"); a("v_mov_b32 v62, v27")
        a("v_permlane16_swap_b32 v27, v62"); a("v_add_f32 v27, v27, v62")
        for k in (8, 4, 2, 1): a("v_add_f32_dpp v27, v27, v27 row_ror:%d row_mask:0xf bank_mask:0xf" % k)
        a("v_min_u32 v27, -2, v27")
        a.exec_((1 << 32) | 1)
        a.local_store("buffer_store_dword v27, v34, %s, s%d offen" % (sr(R_WS, 4), sF + 3))
        a.exec_(-1)
    def p1_prefetch(self, l, kind="q"):
        a = self
        base, seg, rb = (a.LD_WQ, 1024, (128, 256, 512, 3072, 6144, 12288, 24576)) if kind == "q" else (a.LD_WL, 128, (384, 1024, 2048, 4096, 8192, 16384, 32768))
        a("s_lshr_b32 s%d, s%d, 1" % (sT0, sW)); a("s_mul_i32 s%d, s%d, %d" % (sT0, sT0, seg)); a("s_and_b32 s%d, s%d, 1" % (sT1, sW))
        a("s_lshl_b32 s%d, s%d, 6" % (sT1, sT1)); a("s_add_u32 s%d, s%d, s%d" % (sT0, sT0, sT1))
        a.lanefn(18, [(5, 1, rb[4]), (3, 1, rb[3]), (4, 1, rb[2]), (2, 1, rb[0]), (0, 2, 8)], 60, s=sT0, const=base)
        a.lanefn(19, [(4, 1, rb[3]), (3, 1, rb[2]), (2, 1, rb[0]), (0, 2, 8)], 60, s=sT0, const=base + rb[6])
        for t in range(2):
            for u in range(4): a("ds_read_b64_tr_b16 %s, v18 offset:%d" % (vr(36 + 12 * t + 2 * u, 2), (u // 2) * rb[5] + (u % 2) * rb[1] + 32 * t))
            for u in range(2): a("ds_read_b64_tr_b16 %s, v19 offset:%d" % (vr(44 + 12 * t + 2 * u, 2), u * rb[1] + 32 * t))
        a.lanefn(32, [(4, 2, 32), (1, 1, 16), (0, 1, 192)], 60, const=a.LD_XB)
        a.lanefn(33, [(4, 2, 16), (1, 1, 8), (0, 1, 192)], 60, const=a.LD_XB + 128)
        a.zero(24, 32)
        if kind == "q":
            a("s_lshr_b32 s%d, s%d, 1" % (sT0, sJ)); a("s_lshl_b32 s%d, s%d, 2" % (sT0, sT0)); a("s_and_b32 s%d, s%d, 1" % (sT1, sJ))
            a("s_add_u32 s%d, s%d, s%d" % (sT0, sT0, sT1)); a("s_lshl_b32 s%d, s%d, 4" % (sT0, sT0))
            a("s_lshl_b32 s%d, s%d, 9" % (sT1, sW)); a("s_add_u32 s%d, s%d, s%d" % (sT0, sT0, sT1))
            a.lanefn(34, [(4, 1, 256), (1, 1, 32), (2, 2, 4), (5, 1, 3072)], 60, s=sT0)
        else:
            a("s_lshr_b32 s%d, s%d, 1" % (sT0, sW)); a("s_lshl_b32 s%d, s%d, 11" % (sT0, sT0)); a("s_and_b32 s%d, s%d, 1" % (sT1, sW))
            a("s_lshl_b32 s%d, s%d, 9" % (sT1, sT1)); a("s_add_u32 s%d, s%d, s%d" % (sT0, sT0, sT1))
            a("s_lshr_b32 s%d, s%d, 2" % (sT1, sJ)); a("s_lshl_b32 s%d, s%d, 10" % (sT1, sT1)); a("s_add_u32 s%d, s%d, s%d" % (sT0, sT0, sT1))
            a("s_and_b32 s%d, s%d, 3" % (sT1, sJ)); a("s_lshl_b32 s%d, s%d, 2" % (sT1, sT1)); a("s_add_u32 s%d, s%d, s%d" % (sT0, sT0, sT1))
            a.lanefn(34, [(0, 5, 16)], 60, s=sT0)
        a.q_base(l, sT2, sT3, kind)
    def p1_mat(self, l, kind="q"):
        a = self; z = 1 if kind == "c" else 0
        a("ds_read_b128 v[12:15], v32"); a("ds_read_b64 v[16:17], v33")
        a("s_waitcnt lgkmcnt(1)")
        for t in range(2): a("v_smfmac_f32_16x16x64_bf16 %s, v[12:15], %s, v%d" % (vr(24 + 4 * t, 4), vr(36 + 12 * t, 8), vIDX))
        a("s_waitcnt lgkmcnt(0)")
        for t in range(2): a("v_smfmac_f32_16x16x32_bf16 %s, v[16:17], %s, v%d" % (vr(24 + 4 * t, 4), vr(44 + 12 * t, 4), vIDX))
        if kind == "c": a("s_add_u32 s%d, s%d, %d" % (sT3, sLOC, L_CS1))
        a("v_add_f32 v12, v%d, v%d" % (24 + z, 26 + z))
        a("v_add_f32_dpp v12, v%d, v%d quad_perm:[0,1,2,3] row_mask:0x2 bank_mask:0xf" % (28 + z, 30 + z))
        if kind == "q":
            if l == 0:
                a("v_add_f32_dpp v12, v25, v27 quad_perm:[0,1,2,3] row_mask:0x4 bank_mask:0xf")
                a("v_add_f32_dpp v12, v29, v31 quad_perm:[0,1,2,3] row_mask:0x8 bank_mask:0xf")
            a.pack_pairs(); a.exec_(0x5555555555555555 if l == 0 else 0x55555555)
        else:
            a("v_min_u32 v12, -2, v12"); a.exec_(0xffffffff)
        a.local_store("buffer_store_dword v12, v34, %s, s%d offen" % (sr(R_WS, 4), sT3 if kind == "c" else sT2))
        a.exec_(-1)
        if kind == "c": a.zero(24, 32)

    def q_loads(self, l, addr, addr2, st):
        a = self
        a.q_base(l, sT2, sT3)
        a.lanefn(addr, [(0, 6, 16)], 60, s=sT2); a.lanefn(addr2, [(0, 3, 8)], 60, s=sT3)
        ld = ["buffer_load_dwordx2 %s, v%d, %s, 0 offen sc1" % (vr(st, 2), addr2, sr(R_WS, 4))]
        ld += ["buffer_load_dwordx4 %s, v%d, %s, 0 offen offset:%d sc1" % (vr(12 + 4 * k, 4), addr, sr(R_WS, 4), 1024 * k) for k in range(3)]
        return ld
    def zero(self, lo, hi):
        for r in range(lo, hi, 2): self("v_mov_b64 v[%d:%d], 0" % (r, r + 1))
    def qk(self, A, dst, side=()):
        a = self; side = list(side)
        ext = lambda g: ["v_pk_add_f32 %s, %s, %s" % (vr(24 + 4 * g, 2), vr(24 + 4 * g, 2), vr(26 + 4 * g, 2)), "v_add_f32 v%d, v%d, v%d" % (24 + 4 * g, 24 + 4 * g, 25 + 4 * g)]
        for n, g in enumerate((0, 2, 1, 3)):
            for k in range(3):
                a("v_smfmac_f32_16x16x64_bf16 %s, %s, %s, v%d" % (vr(24 + 4 * g, 4), vr(A + 4 * k, 4), vr(KB + 24 * g + 8 * k, 8), vIDX))
                if n == 3 and k == 0: side += ext(0) + ext(2)
                for _ in range(2):
                    if side: a(side.pop(0))
        for x in side: a(x)
        a("v_permlane32_swap_b32 v24, v32"); a("v_add_f32 v24, v24, v32")
        for x in ext(1) + ext(3): a(x)
        a("v_permlane32_swap_b32 v28, v36"); a("v_add_f32 v28, v28, v36")
        a("v_permlane16_swap_b32 v24, v28"); a("v_add_f32 v%d, v24, v28" % dst)
    def stats_ops(self, st, att=True):
        c = 192 ** -0.5 * math.log2(math.e); o = []
        for k in (4, 2, 1):
            o += ["v_add_f32_dpp v%d, v%d, v%d row_ror:%d row_mask:0xf bank_mask:0xf" % (r, r, r, k) for r in (st, st + 1)]
        o += ["v_mul_f32 v%d, %s, v%d" % (r, f32(1.0 / 640), r) for r in (st, st + 1)]
        o += ["v_fma_f32 v%d, -v%d, v%d, v%d" % (st + 1, st, st, st + 1), "v_max_f32 v%d, 0, v%d" % (st + 1, st + 1),
              "v_add_f32 v%d, %s, v%d" % (st + 1, f32(1e-5), st + 1), "v_rsq_f32 v%d, v%d" % (st + 1, st + 1)]
        if att: o += ["s_mov_b32 vcc_lo, 0x55555555", "v_mul_f32 v%d, %s, v%d" % (st + 1, f32(c), st + 1), "s_mov_b32 vcc_hi, 0x55555555"]
        return o
    def softmax(self, st):
        a = self
        a("v_fma_f32 v24, -v%d, v%d, v24" % (st, vKC))
        a("v_max_f32_dpp v21, v24, v24 row_ror:8 row_mask:0xf bank_mask:0xf")
        for k in (4, 2, 1): a("v_max_f32_dpp v21, v21, v21 row_ror:%d row_mask:0xf bank_mask:0xf" % k)
        a("v_max_f32_dpp v21, v21, v21 row_bcast:15 row_mask:0xa bank_mask:0xf")
        a("v_max_f32_dpp v21, v21, v21 row_bcast:31 row_mask:0xc bank_mask:0xf")
        a("v_readlane_b32 s%d, v21, 63" % sT0)
        a("v_subrev_f32 v24, s%d, v24" % sT0); a("v_mul_f32 v24, v24, v%d" % (st + 1)); a("v_exp_f32 v22, v24")
        a("v_mul_f32 v20, s%d, v%d" % (sT0, st + 1))
        a("v_mov_b32_dpp v23, v22 row_shl:1 row_mask:0xf bank_mask:0xf bound_ctrl:0")
        a("v_cvt_pk_bf16_f32 v23, v22, v23"); a("v_cndmask_b32 v12, 0, v23, vcc")
        a("v_mov_b32 v21, v22")
        for r in (1, 2, 3): a("v_mov_b32_dpp v%d, v12 row_shl:%d row_mask:0xf bank_mask:0xf bound_ctrl:0" % (12 + r, 4 * r))
    def side_ops(self):
        a = self
        o = ["v_mov_b32_dpp v16, v12 row_shr:1 row_mask:0xf bank_mask:0xf bound_ctrl:0"]
        o += ["v_mov_b32_dpp v%d, v12 row_shl:%d row_mask:0xf bank_mask:0xf bound_ctrl:0" % (16 + r, 4 * r - 1) for r in (1, 2, 3)]
        red = ["v_permlane32_swap_b32 v21, v22", "v_add_f32 v21, v21, v22", "v_mov_b32 v22, v21",
               "v_permlane16_swap_b32 v21, v22", "v_add_f32 v21, v21, v22"]
        red += ["v_add_f32_dpp v21, v21, v21 row_ror:%d row_mask:0xf bank_mask:0xf" % k for k in (8, 4, 2, 1)]
        return o, red
    def ml_addr(self, dst):
        self("s_lshl_b32 s%d, s%d, 3" % (sT1, sW)); self("s_add_u32 s%d, s%d, %d" % (sT1, sT1, self.LD_ML)); self("v_mov_b32 v%d, s%d" % (dst, sT1))
    def pv(self, T):
        self("v_smfmac_f32_16x16x64_bf16 %s, %s, %s, v%d" % (vr(40 + 4 * (T // 2), 4), vr(12 + 4 * (T % 2), 4), vr(VB + 8 * T, 8), vIDX))
    def pv_ext(self, m):
        self("v_pk_add_f32 %s, %s, %s" % (vr(24 + 2 * m, 2), vr(40 + 4 * m, 2), vr(42 + 4 * m, 2)))
    def oc_addr(self):
        self.lanefn(36, [(0, 4, 16)], 60, s=sRING, const=(22 % self.R) * 16384)
    def oc_write(self, tq):
        self("ds_write_b128 v36, %s offset:%d" % (vr(24 + 4 * tq, 4), 256 * tq))
    def ml_calc(self, l):
        a = self
        a.lanefn(37, [(0, 3, 8)], 60, const=a.LD_ML)
        a("ds_read_b64 v[38:39], v37")
        a("s_lshl_b32 s%d, s%d, 3" % (sT0, sHL)); a("s_add_u32 s%d, s%d, s%d" % (sT0, sT0, sJ)); a("s_lshl_b32 s%d, s%d, 2" % (sT0, sT0))
        a("v_mov_b32 v23, s%d" % sT0)
        a("s_add_u32 s%d, s%d, %d" % (sT0, sLOC, L_LSE + 128 * l))
        a("s_waitcnt lgkmcnt(0)")
        a("v_max_f32_dpp v37, v38, v38 row_ror:4 row_mask:0xf bank_mask:0xf")
        for k in (2, 1): a("v_max_f32_dpp v37, v37, v37 row_ror:%d row_mask:0xf bank_mask:0xf" % k)
        a("v_sub_f32 v38, v38, v37"); a("v_exp_f32 v38, v38"); a("v_mul_f32 v39, v38, v39")
        for k in (4, 2, 1): a("v_add_f32_dpp v39, v39, v39 row_ror:%d row_mask:0xf bank_mask:0xf" % k)
        a("v_log_f32 v22, v39"); a("v_rcp_f32 v39, v39")
        a("v_add_f32 v22, v22, v37"); a("v_min_u32 v22, -2, v22"); a("v_mul_f32 v38, v38, v39")
        sk = a.skip_unless("eq", "s%d" % sW, 0)
        a.exec_(1)
        a.local_store("buffer_store_dword v22, v23, %s, s%d offen" % (sr(R_WS, 4), sT0))
        a.exec_(-1)
        a(sk + ":")
        for w in range(8): a("v_readlane_b32 s%d, v38, %d" % (sF + w, w))
    def combine_addr(self, l):
        a = self
        a("s_mul_i32 s%d, s%d, 48" % (sT0, sW)); a("v_add_u32 v38, s%d, v%d" % (sT0, vL))
        a.lanefn(20, [(5, 2, 256), (0, 4, 16), (4, 1, 8)], 39, const=a.LD_RING + (22 % a.R) * 16384, src=38)
        a("s_lshr_b32 s%d, s%d, 1" % (sT0, sJ)); a("s_lshl_b32 s%d, s%d, 2" % (sT0, sT0)); a("s_and_b32 s%d, s%d, 1" % (sT1, sJ))
        a("s_add_u32 s%d, s%d, s%d" % (sT0, sT0, sT1))
        a("s_lshl_b32 s%d, s%d, 4" % (sT1, sT0)); a("s_lshl_b32 s%d, s%d, 3" % (sT0, sT0))
        a.lanefn(21, [(3, 2, 256), (2, 1, 32), (0, 2, 4)], 39, s=sT1)
        a.lanefn(38, [(3, 1, 256), (1, 1, 128), (2, 1, 16), (0, 1, 4)], 39, s=sT0, const=1024)
        a("v_cmp_gt_u32 vcc, 32, v%d" % vL); a("v_cndmask_b32 v21, v38, v21, vcc")
        a("s_lshl_b32 s%d, s%d, 1" % (sT0, sHL)); a("s_add_u32 s%d, s%d, s%d" % (sT0, sT0, sW)); a("s_mul_i32 s%d, s%d, 1536" % (sT0, sT0))
        a("s_add_u32 s%d, s%d, s%d" % (sT0, sT0, sLOC)); a("s_add_u32 s%d, s%d, %d" % (sT0, sT0, L_O + l * 12288))
        a("v_add_u32 v21, s%d, v21" % sT0)
    def combine(self):
        a = self
        a.exec_((1 << 48) - 1)
        for w in range(8): a("ds_read_b64 %s, v20 offset:%d" % (vr(40 + 2 * w, 2), w * 2048))
        for w in range(8):
            a("s_waitcnt lgkmcnt(%d)" % (7 - w))
            op = "v_mul_f32" if w == 0 else "v_fmac_f32"
            a("%s v56, s%d, v%d" % (op, sF + w, 40 + 2 * w)); a("%s v57, s%d, v%d" % (op, sF + w, 41 + 2 * w))
        a("v_cvt_pk_bf16_f32 v56, v56, v57"); a("v_min_u32 v56, -2, v56")
        a.local_store("buffer_store_dword v56, v21, %s, 0 offen" % sr(R_WS, 4))
        a.exec_(-1)

    def canary_store(self, ph):
        a = self
        a("s_lshl_b32 s%d, s%d, 2" % (sT0, sAI)); a("s_add_u32 s%d, s%d, s%d" % (sT0, sT0, sLOC)); a("s_add_u32 s%d, s%d, %d" % (sT0, sT0, L_CAN + 128 * ph))
        a.exec_(1)
        a.local_store("buffer_store_dword v%d, v%d, %s, s%d offen" % (vL, vL, sr(R_WS, 4), sT0))
        a.exec_(-1)
    def canary_poll(self, ph):
        a = self
        a("s_add_u32 s%d, s%d, %d" % (sT0, sLOC, L_CAN + 128 * ph))
        a("v_min_u32 v9, 19, v%d" % vL); a("v_lshlrev_b32 v9, 2, v9")
        a.poll(["buffer_load_dword v12, v9, %s, s%d offen sc1" % (sr(R_WS, 4), sT0)], [12], 13)
    def p3(self, l):
        a = self
        a("s_lshr_b32 s%d, s%d, 1" % (sT0, sW)); a("s_lshl_b32 s%d, s%d, 5" % (sT0, sT0)); a("s_add_u32 s%d, s%d, s%d" % (sT0, sT0, sLOC))
        a("s_add_u32 s%d, s%d, %d" % (sT2, sT0, L_LSE + 128 * l))
        a.lanefn(5, [(0, 3, 4)], 60); a.lanefn(22, [(4, 2, 8)], 60)
        lse = ["buffer_load_dword v18, v5, %s, s%d offen sc1" % (sr(R_WS, 4), sT2), "buffer_load_dwordx2 v[20:21], v22, %s, s%d offen sc1" % (sr(R_WS, 4), sT2)]
        def sh1():
            a("s_mul_i32 s%d, s%d, 6144" % (sT0, sW))
            a.lanefn(7, [(2, 4, 64), (4, 1, 32), (0, 2, 8)], 60, s=sT0, const=a.LD_WL)
            a("v_xor_b32 v8, 32, v7")
            a("s_mul_i32 s%d, s%d, 1536" % (sT3, sW)); a("s_add_u32 s%d, s%d, s%d" % (sT3, sT3, sLOC)); a("s_add_u32 s%d, s%d, %d" % (sT3, sT3, L_O + l * 12288))
            a("v_lshlrev_b32 v9, 4, v%d" % vL); a("v_lshlrev_b32 v10, 3, v%d" % vL)
            for t in range(2):
                for m in range(6): a("ds_read_b64_tr_b16 %s, v%d offset:%d" % (vr(36 + 12 * t + 2 * m, 2), 7 + t, 1024 * m))
            for r in range(24, 32, 2): a("v_mov_b64 v[%d:%d], 0" % (r, r + 1))
            a("s_lshl_b32 s%d, s%d, 8" % (sT0, sW))
            a.lanefn(11, [(0, 6, 4)], 60, s=sT0, const=a.LD_PP)
        a.poll(lse, [18, 20, 21], 19, shadow=sh1)
        ol = ["buffer_load_dwordx4 v[12:15], v9, %s, s%d offen sc1" % (sr(R_WS, 4), sT3),
              "buffer_load_dwordx2 v[16:17], v10, %s, s%d offen offset:1024 sc1" % (sr(R_WS, 4), sT3)]
        def sh2():
            a("v_max_f32_dpp v19, v18, v18 row_ror:4 row_mask:0xf bank_mask:0xf")
            for k in (2, 1): a("v_max_f32_dpp v19, v19, v19 row_ror:%d row_mask:0xf bank_mask:0xf" % k)
            for r in (18, 20, 21): a("v_sub_f32 v%d, v%d, v19" % (r, r))
            for r in (18, 20, 21): a("v_exp_f32 v%d, v%d" % (r, r))
            for k in (4, 2, 1): a("v_add_f32_dpp v18, v18, v18 row_ror:%d row_mask:0xf bank_mask:0xf" % k)
            a("v_rcp_f32 v18, v18"); a("v_mul_f32 v20, v20, v18"); a("v_mul_f32 v21, v21, v18")
            a("s_waitcnt lgkmcnt(0)")
        a.poll(ol, range(12, 18), 19, shadow=sh2)
        a.stamp("o_in%d" % l)
        for t in range(2): a("v_smfmac_f32_16x16x64_bf16 %s, v[12:15], %s, v%d" % (vr(24 + 4 * t, 4), vr(36 + 12 * t, 8), vIDX))
        for t in range(2): a("v_smfmac_f32_16x16x32_bf16 %s, v[16:17], %s, v%d" % (vr(24 + 4 * t, 4), vr(44 + 12 * t, 4), vIDX))
        for t in range(2): a("v_pk_add_f32 %s, %s, %s" % (vr(24 + 4 * t, 2), vr(24 + 4 * t, 2), vr(26 + 4 * t, 2)))
        for t in range(2): a("v_mul_f32 v%d, v%d, v20" % (24 + 4 * t, 24 + 4 * t))
        for t in range(2): a("v_fmac_f32 v%d, v%d, v21" % (24 + 4 * t, 25 + 4 * t))
        a("v_permlane32_swap_b32 v24, v28"); a("v_add_f32 v24, v24, v28")
        a("ds_write_b32 v11, v24")
        a.lanefn(5, [(0, 6, 4)], 60, const=a.LD_PP)
        a("s_mul_i32 s%d, s%d, 2560" % (sT2, sX)); a("s_lshl_b32 s%d, s%d, 7" % (sT1, sAI)); a("s_add_u32 s%d, s%d, s%d" % (sT2, sT2, sT1))
        a("s_add_u32 s%d, s%d, %d" % (sT2, sT2, XP + 2 * l * XPS - 64))
        a("v_lshlrev_b32 v9, 2, v%d" % vL)
        a("s_waitcnt lgkmcnt(0)")
        a("s_barrier")
        sk = a.skip_unless("eq", "s%d" % sW, 2)
        for n in range(4): a("ds_read2st64_b32 %s, v5 offset0:%d offset1:%d" % (vr(12 + 2 * n, 2), 2 * n, 2 * n + 1))
        a("s_waitcnt lgkmcnt(2)"); a("v_pk_add_f32 v[12:13], v[12:13], v[14:15]")
        a("s_waitcnt lgkmcnt(0)"); a("v_pk_add_f32 v[16:17], v[16:17], v[18:19]")
        a("v_pk_add_f32 v[12:13], v[12:13], v[16:17]"); a("v_add_f32 v12, v12, v13"); a("v_mov_b32 v13, v12")
        a("v_permlane16_swap_b32 v12, v13"); a("v_add_f32 v12, v12, v13"); a("v_min_u32 v12, -2, v12")
        a.exec_(0xffffffff << 16)
        a("buffer_store_dword v12, v9, %s, s%d offen sc1" % (sr(R_WS, 4), sT2))
        a.stamp("xp_pub%d" % (2 * l))
        a.canary_store(2 * l)
        a(sk + ":")
    def p4b(self, l):
        a = self
        a("s_sub_u32 s%d, s%d, 5" % (sT3, sW))
        a("s_mul_i32 s%d, s%d, 6144" % (sT2, sT3)); a("s_add_u32 s%d, s%d, %d" % (sT2, sT2, a.LD_W2))
        if l == 0:
            a.srd(R_WQ, P_W2, 1536 * 1280)
            a("s_mul_i32 s%d, s%d, %d" % (sT0, sX, 192 * 1280)); a("s_lshl_b32 s%d, s%d, 6" % (sT1, sAI)); a("s_add_u32 s%d, s%d, s%d" % (sT0, sT0, sT1))
            a("s_lshl_b32 s%d, s%d, 5" % (sT1, sT3)); a("s_add_u32 s%d, s%d, s%d" % (sT0, sT0, sT1))
            a.lanefn(5, [(1, 5, 1280), (0, 1, 16)], 60, s=sT0)
            for m in range(6):
                a("s_add_u32 m0, s%d, %d" % (sT2, 1024 * m)); a("s_mov_b32 s%d, %d" % (sT0, m * 32 * 1280))
                a("buffer_load_dwordx4 v5, %s, s%d offen nt lds" % (sr(R_WQ, 4), sT0))
        a("s_mul_i32 s%d, s%d, 384" % (sT0, sX))
        a.lanefn(5, [(0, 6, 2)], 60, s=sT0)
        for k in range(3): a("global_load_ushort v%d, v5, %s offset:%d" % (8 + k, sr(P_B1, 2), 128 * k))
        a("v_lshlrev_b32 v11, 4, v%d" % vL)
        a.lanefn(7, [(4, 2, 8 * 32), (2, 2, 32), (0, 2, 8)], 60, s=sT2)
        a("s_mul_i32 s%d, s%d, 2560" % (sT0, sX)); a("s_lshl_b32 s%d, s%d, 7" % (sT1, sAI)); a("s_add_u32 s%d, s%d, s%d" % (sT0, sT0, sT1))
        a("s_lshl_b32 s%d, s%d, 6" % (sT3, sT3)); a("s_add_u32 s%d, s%d, s%d" % (sT3, sT3, sT0)); a("s_add_u32 s%d, s%d, %d" % (sT3, sT3, XP + (2 * l + 1) * XPS))
        six = lambda: ["buffer_load_dwordx4 %s, v11, %s, s%d offen offset:%d sc1" % (vr(12 + 4 * n, 4), sr(R_WS, 4), sT1 + n // 3, 1024 * (n % 3)) for n in range(6)]
        def sums(d, waits):
            o = []
            for k in range(3):
                b = 12 + 8 * k
                if waits: o.append("s_waitcnt vmcnt(%d)" % (4 - 2 * k))
                o += ["v_pk_add_f32 %s, %s, %s" % (vr(b, 2), vr(b, 2), vr(b + 2, 2)), "v_pk_add_f32 %s, %s, %s" % (vr(b + 4, 2), vr(b + 4, 2), vr(b + 6, 2)),
                      "v_pk_add_f32 %s, %s, %s" % (vr(b, 2), vr(b, 2), vr(b + 4, 2)), "v_add_f32 v%d, v%d, v%d" % (d[k], b, b + 1)]
            return o
        a("s_add_u32 s%d, s%d, %d" % (sT1, sLOC, L_CS1)); a("s_add_u32 s%d, s%d, 3072" % (sT2, sT1))
        a.poll(six(), range(12, 36), 60)
        for k in range(3):
            for u in range(4):
                a("ds_read_b64_tr_b16 %s, v7 offset:%d" % (vr(36 + 8 * k + 2 * u, 2), (64 * k + 32 * (u // 2) + 4 * (u % 2)) * 32))
        for x in sums((4, 5, 7), False): a(x)
        for k in range(3): a("v_lshlrev_b32 v%d, 16, v%d" % (8 + k, 8 + k))
        a.zero(60, 64)
        a.q_base(l, sT1, sT0, "h"); a("s_add_u32 s%d, s%d, 3072" % (sT2, sT1))
        k2 = -2.0 * math.log2(math.e) * math.sqrt(2.0 / math.pi)
        a("s_mov_b32 s%d, %s" % (sF, f32(k2 * 0.044715)))
        a.lanefn(12, [(0, 3, 8)], 60)
        a.poll(["buffer_load_dwordx2 v[2:3], v12, %s, s%d offen sc1" % (sr(R_WS, 4), sT0)], [2, 3], 13, shadow=lambda: a("s_waitcnt lgkmcnt(0)"))
        for x in six(): a(x)
        for x in a.stats_ops(2, False): a(x)
        a("v_mul_f32 v2, v2, v3")
        for k, c in enumerate((4, 5, 7)): a("v_fma_f32 v%d, -v2, v%d, v%d" % (8 + k, c, 8 + k))
        a("v_lshlrev_b32 v7, 2, v%d" % vL); a("v_mov_b32 v2, %s" % f32(k2))
        r = a.lab("L_hr"); ok = a.lab("L_hk")
        for x in sums((12, 13, 14), True): a(x)
        a("v_add_f32 v15, v12, v13"); a("v_cmp_u_f32 vcc, v15, v14"); a("s_cbranch_vccnz " + r)
        a(ok + ":")
        keep = a.L; a.L = []
        a(r + ":"); a.poll(six(), range(12, 36), 4)
        for x in sums((12, 13, 14), False): a(x)
        a("s_branch " + ok)
        blk = a.L; a.L = keep; a.ool += blk
        a.stamp("h_in%d" % l)
        H = (12, 13, 14); T = (16, 17, 18)
        for k in range(3): a("v_fma_f32 v%d, v%d, v3, v%d" % (H[k], H[k], 8 + k))
        for k in range(3): a("v_mul_f32 v%d, v%d, v%d" % (T[k], H[k], H[k]))
        for k in range(3): a("v_fma_f32 v%d, v%d, s%d, v2" % (T[k], T[k], sF))
        for k in range(3): a("v_mul_f32 v%d, v%d, v%d" % (T[k], T[k], H[k]))
        for k in range(3): a("v_exp_f32 v%d, v%d" % (T[k], T[k]))
        for k in range(3): a("v_add_f32 v%d, 1.0, v%d" % (T[k], T[k]))
        for k in range(3): a("v_rcp_f32 v%d, v%d" % (T[k], T[k]))
        for k in range(3): a("v_mul_f32 v%d, v%d, v%d" % (H[k], H[k], T[k]))
        for k in range(3): a("v_mov_b32_dpp v%d, v%d row_shl:1 row_mask:0xf bank_mask:0xf bound_ctrl:0" % (T[k], H[k]))
        for k in range(3): a("v_cvt_pk_bf16_f32 v%d, v%d, v%d" % (20 + 4 * k, H[k], T[k]))
        mm = lambda k: a("v_smfmac_f32_16x16x64_bf16 v[60:63], %s, %s, v%d" % (vr(20 + 4 * k, 4), vr(36 + 8 * k, 8), vIDX))
        for k in range(3):
            for r_ in (1, 2, 3): a("v_mov_b32_dpp v%d, v%d row_shl:%d row_mask:0xf bank_mask:0xf bound_ctrl:0" % (20 + 4 * k + r_, 20 + 4 * k, 4 * r_))
            if k: mm(k - 1)
        mm(2)
        a("v_add_f32 v60, v60, v62"); a("v_min_u32 v60, -2, v60")
        a.exec_(0xffff)
        a("buffer_store_dword v60, v7, %s, s%d offen sc1" % (sr(R_WS, 4), sT3))
        a.stamp("xp_pub%d" % (2 * l + 1))
        sk = a.skip_unless("eq", "s%d" % sW, 6)
        a.canary_store(2 * l + 1)
        a(sk + ":")
        a.exec_(-1)
    def slab(self, l, kind, ph, lazy=False):
        a = self
        sk = a.skip_unless("lt", "s%d" % sW, 6)
        a.p1_prefetch(l, kind)
        if kind == "h" and l == 0: a.p1_mat(l, "c")
        a(sk + ":")
        sk = a.skip_unless("eq", "s%d" % sW, 7)
        a.slice_addr(5, 16, 2560); a.p1_slice_pre(l, kind)
        if lazy:
            sk2 = a.skip_unless("lg", "s%d" % sHL, 3)
            a("s_add_u32 s%d, s%d, %d" % (sT0, sLOC, L_STH)); a("v_mov_b32 v9, 0")
            a.poll(["buffer_load_dword v12, v9, %s, s%d offen sc1" % (sr(R_WS, 4), sT0)], [12], 13)
            a.gather(ph - 1); a.unpack_x()
            a(sk2 + ":")
        if kind == "q": a.add_b2()
        a.canary_poll(ph)
        a.stamp("can%d" % ph)
        a.gather(ph)
        a.stamp("xp_in%d" % ph)
        a.p1_slice_write()
        a(sk + ":")
        a("s_barrier")
        if a.o["stamps"] and "bx%d" % ph in a.o["stamps"]: a.stamp("bx%d" % ph); a("s_waitcnt lgkmcnt(0)")
        sk = a.skip_unless("lt", "s%d" % sW, 6)
        a.p1_mat(l, kind)
        a.stamp("q1_pub" if kind == "q" else "h_pub%d" % l)
        a(sk + ":")
        sk = a.skip_unless("eq", "s%d" % sW, 7)
        a.p1_slice_stats()
        a(sk + ":")

    def build(self):
        a = self; o = a.o
        W = lambda w: a.skip_unless("eq", "s%d" % sW, w)
        if o["diag_hold"]: a("s_mov_b64 s[100:101], 0")
        a.stamp("start")
        a("s_load_dwordx16 s[4:19], s[0:1], 0"); a("s_load_dwordx8 s[20:27], s[0:1], 64"); a("s_load_dwordx2 s[28:29], s[0:1], 96")
        a("s_cmp_ge_u32 s2, 256"); a("s_cbranch_scc1 L_exit")
        if o["l2warm"]:
            a("s_getpc_b64 %s" % sr(sM1, 2)); a("L_pc:")
            a("v_lshlrev_b32 v5, 6, v0"); a("v_min_u32 v5, L_exit-L_pc, v5")
            a("global_load_dword v59, v5, %s" % sr(sM1, 2))
        a("v_lshrrev_b32 v5, 6, v0"); a("v_and_b32 v0, 63, v0"); a("v_readfirstlane_b32 s%d, v5" % sW)
        a("s_and_b32 s%d, s2, 7" % sX); a("s_lshr_b32 s%d, s2, 3" % sC); a("s_and_b32 s%d, s%d, 3" % (sHL, sC)); a("s_lshr_b32 s%d, s%d, 2" % (sJ, sC))
        a("s_lshl_b32 s%d, s%d, 2" % (sH, sX)); a("s_add_u32 s%d, s%d, s%d" % (sH, sH, sHL))
        a("s_mul_i32 s%d, s%d, 3" % (sAI, sJ)); a("s_add_u32 s%d, s%d, s%d" % (sAI, sAI, sHL)); a("s_cmp_eq_u32 s%d, 3" % sHL); a("s_cselect_b32 s%d, 31, s%d" % (sAI, sAI))
        a.lanefn(8, [(5, 1, 4), (4, 1, 1)], 60); a("v_and_b32 v9, 7, v0"); a("v_xor_b32 v8, v8, v9")
        a.lanefn(10, [(3, 3, 384)], 60); a("v_lshl_add_u32 v5, v8, 4, v10"); a("v_xor_b32 v6, 32, v5")
        a.lanefn(8, [(4, 2, 2)], 60); a("v_xor_b32 v8, v8, v9"); a("v_lshl_add_u32 v7, v8, 4, v10")
        a.lanefn(vX0, [(3, 3, 12288), (0, 3, 16)], 60)
        a("s_mul_i32 s%d, s%d, 12582912" % (sT0, sH)); a("s_mul_i32 s%d, s%d, %d" % (sT1, sJ, 3072 if o["ilv"] else 24576))
        a("s_add_u32 s%d, s%d, s%d" % (sT0, sT0, sT1)); a("s_add_u32 s%d, s%d, 11010048" % (sT0, sT0))
        a("s_sub_u32 s%d, 1572864, s%d" % (sT1, sT1))
        a("s_mul_i32 s%d, s%d, 384" % (sT2, sH)); a("s_mul_i32 s%d, s%d, %d" % (sT3, sJ, 80 * 12288)); a("s_add_u32 s%d, s%d, s%d" % (sT2, sT2, sT3))
        a("s_sub_u32 s%d, %d, s%d" % (sT3, 640 * 12288 + 2048, sT2))
        a("s_lshl_b32 s%d, s%d, 11" % (sRING, sW)); a("s_add_u32 s%d, s%d, %d" % (sRING, sRING, a.LD_RING))
        a("s_mul_i32 s%d, s%d, %d" % (sLOC, sX, LOC))
        a("s_lshl_b32 s%d, s%d, 8" % (sARR, sX)); a("s_add_u32 s%d, s%d, %d" % (sARR, sARR, ARR))
        a("s_mov_b32 s%d, %d" % (sBUD, o["budget"])); a("s_mov_b32 s%d, 1" % sFLAG)
        a("s_getreg_b32 s%d, hwreg(20, 0, 3)" % sXCC)
        for r in (11, vX1, 21, 34, 62, 63): a("v_mov_b32 v%d, 0" % r)
        a("v_mov_b64 v[12:13], -1"); a("v_mov_b64 v[14:15], -1"); a("v_lshlrev_b32 v10, 4, v0")
        a("s_waitcnt lgkmcnt(0)")
        a.srd(R_K, P_K, "s%d" % sT1, off=sT0); a.srd(R_V, P_V, "s%d" % sT1, off=sT0); a.srd(R_WS, P_WS, WS_BYTES)
        a.srd(R_WQ, P_WQ, "s%d" % sT3, off=sT2); a("s_sub_u32 s%d, s%d, 2048" % (R_WQ, R_WQ)); a("s_subb_u32 s%d, s%d, 0" % (R_WQ + 1, R_WQ + 1))
        a.stamp("pre_dma")
        order, upto, wait = a.plan(); done = [0]
        def wl_setup():
            lb = a.lab("L_wb"); le = a.lab("L_we")
            a("s_cmp_lg_u32 s%d, 3" % sHL); a("s_cbranch_scc0 " + lb)
            a("s_mul_i32 s%d, s%d, %d" % (sT0, sX, 768 * 1280)); a("s_lshl_b32 s%d, s%d, 6" % (sT1, sAI)); a("s_add_u32 s%d, s%d, s%d" % (sT0, sT0, sT1))
            a.lanefn(38, [(4, 1, 2)], 39); a("v_xor_b32 v38, v38, v0"); a("v_and_b32 v38, 3, v38")
            a.lanefn(vX1, [(5, 1, 8 * 1280), (4, 1, 2 * 1280), (3, 1, 4 * 1280), (2, 1, 16 * 1280)], 39, s=sT0); a("v_lshl_add_u32 v%d, v38, 4, v%d" % (vX1, vX1))
            a("s_mov_b32 s%d, %d" % (sWA, 32 * 1280)); a("s_mov_b32 s%d, %d" % (sWB, 1280 - 1024))
            a("s_branch " + le)
            a(lb + ":")
            a("s_mul_i32 s%d, s%d, 384" % (sT0, sX)); a("s_mul_i32 s%d, s%d, %d" % (sT1, sJ, 80 * 3072)); a("s_add_u32 s%d, s%d, s%d" % (sT0, sT0, sT1))
            a.lanefn(vX1, [(0, 6, 16)], 39, s=sT0)
            a("v_mov_b32 v38, %d" % (3072 - 384)); a("v_cmp_lt_u32 vcc, 23, v0"); a("v_cndmask_b32 v38, 0, v38, vcc"); a("v_add_u32 v%d, v38, v%d" % (vX1, vX1))
            a("v_mov_b32 v38, 0x7f000000"); a("v_cmp_lt_u32 vcc, 47, v0"); a("v_cndmask_b32 v%d, v%d, v38, vcc" % (vX1, vX1))
            a("s_mov_b32 s%d, %d" % (sWA, 4 * 3072)); a("s_mov_b32 s%d, %d" % (sWB, 2 * 3072 - 1024))
            a(le + ":")
        def issue(k, burst=False, first=False):
            if done[0] >= k: return
            sk = W(LOADER)
            if first and o["prio"]: a("s_setprio %d" % o["prio"])
            for i in range(done[0], k):
                if order[i] == ("w0" if o["nwl"] else "r0"): wl_setup()
                a.block(order[i], None if burst or i >= o["burst_from"] else o["W"])
            a(sk + ":"); done[0] = k
        issue(upto[0], first=True)
        a.stamp("post_dma")
        assert "w0" not in order[:upto[0]]
        a("s_cmp_lt_u32 s%d, 20" % sAI); a("s_cselect_b32 s%d, %d, 0" % (sT0, 6144 * 1280))
        a("s_add_u32 s%d, s%d, 1" % (sT1, sJ)); a("s_mul_i32 s%d, s%d, %d" % (sT1, sT1, 80 * 3072))
        a("s_cmp_lg_u32 s%d, 3" % sHL); a("s_cselect_b64 %s, %s, %s" % (sr(R_WL, 2), sr(P_WO, 2), sr(P_W1, 2)))
        a("s_cselect_b32 s%d, s%d, s%d" % (R_WL + 2, sT0, sT1)); a("s_mov_b32 s%d, 0x20000" % (R_WL + 3))
        sk = W(9 if o["strip"] & 2 else CTRL)
        sk2 = a.skip_unless("eq", "s%d" % sC, 31)
        a.exec_(0xffff)
        a("buffer_store_dwordx4 v[12:15], v10, %s, s%d offen sc1" % (sr(R_WS, 4), sARR))
        a(sk2 + ":")
        a("s_mul_i32 s%d, s2, 320" % sT1); a("s_add_u32 s%d, s%d, %d" % (sT1, sT1, XP))
        a.exec_((1 << 20) - 1)
        a("buffer_store_dwordx4 v[12:15], v10, %s, s%d offen sc1" % (sr(R_WS, 4), sT1))
        def clear_local(ad, fl):
            a("s_mul_i32 s%d, s%d, %d" % (sT0, sC, CLR)); a("s_add_u32 s%d, s%d, s%d" % (sT0, sT0, sLOC))
            a.exec_((1 << ((CLR - 1024) // 16)) - 1)
            a("buffer_store_dwordx4 v[12:15], v%d, %s, s%d offen offset:1024 %s" % (ad, sr(R_WS, 4), sT0, fl))
            a.exec_(-1)
            a("buffer_store_dwordx4 v[12:15], v%d, %s, s%d offen %s" % (ad, sr(R_WS, 4), sT0, fl))
        clear_local(10, "")
        a("v_subrev_u32 v16, 8, v0"); a("v_cmp_gt_u32 vcc, 40, v16"); a("v_mov_b32 v16, %s" % ONES); a("v_cndmask_b32 v18, 0, v16, vcc")
        a("v_min_u32 v16, 55, v0"); a("v_lshlrev_b32 v16, 2, v16"); a("v_add_u32 v16, %d, v16" % (a.LD_XB + 160))
        a("ds_write_b32 v16, v18")
        a.lanefn(vX1, [(0, 3, 32)], 60)
        a(sk + ":")
        sk = W(7); a.slice_addr(16, 8, 4)
        a("global_load_dword v28, v16, %s" % sr(P_X, 2)); a("global_load_dword v%d, v16, %s" % (vB, sr(P_B2, 2)))
        a(sk + ":")
        a.lanefn(8, [(1, 3, 1)], 60); a("v_lshrrev_b32 v9, 4, v0"); a("v_xor_b32 v9, v8, v9")
        a.lanefn(8, [(2, 1, 1024), (3, 1, 512), (0, 2, 128)], 60, s=sRING); a("v_lshl_add_u32 v8, v9, 4, v8"); a("v_xor_b32 v9, 64, v8")
        a.lanefn(vIDX, [(1, 1, 0xAAAA)], 60, const=0x4444)

        go_ld = "global_load_dword v%d, v%d, %s sc1" % (vX0, vX1, sr(P_DBG, 2))
        arr_ld = "buffer_load_dwordx4 v[24:27], v%d, %s, 0 offen sc1" % (vX1, sr(R_WS, 4))
        e = {k: o[k] for k in ("go_s", "go_i", "arr_s", "ga_i", "ga_c", "arr_c", "q_c", "warm", "preread")}
        e["p1"] = max(3, max(o["qpos"]) + 1 if o["qpos"] else 0)
        e["dec"] = e["arr_c"] + 1; e["kc"] = e["q_c"] + 1; e["qk"] = e["kc"] + 1; e["ml"] = e["qk"] + 1
        assert e["go_s"] < e["go_i"] < e["arr_s"] < e["ga_i"] < e["ga_c"] < e["arr_c"] and e["go_s"] < e["p1"] < e["arr_s"] - 1
        assert e["dec"] < e["q_c"] and e["kc"] >= 12 and e["ml"] <= e["preread"] <= 20
        late = "r0" in order
        self.sched = dict(order=order, upto=upto, wait=wait, ev=e)
        STG = a.LD_W2; qld = None
        for s in range(24):
            if s == 21:
                a("s_branch L_tail"); a(".p2align 10"); a("L_tail:")
            a("s_waitcnt vmcnt(%d)" % wait[s])
            a("s_barrier")
            a.reads(s)
            if s < 21 or o["strip"]: issue(upto[s + 1] if s < 23 else len(order), burst=s in (e["kc"], e["qk"]) and not o["strip"])
            a("s_waitcnt lgkmcnt(0)")
            a.stamp("v_in" if s == 23 else "st%d" % s)
            if s == 11:
                a.lanefn(8, [(2, 4, 128), (3, 2, 32), (0, 2, 8)], 60, s=sRING)
                for tt in (1, 2, 3): a("v_xor_b32 v%d, %d, v8" % (8 + tt, 32 * tt))
            if s == e["warm"] and o["pads"]:
                sk = W(3)
                a("s_mov_b64 exec, 0"); a("s_cbranch_execz L_pad0"); a("L_padback:"); a("s_mov_b64 exec, -1")
                a(sk + ":")
            if o["strip"]:
                if s == 23: a("s_waitcnt vmcnt(0)"); a.stamp("out"); a("s_branch L_done")
                continue
            if s == e["go_s"]:
                sk = W(CTRL); sk2 = a.skip_unless("eq", "s%d" % sC, 31)
                a("s_lshl_b32 s%d, s%d, 5" % (sT0, sX)); a("v_mov_b32 v16, s%d" % sT0)
                a("s_waitcnt vmcnt(3)")
                a.stamp("clr_ack")
                a.exec_(1); a("global_store_dword v16, v12, %s sc1" % sr(P_DBG, 2)); a.exec_(-1)
                a(sk2 + ":"); a(sk + ":")
            if s == e["p1"] - 1:
                sk = W(7); a.p1_slice_pre(0); a("s_waitcnt vmcnt(0)"); a.p1_slice_write(); a(sk + ":")
            def p1_layer0():
                sk = W(7); a.p1_slice_stats(); a(sk + ":")
                sk = a.skip_unless("lt", "s%d" % sW, 6)
                a.p1_prefetch(0); a.p1_mat(0)
                a(sk + ":")
            def arrive(off):
                a("s_lshl_b32 s%d, s%d, 2" % (sT0, sC)); a("s_add_u32 s%d, s%d, s%d" % (sT0, sT0, sARR)); a("v_mov_b32 v13, s%d" % sXCC)
                a.exec_(1); a("buffer_store_dword v13, v0, %s, s%d offen offset:%d sc1" % (sr(R_WS, 4), sT0, off)); a.exec_(-1)
            if s == e["p1"]:
                p1_layer0(); a.stamp("q0_pub")
            if s == e["go_i"] or s == e["ga_i"]:
                sk = W(CTRL); a(go_ld); a(sk + ":")
            if s == e["arr_s"] - 1:
                sk = a.skip_unless("lg", "s%d" % sW, LOADER); a("s_waitcnt vmcnt(0)"); a(sk + ":")
            if s == e["arr_s"]:
                sk = W(CTRL)
                w = a.lab("L_cw"); r = a.lab("L_cr")
                a(w + ":")
                a("v_readlane_b32 s%d, v%d, s%d" % (sT0, vX0, sX)); a("s_cmp_eq_u32 s%d, 0" % sT0); a("s_cbranch_scc1 " + r)
                a.ool += [r + ":"] + a.budget() + [go_ld, "s_waitcnt vmcnt(0)", "s_branch " + w]
                arrive(0)
                a.stamp("go_ok")
                a(sk + ":")
            if s == e["ga_c"]:
                sk = W(CTRL)
                w = a.lab("L_cw"); r = a.lab("L_cr")
                a(w + ":"); a("s_waitcnt vmcnt(0)")
                a("v_cmp_eq_u32 vcc, 0, v%d" % vX0); a("s_cbranch_vccnz " + r)
                a.ool += [r + ":"] + a.budget() + [go_ld, "s_branch " + w]
                a.lanefn(vX1, [(3, 3, 256), (0, 3, 16)], vX0, const=ARR)
                a(arr_ld)
                a(sk + ":")
            if s == e["arr_c"]:
                sk = W(CTRL)
                a.poll([arr_ld], range(24, 28), 28, issued=True)
                for k in range(24, 28): a("v_xor_b32 v%d, s%d, v%d" % (k, sXCC, k))
                a("v_or3_b32 v24, v24, v25, v26"); a("v_or_b32 v24, v24, v27"); a("v_cmp_ne_u32 vcc, 0, v24")
                a("s_lshl_b32 s%d, s%d, 3" % (sT0, sX)); a("s_lshr_b64 vcc, vcc, s%d" % sT0); a("s_and_b32 s%d, vcc_lo, 0xff" % sT0)
                a("s_cselect_b32 s%d, 0, %d" % (sT0, 0 if o["force_global"] else 1))
                a("v_mov_b32 v37, %d" % a.LD_FLAG); a("v_mov_b32 v38, s%d" % sT0); a("ds_write_b32 v37, v38"); a("s_waitcnt lgkmcnt(0)")
                a.stamp("arr_ok")
                a(sk + ":")
            if s == e["dec"]:
                a("v_mov_b32 v41, %d" % a.LD_FLAG); a("ds_read_b32 v42, v41"); a("s_waitcnt lgkmcnt(0)"); a("v_readfirstlane_b32 s%d, v42" % sFLAG)
                a("s_cmp_eq_u32 s%d, 0" % sFLAG); a("s_cbranch_scc1 L_spread"); a("L_spread_back:")
                keep = a.L; a.L = []
                a("L_spread:")
                a("s_add_u32 s%d, s%d, %d" % (sLOC, sLOC, LOC_B))
                sk = W(CTRL)
                a("v_mov_b64 v[12:13], -1"); a("v_mov_b64 v[14:15], -1"); a("v_lshlrev_b32 v16, 4, v0"); clear_local(16, "sc1")
                a(sk + ":")
                sk = W(7); a.p1_slice_pre(0); a("v_cvt_pk_bf16_f32 v28, v%d, v%d" % (vX0, vX1)); a(sk + ":")
                p1_layer0()
                a("s_waitcnt vmcnt(0)"); a("s_barrier")
                sk = W(CTRL)
                arrive(128); a.lanefn(16, [(0, 5, 4)], 39)
                a.poll(["buffer_load_dword v17, v16, %s, s%d offen offset:128 sc1" % (sr(R_WS, 4), sARR)], [17], 18)
                a(sk + ":")
                a("s_barrier"); a("s_branch L_spread_back")
                self.cold = a.L; a.L = keep
                sk = W(QFETCH)
                a.q_base(0, sT2, sT3); a("v_lshlrev_b32 v16, 4, v0"); a("s_add_u32 s%d, s%d, 3072" % (sT3, sT2))
                for h in range(2):
                    a("s_mov_b32 m0, %d" % (STG + 3072 * h))
                    for k in range(3 + h):
                        if k == 3: a.exec_(0xf)
                        a("buffer_load_dwordx4 v16, %s, s%d offen offset:%d %s lds" % (sr(R_WS, 4), sT2 + h, 1024 * k, o["qf"]))
                a.exec_(-1)
                a(sk + ":")
            if s == e["q_c"]:
                sk = W(QFETCH); a("s_waitcnt vmcnt(0)"); a.stamp("q0_in"); a(sk + ":")
            if s == e["kc"]:
                a.lanefn(40, [(0, 6, 16)], 39, const=STG)
                for k in range(3): a("ds_read_b128 %s, v40 offset:%d" % (vr(12 + 4 * k, 4), 3072 + 1024 * k))
                a.zero(24, 40); a("s_waitcnt lgkmcnt(0)")
                a.qk(12, vKC)
            if s == e["qk"]:
                a.lanefn(41, [(0, 3, 8)], 39, const=STG + 6144)
                for k in range(3): a("ds_read_b128 %s, v40 offset:%d" % (vr(12 + 4 * k, 4), 1024 * k))
                a("ds_read_b64 v[52:53], v41")
                a.zero(24, 40); a("s_waitcnt lgkmcnt(0)")
                a.qk(12, 24, a.stats_ops(52)); a.softmax(52)
                a.zero(40, 64); a.ml_addr(37)
                hi, red = a.side_ops()
                for x in hi + red: a(x)
                a("ds_write_b64 v37, v[20:21]")
                a.oc_addr(); a("s_waitcnt lgkmcnt(0)")
                a.stamp("qk0")
            if s == e["ml"]:
                sk = a.skip_unless("lt", "s%d" % sW, 2)
                a.ml_calc(0); a.combine_addr(0)
                a(sk + ":")
            if s == e["preread"]:
                sk = W(2)
                a("s_mul_i32 s%d, s%d, %d" % (sT0, sC, CLR)); a("s_add_u32 s%d, s%d, s%d" % (sT0, sT0, sLOC))
                a("v_min_u32 v37, %d, v0" % (CLR // 128 - 1)); a("v_lshlrev_b32 v37, 7, v37")
                a("buffer_load_dword v37, v37, %s, s%d offen %s" % (sr(R_WS, 4), sT0, o["pref"]))
                a(sk + ":")
            if s >= 21:
                seg = s - 21
                for T in range(4 * seg, 4 * seg + 4): a.pv(T)
                if s < 23: issue(upto[s + 1])
                assert s < 23 or done[0] == len(order)
                a.pv_ext(2 * seg); a.pv_ext(2 * seg + 1)
        if o["prio"]: a("s_setprio 0")
        a.exec_(0xffff)
        for tq in range(3): a.oc_write(tq)
        a.exec_(-1)
        for l in (0, 1):
            a("s_waitcnt lgkmcnt(0)")
            a("L_b2_%d:" % l)
            a("s_barrier")
            if o["stamps"] and "b2_%d" % l in o["stamps"]: a.stamp("b2_%d" % l); a("s_waitcnt lgkmcnt(0)")
            sk = a.skip_unless("lt", "s%d" % sW, 2)
            a.combine()
            a.stamp("o_pub%d" % l)
            a(sk + ":")
            if l == 0 and late:
                sk = W(LOADER); a("s_waitcnt vmcnt(0)"); a(sk + ":"); a("s_barrier")
            tb = "L_typeB_%d" % l
            nxt = "L_done" if l == 1 else "L_p1"
            a("s_cmp_lt_u32 s%d, 20" % sAI); a("s_cbranch_scc0 " + tb)
            a.p3(l)
            a("s_sub_u32 s%d, s%d, 5" % (sT0, sW))
            sk = a.skip_unless("lt", "s%d" % sT0, 2)
            a.p4b(l)
            a(sk + ":")
            a("s_branch " + nxt)
            a(tb + ":")
            a("s_cmp_eq_u32 s%d, 3" % sHL); a("s_cbranch_scc0 " + nxt)
            a.slab(l, "h", 2 * l)
            if l == 1:
                a("s_cmp_eq_u32 s%d, 7" % sW); a("s_cbranch_scc0 L_done")
                a("s_cmp_eq_u32 s%d, 0" % sX); a("s_cbranch_scc0 L_done")
                a.add_b2(); a.slice_addr(7, 8, 4)
                a.canary_poll(3)
                a.stamp("can3")
                a.gather(3)
                a("global_store_dword v7, v28, %s" % sr(P_OUT, 2))
                a.stamp("out")
                a("s_branch L_done")
                break
            a("L_p1:")
            a.slab(1, "q", 1, lazy=True)
            qld = a.q_loads(1, 5, 7, 8)
            def sh(): a.zero(24, 64); a.ml_addr(10)
            a.poll(qld, [8, 9] + list(range(12, 24)), 11, shadow=sh)
            a.stamp("q1_in")
            a.qk(12, 24, a.stats_ops(8)); a.stamp("qk_end"); a.softmax(8); a.stamp("sm_end")
            hi, red = a.side_ops()
            side = hi + red + ["ds_write_b64 v10, v[20:21]"]
            order = [0, 2, 4, 6, 8, 10, 1, 3, 5, 7, 9, 11]
            for n, T in enumerate(order):
                a.pv(T)
                for _ in range(2):
                    if side: a(side.pop(0))
                if n == 7: a.oc_addr()
                if n == 9:
                    sk = a.skip_unless("ge", "s%d" % sW, 4)
                    a("s_waitcnt lgkmcnt(0)"); a("s_barrier"); a.stamp("b1")
                    a(sk + ":")
            assert not side
            for m in range(6): a.pv_ext(m)
            a.exec_(0xffff)
            for tq in range(3): a.oc_write(tq)
            a.exec_(-1)
            a.stamp("pv1")
            a("s_cmp_lt_u32 s%d, 4" % sW); a("s_cbranch_scc1 L_old")
            keep = a.L; a.L = []
            a("L_old:")
            a("s_waitcnt lgkmcnt(0)"); a("s_barrier"); a.stamp("b1")
            a("s_cmp_lt_u32 s%d, 2" % sW); a("s_cbranch_scc0 L_b2_1")
            a.ml_calc(1); a.combine_addr(1); a.stamp("ml_end")
            a("s_branch L_b2_1")
            old = a.L; a.L = keep; a.ool += old
        for x in a.ool: a(x)
        a("L_tail_end:")
        for x in a.cold: a(x)
        a("L_done:")
        if o["diag_hold"]:
            if o["diag_x"] >= 0: a("s_cmp_eq_u32 s%d, %d" % (sXCC, o["diag_x"])); a("s_cbranch_scc0 L_exit")
            a("s_waitcnt lgkmcnt(0)"); a("s_cmp_eq_u64 s[100:101], 0"); a("s_cbranch_scc1 L_exit")
            a("L_hold:"); a("s_memrealtime s[98:99]"); a("s_waitcnt lgkmcnt(0)"); a("s_sub_u32 s98, s98, s100")
            a("s_cmp_lt_u32 s98, %d" % o["diag_hold"]); a("s_cbranch_scc1 L_hold")
        if o["stamps"]:
            n = len(o["stamps"])
            a("s_mov_b64 exec, -1"); a("s_waitcnt lgkmcnt(0)")
            for i in range(n): a("v_writelane_b32 v12, s%d, %d" % (sST + 2 * i, i))
            a("s_getreg_b32 s%d, hwreg(4)" % sT0); a("v_writelane_b32 v12, s%d, 13" % sT0)
            a("v_writelane_b32 v12, s%d, 14" % sBUD); a("v_writelane_b32 v12, s%d, 15" % sFLAG)
            a("s_lshl_b32 s%d, s2, 3" % sT0); a("s_add_u32 s%d, s%d, s%d" % (sT0, sT0, sW)); a("s_lshl_b32 s%d, s%d, 6" % (sT0, sT0))
            a("s_add_u32 s%d, s%d, %d" % (sT0, sT0, STAMP_OFF))
            a.lanefn(13, [(0, 6, 4)], 60, s=sT0)
            a.exec_(0xffff)
            a("global_store_dword v13, v12, %s" % sr(P_WS, 2))
        a("L_exit:")
        a("s_endpgm")
        L = a.L
        if o["stamps"]:
            pre = ["s_mov_b64 %s, 0" % sr(sST + 2 * i, 2) for i in range(len(o["stamps"]))]
            L = pre + L
        if o["pads"]:
            L0 = [x.replace("L_pad0", "L_padback") for x in L]
            L1, nops = fix_hazards(L0)
            L1, npad, tb = insert_pads(L1, "L_tail", "L_tail_end", "L_padback", o["padstep"])
            k = L1.index("s_cbranch_execz L_padback"); L1[k] = "s_cbranch_execz L_pad0"
            L = L1; self.info = (nops, npad, tb)
        else:
            L, nops = fix_hazards(L); self.info = (nops, 0, 0)
        return L

def render(name=NAME + "_kernel", **kw):
    g = G(**kw); L = g.build()
    ref = open("cdna_kernels/%s.s.ref" % NAME).read().split("\n") if name.startswith(NAME) else []
    head = [x for x in ref if x.startswith(";") and "@launch" not in x and "Override" not in x and "grid=ceil" not in x]
    out = head + ["; Generated by gen/gen.py (hand-written generator): one persistent launch, K/V held in registers across both layers.",
                  "; @launch grid=(256,1,1) block=(512,1,1) lds=%d" % g.LDS,
                  '.amdgcn_target "amdgcn-amd-amdhsa--gfx950"', ".text", ".fill 64, 4, 0xbf800000", ".globl " + name, ".p2align 8", ".type %s,@function" % name, name + ":"]
    out += [x if x.endswith(":") or x.startswith(".") else "    " + x for x in L]
    out += ['.section .rodata,"a"', ".p2align 6", ".amdhsa_kernel " + name, "  .amdhsa_next_free_vgpr 256", "  .amdhsa_next_free_sgpr 102",
            "  .amdhsa_accum_offset 256", "  .amdhsa_group_segment_fixed_size 0", "  .amdhsa_kernarg_size 104", "  .amdhsa_user_sgpr_count 2",
            "  .amdhsa_user_sgpr_kernarg_segment_ptr 1", "  .amdhsa_system_sgpr_workgroup_id_x 1", "  .amdhsa_float_denorm_mode_32 3", ".end_amdhsa_kernel"]
    return "\n".join(out) + "\n", g

if __name__ == "__main__":
    kw = {}
    path = "cdna_kernels/%s.s" % NAME
    for x in sys.argv[1:]:
        k, v = x.split("=")
        if k == "out": path = v
        else: kw[k] = int(v) if v.lstrip('-').isdigit() else tuple(int(t) for t in v.split(',') if t) if ',' in v else v
    txt, g = render(**kw)
    open(path, "w").write(txt)
    print("wrote", path, "lds", g.LDS, "nops/pads/tailbytes", g.info, g.sched)
```

```python
import sys, math, struct
from asmlib import *

NAME = "interleave_layers__sliding_block_cached__dense_activation_gelu__decode"

def f32(x): return "0x%08x" % struct.unpack("<I", struct.pack("<f", x))[0]

DEF = dict(R=4, stamps=None, force_global=0, pads=1, padstep=512, l2warm=1, budget=0x10000, dc=2, dq=2, dh=2, gd=(0, 0, 0, 0), dg=2, gs=2, race=1, race_at=2, pol=0, nc=2, can3=1, can4=0, npad=4, stag=0, ocfull=1, upto_ev=99, omit='', rot=0, noclr=0, lclr_at=-1, lclrf='', diag_hold=0, diag_x=-1, diag_at='start', strip=0,
           W=26, Wb=30, Wr=34, burst_from=99, prio=3, ilv=1,
           qpos=(1, 2),
           wl0=3, nwl=32,
           go_s=0, go_i=3, arr_s=6, arr_i=8, arr_c=10, q_c=13, vd_i=17, vd_c=19, warm=3, preread=19,
           wqf='nt', wlf='nt', qf='sc1 nt', pref='sc1 nt')

LOC = 83968
CLR = 1792
L_O, L_Q1, L_H, L_CS1, L_ST1, L_STH, L_LSE, L_CAN = 0, 24576, 36864, 49152, 55296, 55552, 55808, 56064
L_Q0 = 32 * CLR; Q0S = 6400
LOC_B = 8 * LOC
XP = 16 * LOC; XPS = 131072
ARR = XP + 4 * XPS + 32768
WS_BYTES = ARR + 8 * 512
STAMP_OFF = 2 << 20
P_X, P_K, P_V, P_WQ, P_WO, P_W1, P_B1, P_W2, P_B2, P_OUT, P_DBG, P_WS = 4, 6, 8, 10, 12, 16, 18, 20, 22, 24, 26, 28
sW, sX = 30, 31
R_K, R_V, R_WS, R_WQ, R_WL = 32, 36, 40, 44, 48
sC, sHL, sJ, sFLAG, sBUD, sT0, sT1, sT2, sT3, sRING, sLOC, sXCC = 52, 53, 54, 55, 56, 57, 58, 59, 60, 61, 62, 63
sF = 64
sARR, sH, sM1 = 72, 73, 74
sXPW, sXPR = 6, 7
sXPB = 8
sROT = 71
sST = 76
sWA, sWB, sAI = 14, 15, 3
LOADER, CTRL, QFETCH = 6, 5, 4
vL, vIDX, vX0, vX1, vB, vKC = 0, 1, 2, 3, 4, 6
KB, VB = 64, 160
ONES = "0x3f803f80"

class G:
    def __init__(self, **kw):
        self.o = dict(DEF); self.o.update(kw)
        self.L = []; self.ool = []; self.cold = []; self.n = 0; self.vm = []; self.stampn = []
        R = self.R = self.o["R"]
        self.LD_WQ = 0; self.LD_WL = 30720; self.LD_W2 = self.LD_WL + 49152
        self.LD_RING = self.LD_W2 + 12288; self.LD_PP = self.LD_RING + R * 16384
        self.LD_ML = self.LD_PP + 2048; self.LD_HX = self.LD_ML + 128; self.LD_FLAG = self.LD_HX + 768 + 128; self.LD_XB = self.LD_FLAG + 64; self.LDS = self.LD_XB + 384
        self.LD_OC = self.LD_RING; self.LD_QS = self.LD_RING + 32768
        assert self.LDS <= 163840 and R == 4
    def __call__(self, s): self.L.append(s)
    def lab(self, p="L"):
        self.n += 1; return "%s_%d" % (p, self.n)
    def stamp(self, name):
        if self.o["diag_hold"] and name == self.o["diag_at"]: self("s_memrealtime s[100:101]")
        st = self.o["stamps"]
        if st and name in st:
            i = st.index(name); self("s_memrealtime %s" % sr(sST + 2 * i, 2))
        if st and "c_" + name in st:
            i = st.index("c_" + name); self("s_memtime %s" % sr(sST + 2 * i, 2))
    def lanefn(self, dst, terms, tmp, s=None, const=0, src=vL):
        a = self; first = True
        for sh, nb, mul in terms:
            t = dst if first else tmp
            p2 = mul & (mul - 1) == 0
            if nb >= 6 - sh and src == vL:
                if sh: a("v_lshrrev_b32 v%d, %d, v%d" % (t, sh, src)); x = t
                else: x = src
            elif sh == 0: a("v_and_b32 v%d, %d, v%d" % (t, (1 << nb) - 1, src)); x = t
            else: a("v_bfe_u32 v%d, v%d, %d, %d" % (t, src, sh, nb)); x = t
            if first:
                if p2:
                    if mul > 1 or x != dst: a("v_lshlrev_b32 v%d, %d, v%d" % (dst, mul.bit_length() - 1, x))
                else: a("v_mul_u32_u24 v%d, %d, v%d" % (dst, mul, x))
            elif p2: a("v_lshl_add_u32 v%d, v%d, %d, v%d" % (dst, x, mul.bit_length() - 1, dst))
            else:
                a("v_mul_u32_u24 v%d, %d, v%d" % (tmp, mul, x)); a("v_add_u32 v%d, v%d, v%d" % (dst, tmp, dst))
            first = False
        if s is not None: a("v_add_u32 v%d, s%d, v%d" % (dst, s, dst))
        if const: a("v_add_u32 v%d, %d, v%d" % (dst, const, dst))
    def srd(self, r, p, nbytes, off=None):
        a = self
        if off is None: a("s_mov_b32 s%d, s%d" % (r, p)); a("s_mov_b32 s%d, s%d" % (r + 1, p + 1))
        else: a("s_add_u32 s%d, s%d, s%d" % (r, p, off)); a("s_addc_u32 s%d, s%d, 0" % (r + 1, p + 1))
        a("s_mov_b32 s%d, %s" % (r + 2, nbytes)); a("s_mov_b32 s%d, 0x20000" % (r + 3))
    def skip_unless(self, cmp, a_, b_):
        l = self.lab("L_skip"); self("s_cmp_%s_u32 %s, %s" % (cmp, a_, b_)); self("s_cbranch_scc0 " + l); return l
    def exec_(self, m):
        if m == -1: self("s_mov_b64 exec, -1")
        elif m < (1 << 31): self("s_mov_b64 exec, 0x%x" % m)
        else: self("s_mov_b32 exec_lo, 0x%x" % (m & 0xffffffff)); self("s_mov_b32 exec_hi, 0x%x" % (m >> 32))
    def flag_cmp(self): self("s_cmp_eq_u32 s%d, 0" % sFLAG)
    def oob(self, dst, cmp, n, tmp):
        a = self; a("v_mov_b32 v%d, 0x7f000000" % tmp); a("v_cmp_%s_u32 vcc, %d, v%d" % (cmp, n, vL)); a("v_cndmask_b32 v%d, v%d, v%d, vcc" % (dst, dst, tmp))
    def aside(self, fn):
        keep = self.L; self.L = []; fn(); blk = self.L; self.L = keep; self.ool += blk
    def local_store(self, ins, pre=False):
        a = self; l = a.lab("L_gs"); b = a.lab("L_gb")
        if not pre: a.flag_cmp()
        a("s_cbranch_scc1 " + l); a(ins); a(b + ":")
        a.ool += [l + ":", ins + " sc1", "s_branch " + b]
    def budget(self):
        return ["s_sub_u32 s%d, s%d, 1" % (sBUD, sBUD), "s_cbranch_scc1 L_done"]
    def check(self, rs, t):
        a = self; rs = list(rs)
        if len(rs) == 1: a("v_cmp_eq_u32 vcc, -1, v%d" % rs[0]); return
        if len(rs) == 2: a("v_max_u32 v%d, v%d, v%d" % (t, rs[0], rs[1])); rs = []
        else: a("v_max3_u32 v%d, v%d, v%d, v%d" % (t, rs[0], rs[1], rs[2])); rs = rs[3:]
        while len(rs) >= 2: a("v_max3_u32 v%d, v%d, v%d, v%d" % (t, t, rs[0], rs[1])); rs = rs[2:]
        if rs: a("v_max_u32 v%d, v%d, v%d" % (t, t, rs[0]))
        a("v_cmp_eq_u32 vcc, -1, v%d" % t)
    def poll(self, loads, rs, t, shadow=None, depth=1, extra=0):
        a = self; w = a.lab("L_pw"); r = a.lab("L_pr"); n = len(loads)
        for d in range(depth - 1):
            for x in loads: a(x)
            if d == 0 and shadow: shadow()
            else: a("s_sleep %d" % (2 if depth == 2 else 1))
        if depth == 1 and shadow:
            for x in loads: a(x)
            shadow(); a("s_branch " + w)
        a(r + ":")
        for x in loads: a(x)
        for x in a.budget(): a(x)
        a(w + ":")
        a("s_waitcnt vmcnt(%d)" % (n * (depth - 1) + extra))
        a.check(rs, t)
        a("s_cbranch_vccnz " + r)

    def dma_loop(self, n, lds, R, vo, so, step, flags, pace):
        a = self; k = len(so); l = a.lab("L_dma")
        for i, x in enumerate(so):
            if isinstance(x, int): a("s_mov_b32 s%d, %d" % (sT0 + i, x - 1024 * i))
            else: x(sT0 + i)
        a("s_mov_b32 m0, %d" % lds)
        a(l + ":")
        for i in range(k):
            if pace: a("s_waitcnt vmcnt(%d)" % (pace - 1))
            a("buffer_load_dwordx4 v%d, %s, s%d offen offset:%d %s lds" % (vo[i], sr(R, 4), sT0 + i, 1024 * i, flags))
        for i in range(k): a("s_add_u32 s%d, s%d, %s" % (sT0 + i, sT0 + i, step))
        a("s_add_u32 m0, m0, %d" % (1024 * k))
        a("s_cmp_lg_u32 m0, %d" % (lds + 1024 * k * n)); a("s_cbranch_scc1 " + l)
    def block(self, b, pace):
        a = self; o = a.o
        if isinstance(b, int):
            seg = b % 3
            if b < 12: gA = b // 3; runs = [4 * (gA // 2) + 2 * (gA % 2) + i for i in (0, 1)]; vo = (5, 6); R = R_K
            else: u = (b - 12) // 3; runs = [4 * (u // 2) + 2 * i + u % 2 for i in (0, 1)]; vo = (7, 7); R = R_V
            so = [r * 196608 + seg * 128 for r in runs]
            if o["rot"]:
                def f(i):
                    def g(d):
                        a("s_xor_b32 s%d, s%d, %d" % (d, sROT, runs[i])); a("s_mul_i32 s%d, s%d, 196608" % (d, d))
                        a("s_add_u32 s%d, s%d, %d" % (d, d, seg * 128 + 1024 - 1024 * i))
                    return g
                so = [f(0), f(1)]
            a.dma_loop(8, a.LD_RING + (b % a.R) * 16384, R, vo, so, "24576" if o["ilv"] else "3072", "nt", pace)
        elif b[0] == "q":
            n = int(b[1])
            a.dma_loop(5, a.LD_WQ + n * 15360, R_WQ, (vX0,) * 3, [n * 5 * 98304 + 128 * i + 2048 for i in range(3)], "98304", o["wqf"], pace)
        elif b[0] == "w":
            n = int(b[1:])
            a("s_mul_i32 s%d, s%d, %d" % (sT0, sWA, n // 2))
            if n % 2: a("s_add_u32 s%d, s%d, s%d" % (sT0, sT0, sWB))
            a("s_mov_b32 m0, %d" % (a.LD_WL + (n & ~1) * 1024))
            if pace: a("s_waitcnt vmcnt(%d)" % (pace - 1))
            a("buffer_load_dwordx4 v%d, %s, s%d offen offset:%d %s lds" % (vX1, sr(R_WL, 4), sT0, 1024 * (n % 2), o["wlf"]))
        else:
            n0 = o["nwl"] // 2; h = (24 - n0 + 1) // 2; n, cnt = (n0, h) if b == "r0" else (n0 + h, 24 - n0 - h)
            if pace: pace = max(pace, o["Wr"])
            f0 = lambda d: a("s_mul_i32 s%d, s%d, %d" % (d, sWA, n))
            f1 = lambda d: a("s_add_u32 s%d, s%d, s%d" % (d, sT0, sWB))
            a.dma_loop(cnt, a.LD_WL + n * 2048, R_WL, (vX1, vX1), [f0, f1], "s%d" % sWA, o["wlf"], pace)
    def reads(self, s):
        a = self; seg = s % 3; slot = (s % a.R) * 16384
        if s < 12:
            d = KB + 24 * (s // 3) + 8 * seg
            a("ds_read_b128 %s, v8 offset:%d" % (vr(d, 4), slot)); a("ds_read_b128 %s, v9 offset:%d" % (vr(d + 4, 4), slot))
        else:
            u = (s - 12) // 3
            for tt in range(4):
                a("ds_read_b64_tr_b16 %s, v%d offset:%d" % (vr(VB + 8 * (4 * seg + tt) + 2 * u, 2), 8 + tt, slot))
    def plan(self):
        o = self.o; order = []
        qp = list(o["qpos"]); nwl = o["nwl"]; assert nwl % 2 == 0
        per = -(-nwl // (23 - o["wl0"])) if nwl > 0 else 1
        for s in range(-1, 24):
            if s >= 0: order.append(s)
            order += ["q%d" % i for i, p in enumerate(qp) if p == s] + ["w%d" % i for i in range(nwl) if o["wl0"] + i // per == s]
        if 0 <= nwl < 46: order += ["r0", "r1"]
        h = (24 - nwl // 2 + 1) // 2
        size = lambda b: 16 if isinstance(b, int) else {"q": 15, "w": 1, "r": 2 * h if b == "r0" else 48 - nwl - 2 * h}[b[0]]
        upto = []; k = 0
        for s in range(24):
            p = order.index(s); k = max(k, p + 1)
            while k < len(order) and sum(map(size, order[p + 1:k])) < o["Wb"]:
                if isinstance(order[k], int) and order[k] - self.R + 1 > s - 1 and order[k] >= self.R: break
                k += 1
            upto.append(k)
        wait = [sum(map(size, order[order.index(s) + 1:upto[s]])) for s in range(24)]
        return order, upto, wait

    def gather(self, ph, pre=None):
        a = self; w = a.lab("L_gw"); r = a.lab("L_gr"); ok = a.lab("L_gk")
        for n in range(4): a("s_add_u32 s%d, s%d, %d" % (sT0 + n, sXPR, ph * XPS + n * 32768))
        if pre: pre()
        d = a.o["dg"] if pre else 1; k = 4 * (d - 1)
        def loads():
            for n in range(4): a("buffer_load_dwordx4 %s, v5, %s, s%d offen sc1" % (vr(12 + 4 * n, 4), sr(R_WS, 4), sT0 + n))
        def sums(waits):
            if waits: a("s_waitcnt vmcnt(%d)" % (k + 2))
            a("v_pk_add_f32 v[28:29], v[12:13], v[16:17]"); a("v_pk_add_f32 v[30:31], v[14:15], v[18:19]")
            if waits: a("s_waitcnt vmcnt(%d)" % (k + 1))
            a("v_pk_add_f32 v[28:29], v[28:29], v[20:21]"); a("v_pk_add_f32 v[30:31], v[30:31], v[22:23]")
            if waits: a("s_waitcnt vmcnt(%d)" % k)
            a("v_pk_add_f32 v[28:29], v[28:29], v[24:25]"); a("v_pk_add_f32 v[30:31], v[30:31], v[26:27]")
            if waits: a("v_pk_add_f32 v[32:33], v[28:29], v[30:31]"); a("v_cmp_u_f32 vcc, v32, v33")
            a("v_permlane32_swap_b32 v28, v30"); a("v_permlane32_swap_b32 v29, v31")
        for _ in range(d - 1): loads(); a("s_sleep %d" % a.o["gs"])
        a(w + ":")
        loads()
        for x in a.budget(): a(x)
        a("s_and_b32 s%d, s%d, 31" % (sM1, sBUD))
        sums(True)
        a("s_cbranch_vccnz " + r)
        a(ok + ":")
        a("v_pk_add_f32 v[28:29], v[28:29], v[30:31]")
        a("v_pk_add_f32 v[28:29], v[28:29], v[%d:%d]" % (vX0, vX1))
        a("v_cvt_pk_bf16_f32 v28, v28, v29")
        def slow():
            a(r + ":"); a("s_cbranch_scc1 " + w)
            a("s_waitcnt vmcnt(0)"); a.check(range(12, 28), 32); a("s_cbranch_vccnz " + w); sums(False); a("s_branch " + ok)
        a.aside(slow)
    def race(self, dst):
        a = self
        a("s_mov_b32 s%d, 0" % (sF + 3))
        a("s_load_dword s%d, s[10:11], 0" % (sF + 2)); a("s_load_dword s%d, s[10:11], 8192" % (sF + 3))
        a("s_waitcnt lgkmcnt(1)"); a("s_sleep %d" % a.o["race"]); a("s_mov_b32 s%d, s%d" % (dst, sF + 3))
    def unpack_x(self):
        self("v_lshlrev_b32 v%d, 16, v28" % vX0); self("v_and_b32 v%d, 0xffff0000, v28" % vX1)
    def add_b2(self):
        a = self
        a("v_lshlrev_b32 v60, 16, v%d" % vB); a("v_add_f32 v%d, v%d, v60" % (vX0, vX0))
        a("v_and_b32 v60, 0xffff0000, v%d" % vB); a("v_add_f32 v%d, v%d, v60" % (vX1, vX1))
    def pack_pairs(self):
        a = self
        a("v_mov_b32_dpp v13, v12 row_shl:1 row_mask:0xf bank_mask:0xf bound_ctrl:0")
        a("v_cvt_pk_bf16_f32 v12, v12, v13"); a("v_min_u32 v12, -2, v12")
    def q_base(self, l, dst, st, kind="q"):
        a = self
        if kind == "h":
            a("s_add_u32 s%d, s%d, %d" % (dst, sLOC, L_H + 6144 * l)); a("s_add_u32 s%d, s%d, %d" % (st, sLOC, L_STH + 128 * l))
        elif l == 0:
            a("s_mul_i32 s%d, s%d, %d" % (dst, sHL, Q0S)); a("s_add_u32 s%d, s%d, s%d" % (dst, dst, sLOC)); a("s_add_u32 s%d, s%d, %d" % (dst, dst, L_Q0))
            a("s_add_u32 s%d, s%d, 6144" % (st, dst))
        else:
            a("s_mul_i32 s%d, s%d, 3072" % (dst, sHL)); a("s_add_u32 s%d, s%d, s%d" % (dst, dst, sLOC)); a("s_add_u32 s%d, s%d, %d" % (dst, dst, L_Q1))
            a("s_lshl_b32 s%d, s%d, 6" % (st, sHL)); a("s_add_u32 s%d, s%d, s%d" % (st, st, sLOC)); a("s_add_u32 s%d, s%d, %d" % (st, st, L_ST1))
    def slice_addr(self, dst, unit, hi):
        a = self
        a("v_and_b32 v60, 31, v%d" % vL); a("v_min_u32 v60, 19, v60"); a("s_mul_i32 s%d, s%d, %d" % (sT0, sJ, 20 * unit))
        a.lanefn(dst, [(5, 1, hi)], 61, s=sT0); a("v_lshl_add_u32 v%d, v60, %d, v%d" % (dst, unit.bit_length() - 1, dst))
    def p1_slice_pre(self, l, kind="q"):
        a = self
        a("v_and_b32 v60, 31, v%d" % vL); a("v_cmp_gt_u32 %s, 20, v60" % sr(sF, 2)); a("v_min_u32 v60, 19, v60")
        a.lanefn(35, [(5, 1, 4)], 61, const=a.LD_XB); a("v_lshl_add_u32 v35, v60, 3, v35")
        a.q_base(l, sF + 2, sF + 3, kind)
        a("s_lshl_b32 s%d, s%d, 3" % (sT0, sJ)); a.lanefn(34, [(5, 1, 4)], 61, s=sT0)
        a("v_and_b32 v60, 31, v%d" % vL); a("v_mov_b32 v61, 0x7f000000"); a("v_cmp_ne_u32 vcc, 31, v60"); a("v_cndmask_b32 v34, v34, v61, vcc")
        a("v_mov_b32 v61, %s" % ONES)
    def p1_slice_write(self):
        self("ds_write_b32 v35, v28"); self("s_waitcnt lgkmcnt(0)")
    def p1_slice_stats(self):
        a = self
        a("v_cndmask_b32 v29, 0, v28, %s" % sr(sF, 2))
        a("v_dot2_f32_bf16 v33, v29, v61, 0"); a("v_dot2_f32_bf16 v62, v29, v29, 0")
        a.unpack_x(); a.flag_cmp()
        a("v_permlane32_swap_b32 v33, v62"); a("v_add_f32 v33, v33, v62")
        for k in (8, 4, 2, 1): a("v_add_f32_dpp v33, v33, v33 row_ror:%d row_mask:0xf bank_mask:0xf" % k)
        a("v_add_f32_dpp v33, v33, v33 row_bcast:15 row_mask:0xa bank_mask:0xf")
        a("v_min_u32 v33, -2, v33")
        a.local_store("buffer_store_dword v33, v34, %s, s%d offen" % (sr(R_WS, 4), sF + 3), pre=True)
        a("s_waitcnt vmcnt(1)")
    def p1_prefetch(self, l, kind="q"):
        a = self
        base, seg, rb = (a.LD_WQ, 1024, (128, 256, 512, 3072, 6144, 12288, 24576)) if kind == "q" else (a.LD_WL, 128, (384, 1024, 2048, 4096, 8192, 16384, 32768))
        a("s_lshr_b32 s%d, s%d, 1" % (sT0, sW)); a("s_mul_i32 s%d, s%d, %d" % (sT0, sT0, seg)); a("s_and_b32 s%d, s%d, 1" % (sT1, sW))
        a("s_lshl_b32 s%d, s%d, 6" % (sT1, sT1)); a("s_add_u32 s%d, s%d, s%d" % (sT0, sT0, sT1))
        a.lanefn(18, [(5, 1, rb[4]), (3, 1, rb[3]), (4, 1, rb[2]), (2, 1, rb[0]), (0, 2, 8)], 60, s=sT0, const=base)
        a.lanefn(19, [(4, 1, rb[3]), (3, 1, rb[2]), (2, 1, rb[0]), (0, 2, 8)], 60, s=sT0, const=base + rb[6])
        for t in range(2):
            for u in range(4): a("ds_read_b64_tr_b16 %s, v18 offset:%d" % (vr(36 + 12 * t + 2 * u, 2), (u // 2) * rb[5] + (u % 2) * rb[1] + 32 * t))
            for u in range(2): a("ds_read_b64_tr_b16 %s, v19 offset:%d" % (vr(44 + 12 * t + 2 * u, 2), u * rb[1] + 32 * t))
        a.lanefn(32, [(4, 2, 32), (1, 1, 16), (0, 1, 192)], 60, const=a.LD_XB)
        a.lanefn(33, [(4, 2, 16), (1, 1, 8), (0, 1, 192)], 60, const=a.LD_XB + 128)
        a.zero(24, 32)
        if kind == "q":
            a("s_lshr_b32 s%d, s%d, 1" % (sT0, sJ)); a("s_lshl_b32 s%d, s%d, 2" % (sT0, sT0)); a("s_and_b32 s%d, s%d, 1" % (sT1, sJ))
            a("s_add_u32 s%d, s%d, s%d" % (sT0, sT0, sT1)); a("s_lshl_b32 s%d, s%d, 4" % (sT0, sT0))
            a("s_lshl_b32 s%d, s%d, 9" % (sT1, sW)); a("s_add_u32 s%d, s%d, s%d" % (sT0, sT0, sT1))
            a.lanefn(34, [(4, 1, 256), (1, 1, 32), (2, 2, 4), (5, 1, 3072 if l == 0 else 1 << 29), (0, 1, 1 << 30)], 60, s=sT0)
        else:
            a("s_lshr_b32 s%d, s%d, 1" % (sT0, sW)); a("s_lshl_b32 s%d, s%d, 11" % (sT0, sT0)); a("s_and_b32 s%d, s%d, 1" % (sT1, sW))
            a("s_lshl_b32 s%d, s%d, 9" % (sT1, sT1)); a("s_add_u32 s%d, s%d, s%d" % (sT0, sT0, sT1))
            a("s_lshr_b32 s%d, s%d, 2" % (sT1, sJ)); a("s_lshl_b32 s%d, s%d, 10" % (sT1, sT1)); a("s_add_u32 s%d, s%d, s%d" % (sT0, sT0, sT1))
            a("s_and_b32 s%d, s%d, 3" % (sT1, sJ)); a("s_lshl_b32 s%d, s%d, 2" % (sT1, sT1)); a("s_add_u32 s%d, s%d, s%d" % (sT0, sT0, sT1))
            a.lanefn(34, [(0, 5, 16), (5, 1, 1 << 30)], 60, s=sT0)
        a.q_base(l, sT2, sT3, kind)
    def p1_mat(self, l, kind="q"):
        a = self; z = 1 if kind == "c" else 0
        a("ds_read_b128 v[12:15], v32"); a("ds_read_b64 v[16:17], v33")
        a("s_waitcnt lgkmcnt(1)")
        for t in range(2): a("v_smfmac_f32_16x16x64_bf16 %s, v[12:15], %s, v%d" % (vr(24 + 4 * t, 4), vr(36 + 12 * t, 8), vIDX))
        a("s_waitcnt lgkmcnt(0)")
        for t in range(2): a("v_smfmac_f32_16x16x32_bf16 %s, v[16:17], %s, v%d" % (vr(24 + 4 * t, 4), vr(44 + 12 * t, 4), vIDX))
        if kind == "c": a("s_add_u32 s%d, s%d, %d" % (sT3, sLOC, L_CS1))
        a.flag_cmp()
        a("v_add_f32 v12, v%d, v%d" % (24 + z, 26 + z))
        a("v_add_f32_dpp v12, v%d, v%d quad_perm:[0,1,2,3] row_mask:0x2 bank_mask:0xf" % (28 + z, 30 + z))
        if kind == "q":
            if l == 0:
                a("v_add_f32_dpp v12, v25, v27 quad_perm:[0,1,2,3] row_mask:0x4 bank_mask:0xf")
                a("v_add_f32_dpp v12, v29, v31 quad_perm:[0,1,2,3] row_mask:0x8 bank_mask:0xf")
            a.pack_pairs()
        else:
            a("v_min_u32 v12, -2, v12")
        a.local_store("buffer_store_dword v12, v34, %s, s%d offen" % (sr(R_WS, 4), sT3 if kind == "c" else sT2), pre=True)
        if kind == "c": a.zero(24, 32)

    def zero(self, lo, hi):
        for r in range(lo, hi, 2): self("v_mov_b64 v[%d:%d], 0" % (r, r + 1))
    def qk(self, A, dst, side=(), after=None):
        a = self; side = list(side)
        ext = lambda g: ["v_pk_add_f32 %s, %s, %s" % (vr(24 + 4 * g, 2), vr(24 + 4 * g, 2), vr(26 + 4 * g, 2)), "v_add_f32 v%d, v%d, v%d" % (24 + 4 * g, 24 + 4 * g, 25 + 4 * g)]
        for n, g in enumerate((0, 2, 1, 3)):
            for k in range(3):
                a("v_smfmac_f32_16x16x64_bf16 %s, %s, %s, v%d" % (vr(24 + 4 * g, 4), vr(A + 4 * k, 4), vr(KB + 24 * g + 8 * k, 8), vIDX))
                if n == 3 and k == 0: side += ext(0) + ext(2)
                for _ in range(2):
                    if side:
                        x = side.pop(0)
                        if x: a(x)
        for x in side: a(x)
        if after: after()
        a("v_permlane32_swap_b32 v24, v32"); a("v_add_f32 v24, v24, v32")
        for x in ext(1) + ext(3): a(x)
        a("v_permlane32_swap_b32 v28, v36"); a("v_add_f32 v28, v28, v36")
        a("v_permlane16_swap_b32 v24, v28"); a("v_add_f32 v%d, v24, v28" % dst)
    def stats_ops(self, st, att=True):
        c = 192 ** -0.5 * math.log2(math.e); o = []
        for k in (4, 2, 1):
            o += ["v_add_f32_dpp v%d, v%d, v%d row_ror:%d row_mask:0xf bank_mask:0xf" % (r, r, r, k) for r in (st, st + 1)]
        o += ["v_mul_f32 v%d, %s, v%d" % (r, f32(1.0 / 640), r) for r in (st, st + 1)]
        o += ["v_fma_f32 v%d, -v%d, v%d, v%d" % (st + 1, st, st, st + 1), "v_max_f32 v%d, 0, v%d" % (st + 1, st + 1),
              "v_add_f32 v%d, %s, v%d" % (st + 1, f32(1e-5), st + 1), "v_rsq_f32 v%d, v%d" % (st + 1, st + 1)]
        if att: o += ["v_mul_f32 v%d, %s, v%d" % (st + 1, f32(c), st + 1), "v_mul_f32 v%d, -v%d, v%d" % (st, st, st + 1)]
        return o
    def softmax(self, st):
        a = self
        a("v_fma_f32 v24, v24, v%d, v%d" % (st + 1, st))
        a("s_mov_b32 vcc_lo, 0x55555555"); a("s_mov_b32 vcc_hi, 0x55555555")
        a("v_max_f32_dpp v20, v24, v24 row_ror:8 row_mask:0xf bank_mask:0xf")
        for k in (4, 2, 1): a("v_max_f32_dpp v20, v20, v20 row_ror:%d row_mask:0xf bank_mask:0xf" % k)
        a("v_max_f32_dpp v20, v20, v20 row_bcast:15 row_mask:0xa bank_mask:0xf")
        a("v_max_f32_dpp v20, v20, v20 row_bcast:31 row_mask:0xc bank_mask:0xf")
        a("v_readlane_b32 s%d, v20, 63" % sT0)
        a("v_subrev_f32 v24, s%d, v24" % sT0); a("v_exp_f32 v22, v24")
        a("v_mov_b32_dpp v23, v22 row_shl:1 row_mask:0xf bank_mask:0xf bound_ctrl:0")
        a("v_cvt_pk_bf16_f32 v23, v22, v23"); a("v_cndmask_b32 v12, 0, v23, vcc")
        a("v_add_f32_dpp v21, v22, v22 row_ror:8 row_mask:0xf bank_mask:0xf")
        for r in (1, 2, 3): a("v_mov_b32_dpp v%d, v12 row_shl:%d row_mask:0xf bank_mask:0xf bound_ctrl:0" % (12 + r, 4 * r))
        a("v_add_f32_dpp v21, v21, v21 row_ror:4 row_mask:0xf bank_mask:0xf")
        a("v_mov_b32_dpp v16, v12 row_shr:1 row_mask:0xf bank_mask:0xf bound_ctrl:0")
    def side_ops(self, ad):
        hi = ["v_mov_b32_dpp v%d, v12 row_shl:%d row_mask:0xf bank_mask:0xf bound_ctrl:0" % (16 + r, 4 * r - 1) for r in (1, 2, 3)]
        red = ["v_add_f32_dpp v21, v21, v21 %s bank_mask:0xf" % k for k in ("row_ror:2 row_mask:0xf", "row_ror:1 row_mask:0xf", "row_bcast:15 row_mask:0xa", "row_bcast:31 row_mask:0xc")]
        return [[red[0], hi[0]], [red[1], hi[1]], [red[2], hi[2]], [red[3], "ds_write_b64 v%d, v[20:21]" % ad]]
    def ml_addr(self, dst, tmp, l):
        a = self
        a("s_lshl_b32 s%d, s%d, 3" % (sT1, sW)); a("s_add_u32 s%d, s%d, %d" % (sT1, sT1, a.LD_ML + 64 * l)); a("v_mov_b32 v%d, s%d" % (tmp, sT1))
        a.lanefn(dst, [(0, 6, 8)], tmp, const=a.LD_PP); a("v_cmp_eq_u32 vcc, 63, v%d" % vL); a("v_cndmask_b32 v%d, v%d, v%d, vcc" % (dst, dst, tmp))
    def pv(self, T):
        self("v_smfmac_f32_16x16x64_bf16 %s, %s, %s, v%d" % (vr(40 + 4 * (T // 2), 4), vr(12 + 4 * (T % 2), 4), vr(VB + 8 * T, 8), vIDX))
    def pv_ext(self, m):
        return "v_pk_add_f32 %s, %s, %s" % (vr(24 + 2 * m, 2), vr(40 + 4 * m, 2), vr(42 + 4 * m, 2))
    def oc_addr(self, dst):
        self("s_lshl_b32 s%d, s%d, 12" % (sT0, sW)); self.lanefn(dst, [(0, 6, 16)], 60, s=sT0, const=self.LD_OC)
    def oc_write(self, ad, tq):
        return "ds_write_b128 v%d, %s offset:%d" % (ad, vr(24 + 4 * tq, 4), 1024 * tq)
    def ml_calc(self, l):
        a = self; w = a.lab("L_mw"); r = a.lab("L_mr")
        a("s_lshl_b32 s%d, s%d, 3" % (sT0, sHL)); a("s_add_u32 s%d, s%d, s%d" % (sT0, sT0, sJ)); a("s_lshl_b32 s%d, s%d, 2" % (sT0, sT0))
        a("s_add_u32 s%d, s%d, s%d" % (sT0, sT0, sLOC)); a("s_add_u32 s%d, s%d, %d" % (sT0, sT0, L_LSE + 128 * l))
        a("v_add_u32 v23, s%d, v%d" % (sW, vL)); a("v_lshlrev_b32 v23, 24, v23")
        a(w + ":")
        a("ds_read_b64 v[38:39], v4 offset:%d" % (64 * l)); a("s_waitcnt lgkmcnt(0)")
        if l == 1:
            a("v_cmp_eq_u32 vcc, -1, v39"); a("s_cbranch_vccnz " + r)
            a.ool += [r + ":"] + a.budget() + ["s_branch " + w]
        a("v_max_f32_dpp v37, v38, v38 row_ror:4 row_mask:0xf bank_mask:0xf")
        a.flag_cmp()
        for k in (2, 1): a("v_max_f32_dpp v37, v37, v37 row_ror:%d row_mask:0xf bank_mask:0xf" % k)
        a("v_sub_f32 v38, v38, v37"); a("v_exp_f32 v38, v38"); a("v_mul_f32 v39, v38, v39")
        for k in (4, 2, 1): a("v_add_f32_dpp v39, v39, v39 row_ror:%d row_mask:0xf bank_mask:0xf" % k)
        a("v_rcp_f32 v21, v39"); a("v_log_f32 v22, v39")
        a("v_mul_f32 v38, v38, v21"); a("v_add_f32 v22, v22, v37"); a("v_min_u32 v22, -2, v22")
        a.local_store("buffer_store_dword v22, v23, %s, s%d offen" % (sr(R_WS, 4), sT0), pre=True)
        for w in range(8): a("v_readlane_b32 s%d, v38, %d" % (sF + w, w))
    def combine_addr(self):
        a = self
        a("s_mul_i32 s%d, s%d, 48" % (sT0, sW)); a("v_add_u32 v38, s%d, v%d" % (sT0, vL))
        a.lanefn(2, [(5, 2, 1024), (0, 4, 16), (4, 1, 8)], 39, const=a.LD_OC, src=38)
        a("s_lshr_b32 s%d, s%d, 1" % (sT0, sJ)); a("s_lshl_b32 s%d, s%d, 2" % (sT0, sT0)); a("s_and_b32 s%d, s%d, 1" % (sT1, sJ))
        a("s_add_u32 s%d, s%d, s%d" % (sT0, sT0, sT1))
        a("s_lshl_b32 s%d, s%d, 4" % (sT1, sT0)); a("s_lshl_b32 s%d, s%d, 3" % (sT0, sT0))
        a.lanefn(3, [(3, 2, 256), (2, 1, 32), (0, 2, 4)], 39, s=sT1)
        a.lanefn(38, [(3, 1, 256), (1, 1, 128), (2, 1, 16), (0, 1, 4)], 39, s=sT0, const=1024)
        a("v_cmp_gt_u32 vcc, 32, v%d" % vL); a("v_cndmask_b32 v3, v38, v3, vcc")
        a("s_lshl_b32 s%d, s%d, 1" % (sT0, sHL)); a("s_add_u32 s%d, s%d, s%d" % (sT0, sT0, sW)); a("s_mul_i32 s%d, s%d, 1536" % (sT0, sT0))
        a("s_add_u32 s%d, s%d, s%d" % (sT0, sT0, sLOC)); a("v_add_u32 v3, s%d, v3" % sT0)
        a.oob(3, "le", 48, 38)
        a.lanefn(4, [(0, 3, 8)], 39, const=a.LD_ML)
    def combine(self, l):
        a = self
        a("s_mov_b32 s%d, %d" % (sT0, L_O + l * 12288)); a.flag_cmp()
        a("s_waitcnt lgkmcnt(0)"); a("s_barrier")
        if a.o["stamps"] and "b2_%d" % l in a.o["stamps"]: a.stamp("b2_%d" % l); a("s_waitcnt lgkmcnt(0)")
        for n in range(4): a("ds_read2st64_b64 %s, v2 offset0:%d offset1:%d" % (vr(40 + 4 * n, 4), 16 * n, 16 * n + 8))
        for n in range(4):
            a("s_waitcnt lgkmcnt(%d)" % (3 - n))
            for h in range(2):
                f = sr(sF + 2 * n, 2); x = vr(40 + 4 * n + 2 * h, 2); d = vr(56 + 2 * h, 2)
                if n == 0: a("v_pk_mul_f32 %s, %s, %s op_sel:[0,%d] op_sel_hi:[1,%d]" % (d, x, f, h, h))
                else: a("v_pk_fma_f32 %s, %s, %s, %s op_sel:[0,%d,0] op_sel_hi:[1,%d,1]" % (d, x, f, d, h, h))
        a("v_pk_add_f32 v[56:57], v[56:57], v[58:59]")
        a("v_cvt_pk_bf16_f32 v56, v56, v57"); a("v_min_u32 v56, -2, v56")
        a.local_store("buffer_store_dword v56, v3, %s, s%d offen" % (sr(R_WS, 4), sT0), pre=True)
        a.stamp("o_pub%d" % l)

    def canary_pre(self, ph, ad, wave):
        a = self
        a("s_lshl_b32 s%d, s%d, 2" % (sM1, sAI)); a("s_add_u32 s%d, s%d, s%d" % (sM1, sM1, sLOC)); a("s_add_u32 s%d, s%d, %d" % (sM1, sM1, L_CAN + 128 * ph))
        a("s_xor_b32 s%d, s%d, %d" % (sM1 + 1, sW, wave)); a("v_add_u32 v%d, s%d, v%d" % (ad, sM1 + 1, vL)); a("v_lshlrev_b32 v%d, 24, v%d" % (ad, ad))
    def canary_store(self, ad, pre=False):
        self.local_store("buffer_store_dword v%d, v%d, %s, s%d offen" % (vL, ad, sr(R_WS, 4), sM1), pre)
    def canary_poll(self, ph):
        a = self
        if a.o["can4" if ph % 2 else "can3"] == 3: return
        a("s_add_u32 s%d, s%d, %d" % (sM1 + 1, sLOC, L_CAN + 128 * ph))
        a("v_min_u32 v9, 19, v%d" % vL); a("v_lshlrev_b32 v9, 2, v9")
        a.poll(["buffer_load_dword v12, v9, %s, s%d offen sc1" % (sr(R_WS, 4), sM1 + 1)], [12], 13, depth=a.o["dc"])
        a.stamp("can%d" % ph)
        if a.o["gd"][ph]: a("s_sleep %d" % a.o["gd"][ph])
    def p3(self, l):
        a = self; can = a.o["can3"]
        a("s_lshr_b32 s%d, s%d, 1" % (sT0, sW)); a("s_lshl_b32 s%d, s%d, 5" % (sT0, sT0)); a("s_add_u32 s%d, s%d, s%d" % (sT0, sT0, sLOC))
        a("s_add_u32 s%d, s%d, %d" % (sT2, sT0, L_LSE + 128 * l))
        a.lanefn(5, [(0, 3, 4)], 60); a.lanefn(22, [(4, 2, 8)], 60)
        lse = ["buffer_load_dword v18, v5, %s, s%d offen sc1" % (sr(R_WS, 4), sT2), "buffer_load_dwordx2 v[20:21], v22, %s, s%d offen sc1" % (sr(R_WS, 4), sT2)]
        def sh1():
            a("s_mul_i32 s%d, s%d, 6144" % (sT0, sW))
            a.lanefn(7, [(2, 4, 64), (4, 1, 32), (0, 2, 8)], 60, s=sT0, const=a.LD_WL)
            a("v_xor_b32 v8, 32, v7")
            a("s_mul_i32 s%d, s%d, 1536" % (sT3, sW)); a("s_add_u32 s%d, s%d, s%d" % (sT3, sT3, sLOC)); a("s_add_u32 s%d, s%d, %d" % (sT3, sT3, L_O + l * 12288))
            a("v_lshlrev_b32 v9, 4, v%d" % vL); a("v_lshlrev_b32 v10, 3, v%d" % vL)
            for t in range(2):
                for m in range(6): a("ds_read_b64_tr_b16 %s, v%d offset:%d" % (vr(36 + 12 * t + 2 * m, 2), 7 + t, 1024 * m))
            for r in range(24, 32, 2): a("v_mov_b64 v[%d:%d], 0" % (r, r + 1))
            a("s_lshl_b32 s%d, s%d, 8" % (sT0, sW))
            a.lanefn(11, [(0, 6, 4)], 60, s=sT0, const=a.LD_PP)
            a.lanefn(32, [(0, 6, 4)], 60, const=a.LD_PP)
            a("s_add_u32 s%d, s%d, %d" % (sT1, sXPW, 2 * l * XPS)); a("s_add_u32 s%d, s%d, 16384" % (sT0, sT1))
            a.lanefn(33, [(0, 4, 4), (5, 1, 64), (4, 1, 8192 if a.o["nc"] > 1 else 1 << 30)], 60)
            a.canary_pre(2 * l, 34, 3 if can else 2)
        a.poll(lse, [18, 20, 21], 19, shadow=sh1)
        ol = ["buffer_load_dwordx4 v[12:15], v9, %s, s%d offen sc1" % (sr(R_WS, 4), sT3),
              "buffer_load_dwordx2 v[16:17], v10, %s, s%d offen offset:1024 sc1" % (sr(R_WS, 4), sT3)]
        def sh2():
            a("v_max_f32_dpp v19, v18, v18 row_ror:4 row_mask:0xf bank_mask:0xf")
            for k in (2, 1): a("v_max_f32_dpp v19, v19, v19 row_ror:%d row_mask:0xf bank_mask:0xf" % k)
            for r in (18, 20, 21): a("v_sub_f32 v%d, v%d, v19" % (r, r))
            for r in (18, 20, 21): a("v_exp_f32 v%d, v%d" % (r, r))
            for k in (4, 2, 1): a("v_add_f32_dpp v18, v18, v18 row_ror:%d row_mask:0xf bank_mask:0xf" % k)
            a("v_rcp_f32 v18, v18"); a("v_mul_f32 v20, v20, v18"); a("v_mul_f32 v21, v21, v18")
            a("s_waitcnt lgkmcnt(0)")
        a.poll(ol, range(12, 18), 19, shadow=sh2)
        a.stamp("o_in%d" % l)
        for t in range(2): a("v_smfmac_f32_16x16x64_bf16 %s, v[12:15], %s, v%d" % (vr(24 + 4 * t, 4), vr(36 + 12 * t, 8), vIDX))
        for t in range(2): a("v_smfmac_f32_16x16x32_bf16 %s, v[16:17], %s, v%d" % (vr(24 + 4 * t, 4), vr(44 + 12 * t, 4), vIDX))
        for t in range(2): a("v_pk_add_f32 %s, %s, %s" % (vr(24 + 4 * t, 2), vr(24 + 4 * t, 2), vr(26 + 4 * t, 2)))
        for t in range(2): a("v_mul_f32 v%d, v%d, v20" % (24 + 4 * t, 24 + 4 * t))
        for t in range(2): a("v_fmac_f32 v%d, v%d, v21" % (24 + 4 * t, 25 + 4 * t))
        a("v_permlane32_swap_b32 v24, v28"); a("v_add_f32 v24, v24, v28")
        a("ds_write_b32 v11, v24")
        fin = a.lab("L_fin"); bk = a.lab("L_finb")
        a("s_cmp_eq_u32 s%d, 2" % sW); a("s_cbranch_scc1 " + fin)
        a.flag_cmp()
        if can == 2: a.canary_store(34, True)
        a("s_waitcnt lgkmcnt(0)"); a("s_barrier")
        if can == 1: a.canary_store(34, True)
        a(bk + ":")
        def final():
            a(fin + ":"); a.flag_cmp()
            a("s_waitcnt lgkmcnt(0)"); a("s_barrier")
            for n in range(4): a("ds_read2st64_b32 %s, v32 offset0:%d offset1:%d" % (vr(12 + 2 * n, 2), 2 * n, 2 * n + 1))
            a("s_waitcnt lgkmcnt(2)"); a("v_pk_add_f32 v[12:13], v[12:13], v[14:15]")
            a("s_waitcnt lgkmcnt(0)"); a("v_pk_add_f32 v[16:17], v[16:17], v[18:19]")
            a("v_pk_add_f32 v[12:13], v[12:13], v[16:17]"); a("v_add_f32 v14, v12, v13"); a("v_add_f32 v15, v12, v13")
            a("v_permlane16_swap_b32 v14, v15"); a("v_add_f32 v12, v14, v15"); a("v_min_u32 v12, -2, v12")
            a("buffer_store_dword v12, v33, %s, s%d offen sc1" % (sr(R_WS, 4), sT1))
            if a.o["nc"] == 4: a("buffer_store_dword v12, v33, %s, s%d offen sc1" % (sr(R_WS, 4), sT0))
            a.stamp("xp_pub%d" % (2 * l))
            if can == 0: a.canary_store(34, True)
            a("s_branch " + bk)
        a.aside(final)
    def p4b(self, l):
        a = self; can = a.o["can4"]
        a("s_sub_u32 s%d, s%d, 4" % (sT3, sW))
        a("s_lshl_b32 s%d, s%d, 12" % (sT2, sT3)); a("s_add_u32 s%d, s%d, %d" % (sT2, sT2, a.LD_W2))
        if l == 0:
            a.srd(R_WQ, P_W2, 1536 * 1280)
            a("s_mul_i32 s%d, s%d, 3" % (sT0, sX)); a("s_add_u32 s%d, s%d, s%d" % (sT0, sT0, sT3)); a("s_mul_i32 s%d, s%d, %d" % (sT0, sT0, 64 * 1280))
            a("s_lshl_b32 s%d, s%d, 6" % (sT1, sAI)); a("s_add_u32 s%d, s%d, s%d" % (sT0, sT0, sT1))
            a.lanefn(5, [(2, 4, 1280), (0, 2, 16)], 60, s=sT0)
            for m in range(4):
                a("s_add_u32 m0, s%d, %d" % (sT2, 1024 * m)); a("s_mov_b32 s%d, %d" % (sT0, m * 16 * 1280))
                a("buffer_load_dwordx4 v5, %s, s%d offen nt lds" % (sr(R_WQ, 4), sT0))
        a("s_mul_i32 s%d, s%d, 3" % (sT0, sX)); a("s_add_u32 s%d, s%d, s%d" % (sT0, sT0, sT3)); a("s_lshl_b32 s%d, s%d, 7" % (sT0, sT0))
        a.lanefn(5, [(0, 6, 2)], 60, s=sT0)
        a("global_load_ushort v8, v5, %s" % sr(P_B1, 2))
        a("s_lshl_b32 s%d, s%d, 11" % (sT0, sT3)); a.lanefn(11, [(0, 6, 16)], 60, s=sT0)
        a.lanefn(7, [(4, 2, 8 * 64), (2, 2, 64), (0, 2, 8)], 60, s=sT2)
        two = ["buffer_load_dwordx4 %s, v11, %s, s%d offen offset:%d sc1" % (vr(12 + 4 * n, 4), sr(R_WS, 4), sT1, 1024 * n) for n in range(2)]
        sums = lambda d: ["v_pk_add_f32 v[20:21], v[12:13], v[14:15]", "v_pk_add_f32 v[22:23], v[16:17], v[18:19]",
                          "v_pk_add_f32 v[20:21], v[20:21], v[22:23]", "v_add_f32 v%d, v20, v21" % d]
        a("s_add_u32 s%d, s%d, %d" % (sT1, sLOC, L_CS1))
        a.poll(two, range(12, 20), 60)
        for t in range(2):
            for u in range(4): a("ds_read_b64_tr_b16 %s, v7 offset:%d" % (vr(36 + 8 * t + 2 * u, 2), (32 * (u // 2) + 4 * (u % 2)) * 64 + 32 * t))
        for x in sums(4): a(x)
        a("v_lshlrev_b32 v8, 16, v8"); a.zero(52, 60)
        k2 = -2.0 * math.log2(math.e) * math.sqrt(2.0 / math.pi)
        a("v_mov_b32 v9, %s" % f32(k2 * 0.044715)); a("v_mov_b32 v10, %s" % f32(k2))
        a("s_lshl_b32 s%d, s%d, 7" % (sT0, sT3)); a("s_add_u32 s%d, s%d, %d" % (sT0, sT0, a.LD_HX + 384 * l))
        a.lanefn(32, [(0, 6, 8)], 60, s=sT0); a.lanefn(33, [(0, 6, 8)], 60, const=a.LD_QS + 4096)
        a("v_cmp_gt_u32 vcc, 16, v%d" % vL); a("v_cndmask_b32 v32, v33, v32, vcc")
        a.lanefn(33, [(0, 4, 8), (5, 1, 4)], 60, const=a.LD_HX + 384 * l)
        a.lanefn(34, [(0, 4, 4), (5, 1, 64), (4, 1, 8192 if a.o["nc"] > 1 else 1 << 30)], 60)
        a("s_add_u32 s%d, s%d, %d" % (sT3, sXPW, (2 * l + 1) * XPS)); a("s_add_u32 s%d, s%d, 16384" % (sT2, sT3))
        a.canary_pre(2 * l + 1, 5, 5 if can else 4)
        a.q_base(l, sT1, sT0, "h"); a.lanefn(7, [(0, 3, 8)], 60)
        a("s_waitcnt lgkmcnt(0)")
        d = a.o["dh"]
        a.poll(["buffer_load_dwordx2 v[24:25], v7, %s, s%d offen sc1" % (sr(R_WS, 4), sT0)] + two, [24, 25], 26, depth=d, extra=2)
        w = a.lab("L_hw"); r = a.lab("L_hr"); ok = a.lab("L_hk")
        for x in two: a(x)
        st = a.stats_ops(2, False)
        a("v_add_f32_dpp v2, v24, v24 row_ror:4 row_mask:0xf bank_mask:0xf"); a("v_add_f32_dpp v3, v25, v25 row_ror:4 row_mask:0xf bank_mask:0xf")
        for x in st[2:]: a(x)
        a("v_mul_f32 v2, v2, v3"); a("v_fma_f32 v8, -v2, v4, v8")
        a("s_waitcnt vmcnt(%d)" % (3 * (d - 1) + 2))
        a(w + ":")
        for x in sums(20): a(x)
        a("v_cmp_u_f32 vcc, v20, v20"); a("v_fma_f32 v20, v20, v3, v8"); a("s_cbranch_vccnz " + r)
        a(ok + ":")
        def slow():
            again = a.lab("L_ha")
            a(r + ":")
            for x in a.budget(): a(x)
            a("s_and_b32 s%d, s%d, 15" % (sF, sBUD)); a("s_cbranch_scc1 " + again)
            a("s_waitcnt vmcnt(0)"); a.check(range(12, 20), 21); a("s_cbranch_vccnz " + again)
            for x in sums(20): a(x)
            a("v_fma_f32 v20, v20, v3, v8"); a("s_branch " + ok)
            a(again + ":")
            for x in two: a(x)
            a("s_waitcnt vmcnt(2)"); a("s_branch " + w)
        a.aside(slow)
        a.stamp("h_in%d" % l)
        a("v_mul_f32 v21, v20, v20"); a("v_fma_f32 v21, v21, v9, v10"); a("v_mul_f32 v21, v21, v20")
        a("v_exp_f32 v21, v21"); a.flag_cmp(); a("v_add_f32 v21, 1.0, v21"); a("v_rcp_f32 v21, v21")
        if can == 2: a.canary_store(5, True)
        a("v_mul_f32 v20, v20, v21")
        a("v_mov_b32_dpp v21, v20 row_shl:1 row_mask:0xf bank_mask:0xf bound_ctrl:0")
        a("v_cvt_pk_bf16_f32 v28, v20, v21")
        for r_ in (1, 2, 3): a("v_mov_b32_dpp v%d, v28 row_shl:%d row_mask:0xf bank_mask:0xf bound_ctrl:0" % (28 + r_, 4 * r_))
        for t in range(2): a("v_smfmac_f32_16x16x64_bf16 %s, v[28:31], %s, v%d" % (vr(52 + 4 * t, 4), vr(36 + 8 * t, 8), vIDX))
        a("v_add_f32 v22, v52, v54"); a("v_add_f32 v23, v56, v58")
        a("ds_write_b64 v32, v[22:23]")
        if can == 1: a.canary_store(5, True)
        sk = a.skip_unless("eq", "s%d" % sW, 4)
        lw = a.lab("L_xw"); lr = a.lab("L_xr")
        a(lw + ":")
        a("ds_read2_b32 v[20:21], v33 offset0:0 offset1:32"); a("ds_read_b32 v22, v33 offset:256"); a.flag_cmp()
        a("s_waitcnt lgkmcnt(0)")
        a("v_max3_u32 v23, v20, v21, v22"); a("v_add_f32 v20, v20, v21"); a("v_cmp_eq_u32 vcc, -1, v23"); a("v_add_f32 v20, v20, v22")
        a("s_cbranch_vccnz " + lr)
        a.ool += [lr + ":"] + a.budget() + ["s_branch " + lw]
        a("v_min_u32 v20, -2, v20")
        a("buffer_store_dword v20, v34, %s, s%d offen sc1" % (sr(R_WS, 4), sT3))
        if a.o["nc"] == 4: a("buffer_store_dword v20, v34, %s, s%d offen sc1" % (sr(R_WS, 4), sT2))
        a.stamp("xp_pub%d" % (2 * l + 1))
        if can == 0: a.canary_store(5, True)
        a(sk + ":")
        if l == 0: a("s_waitcnt vmcnt(0)")
    def slab(self, l, kind, ph, lazy=False):
        a = self; w7 = a.lab("L_w7"); end = a.lab("L_se")
        a("s_cmp_eq_u32 s%d, 7" % sW); a("s_cbranch_scc1 " + w7)
        sk = a.skip_unless("lt", "s%d" % sW, 6)
        a.p1_prefetch(l, kind)
        if kind == "h" and l == 0: a.p1_mat(l, "c")
        a(sk + ":")
        a("s_cmp_lt_u32 s%d, 6" % sW)
        a("s_barrier")
        if a.o["stamps"] and "bx%d" % ph in a.o["stamps"]: a.stamp("bx%d" % ph); a("s_waitcnt lgkmcnt(0)")
        a("s_cbranch_scc0 " + end)
        a.p1_mat(l, kind)
        a.stamp("q1_pub" if kind == "q" else "h_pub%d" % l)
        a(end + ":")
        def wave7():
            a(w7 + ":")
            a.slice_addr(5, 16, 2560); a.p1_slice_pre(l, kind)
            if lazy:
                sk2 = a.skip_unless("lg", "s%d" % sHL, 3)
                a("s_add_u32 s%d, s%d, %d" % (sT0, sLOC, L_STH)); a("v_mov_b32 v9, 0")
                a.poll(["buffer_load_dword v12, v9, %s, s%d offen sc1" % (sr(R_WS, 4), sT0)], [12], 13)
                a.gather(ph - 1); a.unpack_x()
                a(sk2 + ":")
            if kind == "q": a.add_b2()
            a.gather(ph, pre=lambda: a.canary_poll(ph))
            a.stamp("xp_in%d" % ph)
            a.p1_slice_write()
            a("s_barrier")
            a.p1_slice_stats()
            a("s_branch " + end)
        a.aside(wave7)
    def attention1(self):
        a = self
        a.lanefn(5, [(0, 6, 16)], 60, const=a.LD_QS)
        def prep():
            a.zero(24, 64); a.ml_addr(10, 11, 1); a.oc_addr(7); a("v_mov_b32 v11, %d" % (a.LD_QS + 3072))
            if a.o["stag"]:
                a("s_setprio 1"); sk = a.skip_unless("lt", "s%d" % sW, 4); a("s_setprio 2"); a(sk + ":")
        def lower():
            if a.o["stag"] == 1: sk = a.lab("L_lo"); a("s_cbranch_scc0 " + sk); a("s_setprio 0"); a(sk + ":")
            if a.o["stag"] == 3: a("s_setprio 3")
        oth = a.lab("L_qo"); bar = a.lab("L_qb")
        a.q_base(1, sT2, sT3)
        a("v_lshlrev_b32 v8, 4, v%d" % vL)
        def third(k):
            a.poll(["buffer_load_dwordx4 %s, v8, %s, s%d offen offset:%d sc1" % (vr(12 + 4 * k, 4), sr(R_WS, 4), sT2, 1024 * k)], range(12 + 4 * k, 16 + 4 * k), 9,
                   shadow=prep, depth=a.o["dq"])
            a("ds_write_b128 v5, %s offset:%d" % (vr(12 + 4 * k, 4), 1024 * k))
        for k in (1, 2):
            lk = a.lab("L_q3"); a("s_cmp_eq_u32 s%d, %d" % (sW, k + 1)); a("s_cbranch_scc1 " + lk)
            a.aside(lambda: (a(lk + ":"), third(k), a("s_branch " + bar)))
        a("s_cmp_eq_u32 s%d, 1" % sW); a("s_cbranch_scc0 " + oth)
        third(0)
        a(bar + ":")
        a("s_waitcnt lgkmcnt(0)")
        def others():
            a(oth + ":"); prep()
            a("s_cmp_eq_u32 s%d, 6" % sW); a("s_cbranch_scc0 " + bar)
            a.lanefn(16, [(0, 3, 8)], 17)
            a.poll(["buffer_load_dwordx2 v[8:9], v16, %s, s%d offen sc1" % (sr(R_WS, 4), sT3)], [8, 9], 18)
            for x in a.stats_ops(8): a(x)
            a("ds_write_b64 v11, v[8:9]"); a("s_branch " + bar)
        a.aside(others)
        a("s_barrier")
        if a.o["stamps"] and "q1_in" in a.o["stamps"]: a.stamp("q1_in"); a("s_waitcnt lgkmcnt(0)")
        for k in range(3): a("ds_read_b128 %s, v5 offset:%d" % (vr(12 + 4 * k, 4), 1024 * k))
        a("ds_read_b64 v[8:9], v11")
        a("s_cmp_lt_u32 s%d, 4" % sW)
        a("s_waitcnt lgkmcnt(3)")
        a.qk(12, 24, ["s_waitcnt lgkmcnt(2)", None, "s_waitcnt lgkmcnt(0)", None, "v_mul_f32 v8, v8, v%d" % vKC, None, None, None, None, None, "s_waitcnt vmcnt(0)"], after=lower)
        a.stamp("qk_end"); a.softmax(8); a.stamp("sm_end")
        side = a.side_ops(10) + [["s_nop 1"], ["s_nop 1"], ["s_nop 1"], [a.pv_ext(0), "s_nop 0"], [a.pv_ext(1), a.oc_write(7, 0)], [a.pv_ext(2), "s_nop 0"],
                                 [a.pv_ext(3), a.oc_write(7, 1)], []]
        if a.o["stag"] == 3: a("s_setprio 0")
        for n, T in enumerate((0, 2, 4, 6, 1, 3, 5, 7, 8, 10, 9, 11)):
            a.pv(T)
            for x in side[n]:
                if a.o["ocfull"] or "write_b128" not in x: a(x)
        a("s_cmp_lt_u32 s%d, 2" % sW)
        a.exec_(0xffff)
        if not a.o["ocfull"]: a(a.oc_write(7, 0)); a(a.oc_write(7, 1))
        a(a.pv_ext(4)); a(a.pv_ext(5)); a(a.oc_write(7, 2)); a.exec_(-1)
        if a.o["stag"]: a("s_setprio 0")
        a.stamp("pv1")

    def build(self):
        a = self; o = a.o
        W = lambda w: a.skip_unless("eq", "s%d" % sW, w)
        if o["diag_hold"]: a("s_mov_b64 s[100:101], 0")
        a.stamp("start")
        a("s_load_dwordx16 s[4:19], s[0:1], 0"); a("s_load_dwordx8 s[20:27], s[0:1], 64"); a("s_load_dwordx2 s[28:29], s[0:1], 96")
        a("s_cmp_ge_u32 s2, 256"); a("s_cbranch_scc1 L_exit")
        if o["l2warm"]:
            a("s_getpc_b64 %s" % sr(sM1, 2)); a("L_pc:")
            a("v_lshlrev_b32 v5, 6, v0"); a("v_min_u32 v5, L_exit-L_pc, v5")
            a("global_load_dword v59, v5, %s" % sr(sM1, 2))
        a("v_lshrrev_b32 v5, 6, v0"); a("v_and_b32 v0, 63, v0"); a("v_readfirstlane_b32 s%d, v5" % sW)
        a("s_and_b32 s%d, s2, 7" % sX); a("s_lshr_b32 s%d, s2, 3" % sC); a("s_and_b32 s%d, s%d, 3" % (sHL, sC)); a("s_lshr_b32 s%d, s%d, 2" % (sJ, sC))
        a("s_lshl_b32 s%d, s%d, 2" % (sH, sX)); a("s_add_u32 s%d, s%d, s%d" % (sH, sH, sHL))
        a("s_mul_i32 s%d, s%d, 3" % (sAI, sJ)); a("s_add_u32 s%d, s%d, s%d" % (sAI, sAI, sHL)); a("s_cmp_eq_u32 s%d, 3" % sHL); a("s_cselect_b32 s%d, 31, s%d" % (sAI, sAI))
        a.lanefn(8, [(5, 1, 4), (4, 1, 1)], 60); a("v_and_b32 v9, 7, v0"); a("v_xor_b32 v8, v8, v9")
        a.lanefn(10, [(3, 3, 384)], 60); a("v_lshl_add_u32 v5, v8, 4, v10"); a("v_xor_b32 v6, 32, v5")
        a.lanefn(8, [(4, 2, 2)], 60); a("v_xor_b32 v8, v8, v9"); a("v_lshl_add_u32 v7, v8, 4, v10")
        a.lanefn(vX0, [(3, 3, 12288), (0, 3, 16)], 60)
        a("s_mul_i32 s%d, s%d, 12582912" % (sT0, sH)); a("s_mul_i32 s%d, s%d, %d" % (sT1, sJ, 3072 if o["ilv"] else 24576))
        a("s_add_u32 s%d, s%d, s%d" % (sT0, sT0, sT1)); a("s_add_u32 s%d, s%d, %d" % (sT0, sT0, 11010048 - (1024 if o["rot"] else 0)))
        a("s_sub_u32 s%d, %d, s%d" % (sT1, 1572864 + (1024 if o["rot"] else 0), sT1))
        if o["rot"] == 1: a("s_and_b32 s%d, s%d, 7" % (sROT, sH))
        if o["rot"] == 2: a("s_mov_b32 s%d, s%d" % (sROT, sX))
        if o["rot"] == 3: a("s_lshl_b32 s%d, s%d, 1" % (sROT, sHL))
        if o["rot"] == 4: a("s_add_u32 s%d, s%d, s%d" % (sROT, sH, sX)); a("s_and_b32 s%d, s%d, 7" % (sROT, sROT))
        a("s_mul_i32 s%d, s%d, 384" % (sT2, sH)); a("s_mul_i32 s%d, s%d, %d" % (sT3, sJ, 80 * 12288)); a("s_add_u32 s%d, s%d, s%d" % (sT2, sT2, sT3))
        a("s_sub_u32 s%d, %d, s%d" % (sT3, 640 * 12288 + 2048, sT2))
        a("s_lshl_b32 s%d, s%d, 11" % (sRING, sW)); a("s_add_u32 s%d, s%d, %d" % (sRING, sRING, a.LD_RING))
        a("s_mul_i32 s%d, s%d, %d" % (sLOC, sX, LOC))
        a("s_lshl_b32 s%d, s%d, 9" % (sARR, sX)); a("s_add_u32 s%d, s%d, %d" % (sARR, sARR, ARR))
        a("s_mov_b32 s%d, %d" % (sBUD, o["budget"])); a("s_mov_b32 s%d, 1" % sFLAG)
        a("s_getreg_b32 s%d, hwreg(20, 0, 3)" % sXCC)
        for r in (vX1, 24, 34): a("v_mov_b32 v%d, 0" % r)
        a("v_mov_b64 v[12:13], -1"); a("v_mov_b64 v[14:15], -1"); a("v_lshlrev_b32 v10, 4, v0")
        a("s_waitcnt lgkmcnt(0)")
        a.srd(R_K, P_K, "s%d" % sT1, off=sT0); a.srd(R_V, P_V, "s%d" % sT1, off=sT0); a.srd(R_WS, P_WS, WS_BYTES)
        a.srd(R_WQ, P_WQ, "s%d" % sT3, off=sT2); a("s_sub_u32 s%d, s%d, 2048" % (R_WQ, R_WQ)); a("s_subb_u32 s%d, s%d, 0" % (R_WQ + 1, R_WQ + 1))
        a.stamp("pre_dma")
        order, upto, wait = a.plan(); done = [0]
        def wl_setup():
            lb = a.lab("L_wb"); le = a.lab("L_we")
            a("s_cmp_lg_u32 s%d, 3" % sHL); a("s_cbranch_scc0 " + lb)
            a("s_mul_i32 s%d, s%d, %d" % (sT0, sX, 768 * 1280)); a("s_lshl_b32 s%d, s%d, 6" % (sT1, sAI)); a("s_add_u32 s%d, s%d, s%d" % (sT0, sT0, sT1))
            a.lanefn(38, [(4, 1, 2)], 39); a("v_xor_b32 v38, v38, v0"); a("v_and_b32 v38, 3, v38")
            a.lanefn(vX1, [(5, 1, 8 * 1280), (4, 1, 2 * 1280), (3, 1, 4 * 1280), (2, 1, 16 * 1280)], 39, s=sT0); a("v_lshl_add_u32 v%d, v38, 4, v%d" % (vX1, vX1))
            a("s_mov_b32 s%d, %d" % (sWA, 32 * 1280)); a("s_mov_b32 s%d, %d" % (sWB, 1280 - 1024))
            a("s_branch " + le)
            a(lb + ":")
            a("s_mul_i32 s%d, s%d, 384" % (sT0, sX)); a("s_mul_i32 s%d, s%d, %d" % (sT1, sJ, 80 * 3072)); a("s_add_u32 s%d, s%d, s%d" % (sT0, sT0, sT1))
            a.lanefn(vX1, [(0, 6, 16)], 39, s=sT0)
            a("v_mov_b32 v38, %d" % (3072 - 384)); a("v_cmp_lt_u32 vcc, 23, v0"); a("v_cndmask_b32 v38, 0, v38, vcc"); a("v_add_u32 v%d, v38, v%d" % (vX1, vX1))
            a("v_mov_b32 v38, 0x7f000000"); a("v_cmp_lt_u32 vcc, 47, v0"); a("v_cndmask_b32 v%d, v%d, v38, vcc" % (vX1, vX1))
            a("s_mov_b32 s%d, %d" % (sWA, 4 * 3072)); a("s_mov_b32 s%d, %d" % (sWB, 2 * 3072 - 1024))
            a(le + ":")
        def issue(k, burst=False, first=False):
            if done[0] >= k: return
            sk = W(LOADER)
            if first and o["prio"]: a("s_setprio %d" % o["prio"])
            for i in range(done[0], k):
                if order[i] == ("w0" if o["nwl"] else "r0"): wl_setup()
                a.block(order[i], None if burst or i >= o["burst_from"] else o["W"])
            a(sk + ":"); done[0] = k
        issue(upto[0], first=True)
        a.stamp("post_dma")
        assert "w0" not in order[:upto[0]]
        a("s_cmp_lt_u32 s%d, 20" % sAI); a("s_cselect_b32 s%d, %d, 0" % (sT0, 6144 * 1280))
        a("s_add_u32 s%d, s%d, 1" % (sT1, sJ)); a("s_mul_i32 s%d, s%d, %d" % (sT1, sT1, 80 * 3072))
        a("s_cmp_lg_u32 s%d, 3" % sHL); a("s_cselect_b64 %s, %s, %s" % (sr(R_WL, 2), sr(P_WO, 2), sr(P_W1, 2)))
        a("s_cselect_b32 s%d, s%d, s%d" % (R_WL + 2, sT0, sT1)); a("s_mov_b32 s%d, 0x20000" % (R_WL + 3))
        a("s_add_u32 s%d, s%d, %d" % (sT0, P_WS, XP)); a("s_sub_u32 s%d, 0, s%d" % (sT0, sT0)); a("s_and_b32 s%d, s%d, 0x7fff" % (sT0, sT0)); a("s_add_u32 s%d, s%d, %d" % (sT0, sT0, XP))
        a("s_lshr_b32 s%d, s%d, 1" % (sT1, sX)); a("s_lshl_b32 s%d, s%d, 15" % (sT1, sT1)); a("s_add_u32 s%d, s%d, s%d" % (sXPW, sT0, sT1))
        a("s_and_b32 s%d, s%d, 1" % (sT1, sX)); a("s_mul_i32 s%d, s%d, 2560" % (sT1, sT1)); a("s_add_u32 s%d, s%d, s%d" % (sXPW, sXPW, sT1))
        a("s_lshl_b32 s%d, s%d, 7" % (sT1, sAI)); a("s_add_u32 s%d, s%d, s%d" % (sXPW, sXPW, sT1))
        a("s_mov_b32 s%d, s%d" % (sXPB, sT0))
        a("s_lshr_b32 s%d, s%d, 4" % (sT1, sC)); a("s_lshl_b32 s%d, s%d, 15" % (sT1, sT1)); a("s_and_b32 s%d, s%d, 15" % (sT2, sC)); a("s_lshl_b32 s%d, s%d, 7" % (sT2, sT2))
        a("s_add_u32 s%d, s%d, s%d" % (sT2, sT2, sT1)); a("s_add_u32 s%d, s%d, s%d" % (sT2, sT2, sT0)); a("s_add_u32 s%d, s%d, 5120" % (sT2, sT2))
        a("s_lshl_b32 s%d, s%d, 16" % (sT1, sX)); a("s_add_u32 s%d, s%d, s%d" % (sT2, sT2, sT1))
        a("s_add_u32 s10, s%d, s%d" % (P_WS, sT2)); a("s_addc_u32 s11, s%d, 0" % (P_WS + 1))
        a("s_lshr_b32 s%d, s%d, 2" % (sT1, sXCC)); a("s_xor_b32 s%d, s%d, %d" % (sT1, sT1, o["pol"])); a("s_mul_i32 s%d, s%d, %d" % (sT1, sT1, 8192 if o["nc"] > 1 else 0)); a("s_add_u32 s%d, s%d, s%d" % (sXPR, sT0, sT1))
        if o["nc"] == 4: a("s_and_b32 s%d, s%d, 1" % (sT1, sXCC)); a("s_lshl_b32 s%d, s%d, 14" % (sT1, sT1)); a("s_add_u32 s%d, s%d, s%d" % (sXPR, sXPR, sT1))
        sk = W(9 if o["strip"] & 2 else CTRL)
        sk2 = a.skip_unless("eq", "s%d" % sC, 31)
        a.exec_(0xffffff)
        a("buffer_store_dwordx4 v[12:15], v10, %s, s%d offen sc1" % (sr(R_WS, 4), sARR))
        a.exec_(-1)
        a(sk2 + ":")
        sk2 = a.skip_unless("lt", "s%d" % sAI, 20)
        a.lanefn(16, [(3, 2, XPS), (0, 3, 16), (5, 1, 8192 if o["nc"] > 1 else 1 << 30)], 60)
        if not o["noclr"] & 1:
            a("buffer_store_dwordx4 v[12:15], v16, %s, s%d offen sc1" % (sr(R_WS, 4), sXPW))
            if o["nc"] == 4: a("s_add_u32 s%d, s%d, 16384" % (sT1, sXPW)); a("buffer_store_dwordx4 v[12:15], v16, %s, s%d offen sc1" % (sr(R_WS, 4), sT1))
        a(sk2 + ":")
        if o["race"]:
            a.lanefn(16, [(0, 3, 16), (3, 1, 8192), (4, 2, 1 << 28)], 60)
            a("buffer_store_dwordx4 v[12:15], v16, %s, s%d offen sc1" % (sr(R_WS, 4), sT2))
        def clear_local(ad, fl):
            a("s_mul_i32 s%d, s%d, %d" % (sT0, sC, CLR)); a("s_add_u32 s%d, s%d, s%d" % (sT0, sT0, sLOC))
            a.exec_((1 << ((CLR - 1024) // 16)) - 1)
            a("buffer_store_dwordx4 v[12:15], v%d, %s, s%d offen offset:1024 %s" % (ad, sr(R_WS, 4), sT0, fl))
            a.exec_(-1)
            a("buffer_store_dwordx4 v[12:15], v%d, %s, s%d offen %s" % (ad, sr(R_WS, 4), sT0, fl))
        if not o["noclr"] & 2 and o["lclr_at"] < 0: clear_local(10, o["lclrf"])
        a.exec_(-1)
        a.lanefn(16, [(0, 6, 16)], 60, const=a.LD_ML); a("ds_write_b128 v16, v[12:15]")
        a("v_subrev_u32 v16, 8, v0"); a("v_cmp_gt_u32 vcc, 40, v16"); a("v_mov_b32 v16, %s" % ONES); a("v_cndmask_b32 v18, 0, v16, vcc")
        a("v_min_u32 v16, 55, v0"); a("v_lshlrev_b32 v16, 2, v16"); a("v_add_u32 v16, %d, v16" % (a.LD_XB + 160))
        a("ds_write_b32 v16, v18")
        a.lanefn(vX1, [(0, 3, 32)], 60)
        a(sk + ":")
        sk = W(7); a.slice_addr(16, 8, 4)
        a("global_load_dword v28, v16, %s" % sr(P_X, 2)); a("global_load_dword v%d, v16, %s" % (vB, sr(P_B2, 2)))
        a(sk + ":")
        a.lanefn(8, [(1, 3, 1)], 60); a("v_lshrrev_b32 v9, 4, v0"); a("v_xor_b32 v9, v8, v9")
        a.lanefn(8, [(2, 1, 1024), (3, 1, 512), (0, 2, 128)], 60, s=sRING); a("v_lshl_add_u32 v8, v9, 4, v8"); a("v_xor_b32 v9, 64, v8")
        a.lanefn(vIDX, [(1, 1, 0xAAAA)], 60, const=0x4444)

        go_ld = "global_load_dword v%d, v%d, %s sc1" % (vX0, vX1, sr(P_DBG, 2))
        arr_ld = "buffer_load_dword v%d, v24, %s, s%d offen sc1" % (vX0, sr(R_WS, 4), sARR)
        vd_ld = go_ld.replace(" sc1", " offset:4 sc1"); sSAME = sF
        e = {k: o[k] for k in ("go_s", "go_i", "arr_s", "arr_i", "arr_c", "q_c", "vd_i", "vd_c", "warm", "preread")}
        e["p1"] = max(3, max(o["qpos"]) + 1 if o["qpos"] else 0)
        e["dec"] = e["arr_c"] + 1; e["kc"] = e["q_c"] + 1; e["qk"] = e["kc"] + 1; e["ml"] = e["qk"] + 1
        assert e["go_s"] < e["go_i"] < e["arr_s"] < e["arr_i"] < e["arr_c"] < e["vd_i"] - 1 < e["vd_c"] <= 20 and e["go_s"] < e["p1"] < e["arr_s"] - 1
        assert e["dec"] < e["q_c"] and e["kc"] >= 12 and e["ml"] <= e["preread"] <= 20
        late = "r0" in order
        self.sched = dict(order=order, upto=upto, wait=wait, ev=e)
        STG = a.LD_W2; qld = None
        for s in range(24):
            if s == 21:
                a("s_branch L_tail"); a(".p2align 10"); a("L_tail:")
            a("s_waitcnt vmcnt(%d)" % wait[s])
            a("s_barrier")
            a.reads(s)
            if s < 21 or o["strip"]: issue(upto[s + 1] if s < 23 else len(order), burst=s in (e["kc"], e["qk"]) and not o["strip"])
            a("s_waitcnt lgkmcnt(0)")
            a.stamp("v_in" if s == 23 else "st%d" % s)
            if s == 11:
                a.lanefn(8, [(2, 4, 128), (3, 2, 32), (0, 2, 8)], 60, s=sRING)
                for tt in (1, 2, 3): a("v_xor_b32 v%d, %d, v8" % (8 + tt, 32 * tt))
            if s == e["warm"] and o["pads"]:
                sk = a.skip_unless("lt", "s%d" % sW, o["npad"])
                a("s_mov_b64 exec, 0")
                for k in range(1, o["npad"]): a("s_cmp_eq_u32 s%d, %d" % (sW, k)); a("s_cbranch_scc1 L_padin%d" % k)
                a("s_branch L_padin0"); a("L_padback:"); a("s_mov_b64 exec, -1")
                a(sk + ":")
            if o["strip"]:
                if s == 23: a("s_waitcnt vmcnt(0)"); a.stamp("out"); a("s_branch L_done")
                if s >= 21 or s > o["upto_ev"] or o["upto_ev"] == 99: continue
            if s == e["go_s"]:
                sk = W(CTRL); sk2 = a.skip_unless("eq", "s%d" % sC, 31)
                a("s_lshl_b32 s%d, s%d, 5" % (sT0, sX)); a("v_mov_b32 v16, s%d" % sT0)
                a("s_add_u32 s%d, s%d, 1" % (sT0, sXCC)); a("v_mov_b32 v12, s%d" % sT0)
                a("s_waitcnt vmcnt(%d)" % (0 if o["noclr"] or o["lclr_at"] >= 0 else 3 if o["race"] else 2))
                a.stamp("clr_ack")
                a.exec_(1); a("global_store_dword v16, v12, %s sc1" % sr(P_DBG, 2)); a.exec_(-1)
                a(sk2 + ":"); a(sk + ":")
            if s == e["p1"] - 1 or s == e["preread"] + 2:
                sk = a.skip_unless("lt", "s%d" % sW, 5); a("s_waitcnt vmcnt(0)"); a(sk + ":")
            if s == e["p1"] - 1:
                sk = W(7); a.p1_slice_pre(0); a("s_waitcnt vmcnt(0)"); a.p1_slice_write(); a(sk + ":")
            def p1_layer0():
                sk = W(7); a.p1_slice_stats(); a(sk + ":")
                sk = a.skip_unless("lt", "s%d" % sW, 6)
                a.p1_prefetch(0); a.p1_mat(0)
                a(sk + ":")
            def arrive(off, fl):
                return ["s_lshl_b32 s%d, s%d, 2" % (sT0, sC), "s_add_u32 s%d, s%d, s%d" % (sT0, sT0, sARR), "s_mov_b64 exec, 1",
                        "buffer_store_dword v25, v0, %s, s%d offen offset:%d %s" % (sr(R_WS, 4), sT0, off, fl), "s_mov_b64 exec, -1"]
            if s == e["p1"] and "p" not in o["omit"]:
                p1_layer0(); a.stamp("q0_pub")
            if s == o["lclr_at"]:
                assert s < e["arr_s"] - 1
                sk = W(CTRL); a("v_mov_b64 v[12:13], -1"); a("v_mov_b64 v[14:15], -1"); a("v_lshlrev_b32 v16, 4, v0"); clear_local(16, o["lclrf"]); a(sk + ":")
            if s == o["race_at"]:
                sk = W(CTRL)
                assert s < e["p1"]
                a("s_waitcnt vmcnt(0)")
                if o["race"]: a.race(sF + 1)
                else: a("s_mov_b32 s%d, 0" % (sF + 1))
                a(sk + ":")
            if s == e["go_i"]:
                sk = W(CTRL); a(go_ld); a(sk + ":")
            if s == e["arr_s"] - 1:
                sk = a.skip_unless("lg", "s%d" % sW, LOADER); a("s_waitcnt vmcnt(0)"); a.stamp("ack_ok"); a(sk + ":")
            if s == e["arr_s"]:
                sk = W(CTRL)
                w = a.lab("L_cw"); r = a.lab("L_cr")
                a(w + ":")
                a("v_readlane_b32 s%d, v%d, s%d" % (sT0, vX0, sX)); a("s_cmp_eq_u32 s%d, 0" % sT0); a("s_cbranch_scc1 " + r)
                a.ool += [r + ":"] + a.budget() + [go_ld, "s_waitcnt vmcnt(0)", "s_branch " + w]
                far = a.lab("L_far"); bk = a.lab("L_fb")
                a("s_lshr_b32 s%d, s%d, 2" % (sT1, sXCC)); a("s_xor_b32 s%d, s%d, s%d" % (sT1, sT1, sF + 1))
                a("s_and_b32 s%d, s%d, 1" % (sT1, sT1)); a("v_mov_b32 v25, s%d" % sT1)
                a("s_sub_u32 s%d, s%d, 1" % (sT0, sT0)); a("s_cmp_eq_u32 s%d, s%d" % (sT0, sXCC)); a("s_cselect_b32 s%d, 1, 0" % sSAME)
                a("s_cbranch_scc0 " + far)
                for x in arrive(0, ""): a(x)
                a(bk + ":")
                a.ool += [far + ":"] + arrive(128, "sc1") + ["s_branch " + bk]
                a.stamp("go_ok")
                a(sk + ":")
            if s == e["arr_i"]:
                sk = W(CTRL); a("v_lshlrev_b32 v24, 2, v0"); a(arr_ld); a(sk + ":")
            if s == e["vd_i"]:
                sk = W(CTRL); a(vd_ld); a(sk + ":")
            if s == e["vd_c"]:
                sk = W(CTRL)
                w = a.lab("L_cw"); r = a.lab("L_cr")
                a(w + ":"); a("s_waitcnt vmcnt(0)")
                a("v_cmp_eq_u32 vcc, 0, v%d" % vX0); a("s_cbranch_vccnz " + r)
                a.ool += [r + ":"] + a.budget() + [vd_ld, "s_branch " + w]
                if o["race"]:
                    for k in (4, 2, 1): a("v_add_u32_dpp v%d, v%d, v%d row_ror:%d row_mask:0xf bank_mask:0xf" % (vX0, vX0, vX0, k))
                    a("v_mov_b32 v37, %d" % (a.LD_FLAG + 4)); a("ds_write_b32 v37, v%d" % vX0); a("s_waitcnt lgkmcnt(0)")
                a.stamp("vd_ok")
                a(sk + ":")
            if s == e["vd_c"] + 1 and o["race"]:
                sk = W(7)
                a("v_mov_b32 v37, %d" % (a.LD_FLAG + 4)); a("ds_read_b32 v37, v37"); a("s_lshr_b32 s%d, s%d, 2" % (sT1, sXCC)); a("s_waitcnt lgkmcnt(0)")
                a("v_readfirstlane_b32 s%d, v37" % sT0); a("s_cmp_gt_u32 s%d, %d" % (sT0, 128 + 8)); a("s_cselect_b32 s%d, 1, 0" % sT0)
                a("s_xor_b32 s%d, s%d, s%d" % (sT0, sT0, sT1)); a("s_lshl_b32 s%d, s%d, 13" % (sT0, sT0)); a("s_add_u32 s%d, s%d, s%d" % (sXPR, sXPB, sT0))
                a(sk + ":")
            if s == e["arr_c"]:
                sk = W(CTRL)
                w = a.lab("L_cw"); r = a.lab("L_cr"); dn = a.lab("L_cd")
                a(w + ":"); a("s_waitcnt vmcnt(0)")
                a("v_cmp_ne_u32 vcc, -1, v%d" % vX0); a("s_mov_b32 s%d, 0" % sT0); a("s_mov_b32 s%d, 16" % (sF + 4))
                a("s_cmp_eq_u32 s%d, 0" % sSAME); a("s_cbranch_scc1 " + dn)
                a("s_cmp_lg_u32 vcc_hi, 0"); a("s_cbranch_scc1 " + dn)
                a("s_cmp_lg_u32 vcc_lo, -1"); a("s_cbranch_scc1 " + r)
                a.ool += [r + ":"] + a.budget() + [arr_ld, "s_branch " + w]
                a("v_cmp_eq_u32 vcc, 1, v%d" % vX0); a("s_bcnt1_i32_b32 s%d, vcc_lo" % (sF + 4))
                a("s_mov_b32 s%d, %d" % (sT0, 0 if o["force_global"] else 1))
                a(dn + ":")
                a("v_mov_b32 v37, %d" % a.LD_FLAG); a("v_mov_b32 v38, s%d" % sT0); a("ds_write_b32 v37, v38"); a("s_waitcnt lgkmcnt(0)")
                a.stamp("arr_ok")
                a(sk + ":")
            if s == e["dec"]:
                a("v_mov_b32 v41, %d" % a.LD_FLAG); a("ds_read_b32 v42, v41"); a("s_waitcnt lgkmcnt(0)"); a("v_readfirstlane_b32 s%d, v42" % sFLAG)
                a("s_cmp_eq_u32 s%d, 0" % sFLAG); a("s_cbranch_scc1 L_spread"); a("L_spread_back:")
                keep = a.L; a.L = []
                a("L_spread:")
                a("s_add_u32 s%d, s%d, %d" % (sLOC, sLOC, LOC_B))
                sk = W(CTRL)
                a("v_mov_b64 v[12:13], -1"); a("v_mov_b64 v[14:15], -1"); a("v_lshlrev_b32 v16, 4, v0"); clear_local(16, "sc1")
                a(sk + ":")
                sk = W(7); a.p1_slice_pre(0); a("v_cvt_pk_bf16_f32 v28, v%d, v%d" % (vX0, vX1)); a(sk + ":")
                p1_layer0()
                a("s_waitcnt vmcnt(0)"); a("s_barrier")
                sk = W(CTRL)
                a("v_mov_b32 v25, 0")
                for x in arrive(256, "sc1"): a(x)
                a.lanefn(16, [(0, 5, 4)], 39)
                a.poll(["buffer_load_dword v17, v16, %s, s%d offen offset:256 sc1" % (sr(R_WS, 4), sARR)], [17], 18)
                a(sk + ":")
                a("s_barrier"); a("s_branch L_spread_back")
                self.cold = a.L; a.L = keep
                sk = W(CTRL); sk2 = a.skip_unless("eq", "s%d" % sC, 31)
                a("s_lshl_b32 s%d, s%d, 5" % (sT0, sX)); a("v_mov_b32 v16, s%d" % sT0); a("s_add_u32 s%d, s%d, 1" % (sT0, sF + 4)); a("v_mov_b32 v12, s%d" % sT0)
                a.exec_(1); a("global_store_dword v16, v12, %s offset:4 sc1" % sr(P_DBG, 2)); a.exec_(-1)
                a(sk2 + ":"); a(sk + ":")
                sk = W(QFETCH)
                a.q_base(0, sT2, sT3); a("v_lshlrev_b32 v16, 4, v0"); a("s_add_u32 s%d, s%d, 3072" % (sT3, sT2))
                for h in range(2):
                    a("s_mov_b32 m0, %d" % (STG + 3072 * h))
                    for k in range(3 + h):
                        if k == 3: a.exec_(0xf)
                        a("buffer_load_dwordx4 v16, %s, s%d offen offset:%d %s lds" % (sr(R_WS, 4), sT2 + h, 1024 * k, o["qf"]))
                a.exec_(-1)
                a(sk + ":")
            if s == e["q_c"]:
                sk = W(QFETCH); a("s_waitcnt vmcnt(0)"); a.stamp("q0_in"); a(sk + ":")
            if s == e["kc"]:
                a.lanefn(40, [(0, 6, 16)], 39, const=STG)
                for k in range(3): a("ds_read_b128 %s, v40 offset:%d" % (vr(12 + 4 * k, 4), 3072 + 1024 * k))
                a.zero(24, 40); a("s_waitcnt lgkmcnt(0)")
                a.qk(12, vKC)
            if s == e["qk"]:
                a.lanefn(41, [(0, 3, 8)], 39, const=STG + 6144)
                for k in range(3): a("ds_read_b128 %s, v40 offset:%d" % (vr(12 + 4 * k, 4), 1024 * k))
                a("ds_read_b64 v[52:53], v41")
                a.zero(24, 40); a("s_waitcnt lgkmcnt(0)")
                a.qk(12, 24, a.stats_ops(52) + ["v_mul_f32 v52, v52, v%d" % vKC]); a.softmax(52)
                a.zero(40, 64); a.ml_addr(37, 38, 0)
                for x in sum(a.side_ops(37), []): a(x)
                a.oc_addr(36); a("s_waitcnt lgkmcnt(0)")
                a.stamp("qk0")
            if s == e["ml"]:
                sk = a.skip_unless("lt", "s%d" % sW, 2)
                a.combine_addr(); a.ml_calc(0)
                a(sk + ":")
            if s == e["preread"]:
                sk = W(2)
                a("s_mul_i32 s%d, s%d, %d" % (sT0, sC, CLR)); a("s_add_u32 s%d, s%d, s%d" % (sT0, sT0, sLOC))
                a("v_min_u32 v37, %d, v0" % (CLR // 128 - 1)); a("v_lshlrev_b32 v37, 7, v37")
                a("buffer_load_dword v37, v37, %s, s%d offen %s" % (sr(R_WS, 4), sT0, o["pref"]))
                a(sk + ":")
            if s >= 21:
                seg = s - 21
                for T in range(4 * seg, 4 * seg + 4): a.pv(T)
                if s < 23: issue(upto[s + 1])
                assert s < 23 or done[0] == len(order)
                if s == 23:
                    if o["prio"]: a("s_setprio 0")
                    a("s_cmp_lt_u32 s%d, 2" % sW); a.exec_(0xffff)
                a(a.pv_ext(2 * seg)); a(a.pv_ext(2 * seg + 1))
                if s == 22: a(a.oc_write(36, 0))
                if s >= 22: a(a.oc_write(36, seg))
                if s == 23: a.exec_(-1)
        for l in (0, 1):
            cb = "L_comb_%d" % l
            a("s_cbranch_scc1 " + cb); a("s_waitcnt lgkmcnt(0)"); a("s_barrier"); a(cb + "b:")
            def comb():
                a(cb + ":")
                if l == 1: a.ml_calc(1); a.stamp("ml_end")
                a.combine(l); a("s_branch " + cb + "b")
            a.aside(comb)
            if l == 0 and late:
                sk = W(LOADER); a("s_waitcnt vmcnt(0)"); a(sk + ":"); a("s_barrier")
            tb = "L_typeB_%d" % l
            nxt = "L_done" if l == 1 else "L_p1"
            a("s_cmp_lt_u32 s%d, 20" % sAI); a("s_cbranch_scc0 " + tb)
            a.p3(l)
            a("s_sub_u32 s%d, s%d, 4" % (sT0, sW))
            sk = a.skip_unless("lt", "s%d" % sT0, 3)
            a.p4b(l)
            a(sk + ":")
            a("s_branch " + nxt)
            a(tb + ":")
            a("s_cmp_eq_u32 s%d, 3" % sHL); a("s_cbranch_scc0 " + nxt)
            a.slab(l, "h", 2 * l)
            if l == 1:
                a("s_cmp_eq_u32 s%d, 7" % sW); a("s_cbranch_scc0 L_done")
                a("s_cmp_eq_u32 s%d, 0" % sX); a("s_cbranch_scc0 L_done")
                a.add_b2(); a.slice_addr(7, 8, 4)
                a.gather(3, pre=lambda: a.canary_poll(3))
                a("global_store_dword v7, v28, %s" % sr(P_OUT, 2))
                a.stamp("out")
                a("s_branch L_done")
                break
            a("L_p1:")
            a.slab(1, "q", 1, lazy=True)
            a.attention1()
        for x in a.ool: a(x)
        a("L_tail_end:")
        for x in a.cold: a(x)
        a("L_done:")
        if o["diag_hold"]:
            if o["diag_x"] >= 0: a("s_cmp_eq_u32 s%d, %d" % (sXCC, o["diag_x"])); a("s_cbranch_scc0 L_exit")
            a("s_waitcnt lgkmcnt(0)"); a("s_cmp_eq_u64 s[100:101], 0"); a("s_cbranch_scc1 L_exit")
            a("L_hold:"); a("s_memrealtime s[98:99]"); a("s_waitcnt lgkmcnt(0)"); a("s_sub_u32 s98, s98, s100")
            a("s_cmp_lt_u32 s98, %d" % o["diag_hold"]); a("s_cbranch_scc1 L_hold")
        if o["stamps"]:
            n = len(o["stamps"])
            a("s_mov_b64 exec, -1"); a("s_waitcnt vmcnt(0) lgkmcnt(0)")
            for i in range(n): a("v_writelane_b32 v12, s%d, %d" % (sST + 2 * i, i))
            a("s_getreg_b32 s%d, hwreg(4, 0, 16)" % sT0); a("s_lshl_b32 s%d, s%d, 16" % (sT1, sXCC)); a("s_or_b32 s%d, s%d, s%d" % (sT0, sT0, sT1)); a("v_writelane_b32 v12, s%d, 13" % sT0)
            a("v_writelane_b32 v12, s%d, 14" % sBUD); a("s_sub_u32 s%d, s%d, s%d" % (sT0, sXPR, sXPB)); a("s_or_b32 s%d, s%d, s%d" % (sT0, sT0, sFLAG)); a("s_lshl_b32 s%d, s%d, 16" % (sT1, sF + 4)); a("s_or_b32 s%d, s%d, s%d" % (sT0, sT0, sT1)); a("v_writelane_b32 v12, s%d, 15" % sT0)
            a("s_lshl_b32 s%d, s2, 3" % sT0); a("s_add_u32 s%d, s%d, s%d" % (sT0, sT0, sW)); a("s_lshl_b32 s%d, s%d, 6" % (sT0, sT0))
            a("s_add_u32 s%d, s%d, %d" % (sT0, sT0, STAMP_OFF))
            a.lanefn(13, [(0, 6, 4)], 60, s=sT0)
            a.exec_(0xffff)
            a("global_store_dword v13, v12, %s" % sr(P_WS, 2))
        a("L_exit:")
        a("s_endpgm")
        L = a.L
        if o["stamps"]:
            pre = ["s_mov_b64 %s, 0" % sr(sST + 2 * i, 2) for i in range(len(o["stamps"]))]
            L = pre + L
        if o["pads"]:
            L0 = [re.sub(r"L_padin(\d)", r"L_padback ; in\1", x) for x in L]
            L1, nops = fix_hazards(L0)
            L1, npad, tb = insert_pads(L1, "L_tail", "L_tail_end", "L_padback", o["padstep"], o["npad"])
            L1 = [re.sub(r"L_padback ; in(\d)", r"L_pad\1", x) for x in L1]
            L = L1; self.info = (nops, npad, tb)
        else:
            L, nops = fix_hazards(L); self.info = (nops, 0, 0)
        return L

def render(name=NAME + "_kernel", **kw):
    g = G(**kw); L = g.build()
    ref = open("cdna_kernels/%s.s.ref" % NAME).read().split("\n") if name.startswith(NAME) else []
    head = [x for x in ref if x.startswith(";") and "@launch" not in x and "Override" not in x and "grid=ceil" not in x]
    out = head + ["; Generated by gen/gen.py (hand-written generator): one persistent launch, K/V held in registers across both layers.",
                  "; @launch grid=(256,1,1) block=(512,1,1) lds=%d" % g.LDS,
                  '.amdgcn_target "amdgcn-amd-amdhsa--gfx950"', ".text", ".fill 64, 4, 0xbf800000", ".globl " + name, ".p2align 8", ".type %s,@function" % name, name + ":"]
    out += [x if x.endswith(":") or x.startswith(".") else "    " + x for x in L]
    out += ['.section .rodata,"a"', ".p2align 6", ".amdhsa_kernel " + name, "  .amdhsa_next_free_vgpr 256", "  .amdhsa_next_free_sgpr 102",
            "  .amdhsa_accum_offset 256", "  .amdhsa_group_segment_fixed_size 0", "  .amdhsa_kernarg_size 104", "  .amdhsa_user_sgpr_count 2",
            "  .amdhsa_user_sgpr_kernarg_segment_ptr 1", "  .amdhsa_system_sgpr_workgroup_id_x 1", "  .amdhsa_float_denorm_mode_32 3", ".end_amdhsa_kernel"]
    return "\n".join(out) + "\n", g

if __name__ == "__main__":
    kw = {}
    path = "cdna_kernels/%s.s" % NAME
    for x in sys.argv[1:]:
        k, v = x.split("=")
        if k == "out": path = v
        else: kw[k] = int(v) if v.lstrip('-').isdigit() else tuple(int(t) for t in v.split(',') if t) if ',' in v else v
    txt, g = render(**kw)
    open(path, "w").write(txt)
    print("wrote", path, "lds", g.LDS, "nops/pads/tailbytes", g.info, g.sched)
```

```python
import sys, math, struct
from asmlib import *

NAME = "interleave_layers__sliding_block_cached__dense_activation_gelu__decode"

def f32(x): return "0x%08x" % struct.unpack("<I", struct.pack("<f", x))[0]

DEF = dict(R=4, stamps=None, force_global=0, pads=1, padstep=512, l2warm=1, budget=0x10000, dc=2, dw=2, wd=(0, 0, 0, 0), dq=2, dh=2, gd=(2, 5, 5, 3), dg=2, gs=2, race=1, race_at=2, pol=0, nc=2, can=(5, 5, 5, 5), can1x=1, w2at=-1, npad=4, stag=0, ocfull=1, lin=0, xp1_at=22, lateclr=0, wb=0, merge3=0, lpre=4, mgap=3, do=1, omask=0, outf='', pref1='sc1', upto_ev=99, omit='', rot=1, noclr=0, lclr_at=-1, lclrf='', diag_hold=0, diag_x=-1, diag_at='start', diag_bud=0, strip=0,
           W=26, lv=(23, 24, 25), lv0=(1, 0, 0), lvp=1, Wb=30, Wr=34, burst_st=20, prio=3, ilv=1,
           qpos=(1, 2),
           wl0=3, nwl=32,
           go_s=0, go_i=3, arr_s=6, arr_i=8, arr_c=10, q_c=13, vd_i=17, vd_c=19, warm=1, touch=0, fast0=1, preread=19,
           wqf='nt', wlf='nt', qf='sc1 nt', pref='sc1 nt')

LOC = 86016
CLR = 1840
OB = 1664
L_P1 = 27008
L_O, L_H, L_Q1 = (0, L_P1), (8 * OB, L_P1 + 8 * OB), L_P1 + 8 * OB + 6144
L_CS1, L_ST1, L_STH, L_CAN = 19456, 25600, 25856, 26112
L_Q0 = 32 * CLR; Q0S = 6400
LOC_B = 8 * LOC
XP = 16 * LOC; XPS = 131072
ARR = XP + 4 * XPS + 32768
WS_BYTES = ARR + 8 * 512
STAMP_OFF = 2 << 20
P_X, P_K, P_V, P_WQ, P_WO, P_W1, P_B1, P_W2, P_B2, P_OUT, P_DBG, P_WS = 4, 6, 8, 10, 12, 16, 18, 20, 22, 24, 26, 28
sW, sX = 30, 31
R_K, R_V, R_WS, R_WQ, R_WL = 32, 36, 40, 44, 48
sC, sHL, sJ, sFLAG, sBUD, sT0, sT1, sT2, sT3, sRING, sLOC, sXCC = 52, 53, 54, 55, 56, 57, 58, 59, 60, 61, 62, 63
sF = 64
sARR, sH, sM1 = 72, 73, 74
sXPW, sXPR = 6, 7
sXPB = 8
sLVL = 70
sROT = 71
sST = 76
sWA, sWB, sAI = 14, 15, 3
LOADER, CTRL, QFETCH = 6, 5, 4
vL, vIDX, vX0, vX1, vB, vKC = 0, 1, 2, 3, 4, 6
KB, VB = 64, 160
ONES = "0x3f803f80"

class G:
    def __init__(self, **kw):
        self.o = dict(DEF); self.o.update(kw)
        self.L = []; self.ool = []; self.cold = []; self.n = 0; self.vm = []; self.stampn = []
        R = self.R = self.o["R"]
        self.LD_WQ = 0; self.LD_WL = 30720; self.LD_W2 = self.LD_WL + 49152
        self.LD_RING = self.LD_W2 + 12288; self.LD_PP = self.LD_RING + R * 16384
        self.LD_ML = self.LD_PP + 2048; self.LD_HX = self.LD_ML + 128; self.LD_PB = self.LD_PP + 1024; self.LD_FLAG = self.LD_HX + 768 + 128; self.LD_XB = self.LD_FLAG + 64; self.LDS = self.LD_XB + 384
        self.LD_OC = self.LD_RING; self.LD_QS = self.LD_RING + 32768
        assert self.LDS <= 163840 and R == 4
    def __call__(self, s): self.L.extend(s.split("\n"))
    def lab(self, p="L"):
        self.n += 1; return "%s_%d" % (p, self.n)
    def stamp(self, name):
        if self.o["diag_hold"] and name == self.o["diag_at"]: self("s_memrealtime s[100:101]")
        st = self.o["stamps"]
        if st and name in st:
            i = st.index(name); self("s_memrealtime %s" % sr(sST + 2 * i, 2))
        if st and "c_" + name in st:
            i = st.index("c_" + name); self("s_memtime %s" % sr(sST + 2 * i, 2))
    def lanefn(self, dst, terms, tmp, s=None, const=0, src=vL):
        a = self; first = True
        for sh, nb, mul in terms:
            t = dst if first else tmp
            p2 = mul & (mul - 1) == 0
            if nb >= 6 - sh and src == vL:
                if sh: a("v_lshrrev_b32 v%d, %d, v%d" % (t, sh, src)); x = t
                else: x = src
            elif sh == 0: a("v_and_b32 v%d, %d, v%d" % (t, (1 << nb) - 1, src)); x = t
            else: a("v_bfe_u32 v%d, v%d, %d, %d" % (t, src, sh, nb)); x = t
            if first:
                if p2:
                    if mul > 1 or x != dst: a("v_lshlrev_b32 v%d, %d, v%d" % (dst, mul.bit_length() - 1, x))
                else: a("v_mul_u32_u24 v%d, %d, v%d" % (dst, mul, x))
            elif p2: a("v_lshl_add_u32 v%d, v%d, %d, v%d" % (dst, x, mul.bit_length() - 1, dst))
            else:
                a("v_mul_u32_u24 v%d, %d, v%d" % (tmp, mul, x)); a("v_add_u32 v%d, v%d, v%d" % (dst, tmp, dst))
            first = False
        if s is not None: a("v_add_u32 v%d, s%d, v%d" % (dst, s, dst))
        if const: a("v_add_u32 v%d, %d, v%d" % (dst, const, dst))
    def srd(self, r, p, nbytes, off=None):
        a = self
        if off is None: a("s_mov_b32 s%d, s%d" % (r, p)); a("s_mov_b32 s%d, s%d" % (r + 1, p + 1))
        else: a("s_add_u32 s%d, s%d, s%d" % (r, p, off)); a("s_addc_u32 s%d, s%d, 0" % (r + 1, p + 1))
        a("s_mov_b32 s%d, %s" % (r + 2, nbytes)); a("s_mov_b32 s%d, 0x20000" % (r + 3))
    def skip_unless(self, cmp, a_, b_):
        l = self.lab("L_skip"); self("s_cmp_%s_u32 %s, %s" % (cmp, a_, b_)); self("s_cbranch_scc0 " + l); return l
    def exec_(self, m):
        if m == -1: self("s_mov_b64 exec, -1")
        elif m < (1 << 31): self("s_mov_b64 exec, 0x%x" % m)
        else: self("s_mov_b32 exec_lo, 0x%x" % (m & 0xffffffff)); self("s_mov_b32 exec_hi, 0x%x" % (m >> 32))
    def flag_cmp(self): self("s_cmp_eq_u32 s%d, 0" % sFLAG)
    def oob(self, dst, cmp, n, tmp):
        a = self; a("v_mov_b32 v%d, 0x7f000000" % tmp); a("v_cmp_%s_u32 vcc, %d, v%d" % (cmp, n, vL)); a("v_cndmask_b32 v%d, v%d, v%d, vcc" % (dst, dst, tmp))
    def aside(self, fn):
        keep = self.L; self.L = []; fn(); blk = self.L; self.L = keep; self.ool += blk
    def local_store(self, ins, pre=False):
        a = self; l = a.lab("L_gs"); b = a.lab("L_gb")
        if not pre: a.flag_cmp()
        a("s_cbranch_scc1 " + l); a(ins); a(b + ":")
        a.ool += [l + ":", ins + " sc1", "s_branch " + b]
    def budget(self):
        return ["s_sub_u32 s%d, s%d, 1" % (sBUD, sBUD), "s_cbranch_scc1 L_done"]
    def check(self, rs, t):
        a = self; rs = list(rs)
        if len(rs) == 1: a("v_cmp_eq_u32 vcc, -1, v%d" % rs[0]); return
        if len(rs) == 2: a("v_max_u32 v%d, v%d, v%d" % (t, rs[0], rs[1])); rs = []
        else: a("v_max3_u32 v%d, v%d, v%d, v%d" % (t, rs[0], rs[1], rs[2])); rs = rs[3:]
        while len(rs) >= 2: a("v_max3_u32 v%d, v%d, v%d, v%d" % (t, t, rs[0], rs[1])); rs = rs[2:]
        if rs: a("v_max_u32 v%d, v%d, v%d" % (t, t, rs[0]))
        a("v_cmp_eq_u32 vcc, -1, v%d" % t)
    def poll(self, loads, rs, t, shadow=None, depth=1, extra=0, skip_first=None, mask=False):
        a = self; w = a.lab("L_pw"); r = a.lab("L_pr"); n = len(loads)
        for d in range(depth - 1):
            for x in loads: a(x)
            if d == 0 and shadow: shadow()
            else: a("s_sleep %d" % (2 if depth == 2 else 1))
        if depth == 1 and shadow:
            if skip_first: a("s_cbranch_scc1 " + skip_first)
            for x in loads: a(x)
            if skip_first: a(skip_first + ":")
            shadow(); a("s_branch " + w)
        if mask: a("s_mov_b64 vcc, -1")
        a(r + ":")
        if mask: a("s_mov_b64 exec, vcc")
        for x in loads: a(x)
        for x in a.budget(): a(x)
        a(w + ":")
        a("s_waitcnt vmcnt(%d)" % (n * (depth - 1) + extra))
        a.check(rs, t)
        a("s_cbranch_vccnz " + r)

    def dma_loop(self, n, lds, R, vo, so, step, flags, pace):
        a = self; k = len(so); l = a.lab("L_dma")
        for i, x in enumerate(so):
            if isinstance(x, int): a("s_mov_b32 s%d, %d" % (sT0 + i, x - 1024 * i))
            else: x(sT0 + i)
        a("s_mov_b32 m0, %d" % lds)
        a(l + ":")
        lv = a.o["lv"] if pace == a.o["W"] else None
        if lv:
            go = a.lab("L_go")
            for q in range(len(lv) - 1, -1, -1):
                a("s_waitcnt vmcnt(%d)" % (lv[q] - k // 2 - 1))
                if q: a("s_cmp_ge_u32 s%d, %d" % (sLVL, q)); a("s_cbranch_scc1 " + go)
            a(go + ":")
        for i in range(k):
            if pace and not lv: a("s_waitcnt vmcnt(%d)" % (pace - 1))
            a("buffer_load_dwordx4 v%d, %s, s%d offen offset:%d %s lds" % (vo[i], sr(R, 4), sT0 + i, 1024 * i, flags))
        for i in range(k): a("s_add_u32 s%d, s%d, %s" % (sT0 + i, sT0 + i, step))
        a("s_add_u32 m0, m0, %d" % (1024 * k))
        a("s_cmp_lg_u32 m0, %d" % (lds + 1024 * k * n)); a("s_cbranch_scc1 " + l)
    def block(self, b, pace):
        a = self; o = a.o
        if isinstance(b, int):
            seg = b % 3
            if b < 12: gA = b // 3; runs = [4 * (gA // 2) + 2 * (gA % 2) + i for i in (0, 1)]; vo = (5, 6); R = R_K
            else: u = (b - 12) // 3; runs = [4 * (u // 2) + 2 * i + u % 2 for i in (0, 1)]; vo = (7, 7); R = R_V
            so = [r * 196608 + seg * 128 for r in runs]
            if o["rot"]:
                def f(i):
                    def g(d):
                        a("s_xor_b32 s%d, s%d, %d" % (d, sROT, runs[i])); a("s_mul_i32 s%d, s%d, 196608" % (d, d))
                        a("s_add_u32 s%d, s%d, %d" % (d, d, seg * 128 + 1024 - 1024 * i))
                    return g
                so = [f(0), f(1)]
            if o["lin"]:
                assert o["strip"]
                a.dma_loop(8, a.LD_RING + (b % a.R) * 16384, R, (61, 61), [(b % 12) * 131072, (b % 12) * 131072 + 1024], "16384" if o["lin"] == 2 else "2048", "nt", pace); return
            a.dma_loop(8, a.LD_RING + (b % a.R) * 16384, R, vo, so, "24576" if o["ilv"] else "3072", "nt", pace)
        elif b[0] == "q":
            n = int(b[1])
            a.dma_loop(5, a.LD_WQ + n * 15360, R_WQ, (vX0,) * 3, [n * 5 * 98304 + 128 * i + 2048 for i in range(3)], "98304", o["wqf"], pace)
        elif b[0] == "u":
            n = int(b[1:])
            a("s_mov_b32 s%d, %d" % (sT0, n * 16 * 1280)); a("s_mov_b32 m0, %d" % (a.LD_W2 + n * 1024))
            a("buffer_load_dwordx4 v%d, %s, s%d offen nt lds" % (vX0, sr(R_WQ, 4), sT0))
        elif b[0] == "w":
            n = int(b[1:])
            a("s_mul_i32 s%d, s%d, %d" % (sT0, sWA, n // 2))
            if n % 2: a("s_add_u32 s%d, s%d, s%d" % (sT0, sT0, sWB))
            a("s_mov_b32 m0, %d" % (a.LD_WL + (n & ~1) * 1024))
            if pace and not o["lv"]: a("s_waitcnt vmcnt(%d)" % (pace - 1))
            a("buffer_load_dwordx4 v%d, %s, s%d offen offset:%d %s lds" % (vX1, sr(R_WL, 4), sT0, 1024 * (n % 2), o["wlf"]))
        else:
            n0 = o["nwl"] // 2; h = (24 - n0 + 1) // 2; n, cnt = (n0, h) if b == "r0" else (n0 + h, 24 - n0 - h)
            if pace: pace = max(pace, o["Wr"])
            f0 = lambda d: a("s_mul_i32 s%d, s%d, %d" % (d, sWA, n))
            f1 = lambda d: a("s_add_u32 s%d, s%d, s%d" % (d, sT0, sWB))
            a.dma_loop(cnt, a.LD_WL + n * 2048, R_WL, (vX1, vX1), [f0, f1], "s%d" % sWA, o["wlf"], pace)
    def reads(self, s):
        a = self; seg = s % 3; slot = (s % a.R) * 16384
        if s < 12:
            d = KB + 24 * (s // 3) + 8 * seg
            a("ds_read_b128 %s, v8 offset:%d" % (vr(d, 4), slot)); a("ds_read_b128 %s, v9 offset:%d" % (vr(d + 4, 4), slot))
        else:
            u = (s - 12) // 3
            for tt in range(4):
                a("ds_read_b64_tr_b16 %s, v%d offset:%d" % (vr(VB + 8 * (4 * seg + tt) + 2 * u, 2), 8 + tt, slot))
    def plan(self):
        o = self.o; order = []
        qp = list(o["qpos"]); nwl = o["nwl"]; assert nwl % 2 == 0
        per = -(-nwl // (23 - o["wl0"])) if nwl > 0 else 1
        for s in range(-1, 24):
            if s >= 0: order.append(s)
            order += ["q%d" % i for i, p in enumerate(qp) if p == s] + ["w%d" % i for i in range(nwl) if o["wl0"] + i // per == s]
            if o["w2at"] >= 0: order += ["u%d" % i for i in range(12) if min(22, o["w2at"] + i) == s]
        if 0 <= nwl < 46: order += ["r0", "r1"]
        h = (24 - nwl // 2 + 1) // 2
        size = lambda b: 16 if isinstance(b, int) else {"q": 15, "w": 1, "u": 1, "r": 2 * h if b == "r0" else 48 - nwl - 2 * h}[b[0]]
        upto = []; k = 0
        for s in range(24):
            p = order.index(s); k = max(k, p + 1)
            while k < len(order) and sum(map(size, order[p + 1:k])) < o["Wb"]:
                if isinstance(order[k], int) and order[k] - self.R + 1 > s - 1 and order[k] >= self.R: break
                k += 1
            upto.append(k)
        wait = [sum(map(size, order[order.index(s) + 1:upto[s]])) for s in range(24)]
        return order, upto, wait

    def gather(self, ph, pre=None):
        a = self; w = a.lab("L_gw"); r = a.lab("L_gr"); ok = a.lab("L_gk")
        for n in range(4): a("s_add_u32 s%d, s%d, %d" % (sT0 + n, sXPR, ph * XPS + n * 32768))
        if pre: pre()
        d = a.o["dg"] if pre else 1; k = 4 * (d - 1)
        def loads():
            for n in range(4): a("buffer_load_dwordx4 %s, v5, %s, s%d offen sc1" % (vr(12 + 4 * n, 4), sr(R_WS, 4), sT0 + n))
        def sums(waits):
            if waits: a("s_waitcnt vmcnt(%d)" % (k + 2))
            a("v_pk_add_f32 v[28:29], v[12:13], v[16:17]"); a("v_pk_add_f32 v[30:31], v[14:15], v[18:19]")
            if waits: a("s_waitcnt vmcnt(%d)" % (k + 1))
            a("v_pk_add_f32 v[28:29], v[28:29], v[20:21]"); a("v_pk_add_f32 v[30:31], v[30:31], v[22:23]")
            if waits: a("s_waitcnt vmcnt(%d)" % k)
            a("v_pk_add_f32 v[28:29], v[28:29], v[24:25]"); a("v_pk_add_f32 v[30:31], v[30:31], v[26:27]")
            if waits: a("v_pk_add_f32 v[32:33], v[28:29], v[30:31]"); a("v_cmp_u_f32 vcc, v32, v33")
            a("v_permlane32_swap_b32 v28, v30"); a("v_permlane32_swap_b32 v29, v31")
        for _ in range(d - 1): loads(); a("s_sleep %d" % a.o["gs"])
        a(w + ":")
        loads()
        for x in a.budget(): a(x)
        a("s_and_b32 s%d, s%d, 31" % (sM1, sBUD))
        sums(True)
        a("s_cbranch_vccnz " + r)
        a(ok + ":")
        a("v_pk_add_f32 v[28:29], v[28:29], v[30:31]")
        a("v_pk_add_f32 v[28:29], v[28:29], v[%d:%d]" % (vX0, vX1))
        a("v_cvt_pk_bf16_f32 v28, v28, v29")
        def slow():
            a(r + ":"); a("s_cbranch_scc1 " + w)
            a("s_waitcnt vmcnt(0)"); a.check(range(12, 28), 32); a("s_cbranch_vccnz " + w); sums(False); a("s_branch " + ok)
        a.aside(slow)
    def xp_clear(self, ph, n, d, ad):
        a = self; assert a.o["nc"] == 2
        a.lanefn(ad, [(0, 3, 16), (3, 1, 8192), (4, 2, XPS)], ad + 1); a("s_add_u32 s%d, s%d, %d" % (sT0, sXPW, ph * XPS))
        if n < 4: a.exec_((1 << (16 * n)) - 1)
        a("buffer_store_dwordx4 %s, v%d, %s, s%d offen sc1" % (vr(d, 4), ad, sr(R_WS, 4), sT0))
        if n < 4: a.exec_(-1)
    def preread(self, part, fl, d):
        a = self; lo, hi = ((0, L_P1), (L_P1, L_Q1 + 12288))[part]
        a("s_sub_u32 s%d, s%d, 20" % (sT0, sAI)); a("s_lshl_b32 s%d, s%d, 6" % (sT0, sT0)); a("v_add_u32 v%d, s%d, v%d" % (d, sT0, vL))
        a("v_min_u32 v%d, %d, v%d" % (d, (hi - lo) // 128 - 1, d)); a("v_lshlrev_b32 v%d, 7, v%d" % (d, d)); a("s_add_u32 s%d, s%d, %d" % (sT0, sLOC, lo))
        a("buffer_load_dword v%d, v%d, %s, s%d offen %s" % (d, d, sr(R_WS, 4), sT0, fl))
    def race(self, dst):
        a = self
        a("s_mov_b32 s%d, 0" % (sF + 3))
        a("s_load_dword s%d, s[10:11], 0" % (sF + 2)); a("s_load_dword s%d, s[10:11], 8192" % (sF + 3))
        a("s_waitcnt lgkmcnt(1)"); a("s_sleep %d" % a.o["race"]); a("s_mov_b32 s%d, s%d" % (dst, sF + 3))
    def unpack_x(self):
        self("v_lshlrev_b32 v%d, 16, v28" % vX0); self("v_and_b32 v%d, 0xffff0000, v28" % vX1)
    def add_b2(self):
        a = self
        a("v_lshlrev_b32 v60, 16, v%d" % vB); a("v_add_f32 v%d, v%d, v60" % (vX0, vX0))
        a("v_and_b32 v60, 0xffff0000, v%d" % vB); a("v_add_f32 v%d, v%d, v60" % (vX1, vX1))
    def q_base(self, l, dst, st, kind="q"):
        a = self
        if kind == "h":
            a("s_add_u32 s%d, s%d, %d" % (dst, sLOC, L_H[l])); a("s_add_u32 s%d, s%d, %d" % (st, sLOC, L_STH + 128 * l))
        elif l == 0:
            a("s_mul_i32 s%d, s%d, %d" % (dst, sHL, Q0S)); a("s_add_u32 s%d, s%d, s%d" % (dst, dst, sLOC)); a("s_add_u32 s%d, s%d, %d" % (dst, dst, L_Q0))
            a("s_add_u32 s%d, s%d, 6144" % (st, dst))
        else:
            a("s_mul_i32 s%d, s%d, 3072" % (dst, sHL)); a("s_add_u32 s%d, s%d, s%d" % (dst, dst, sLOC)); a("s_add_u32 s%d, s%d, %d" % (dst, dst, L_Q1))
            a("s_lshl_b32 s%d, s%d, 6" % (st, sHL)); a("s_add_u32 s%d, s%d, s%d" % (st, st, sLOC)); a("s_add_u32 s%d, s%d, %d" % (st, st, L_ST1))
    def slice_addr(self, dst, unit, hi):
        a = self
        a("v_and_b32 v60, 31, v%d" % vL); a("v_min_u32 v60, 19, v60"); a("s_mul_i32 s%d, s%d, %d" % (sT0, sJ, 20 * unit))
        a.lanefn(dst, [(5, 1, hi)], 61, s=sT0); a("v_lshl_add_u32 v%d, v60, %d, v%d" % (dst, unit.bit_length() - 1, dst))
    def p1_slice_pre(self, l, kind="q"):
        a = self
        a("v_and_b32 v60, 31, v%d" % vL); a("v_cmp_gt_u32 %s, 20, v60" % sr(sF, 2)); a("v_min_u32 v60, 19, v60")
        a.lanefn(35, [(5, 1, 4)], 61, const=a.LD_XB); a("v_lshl_add_u32 v35, v60, 3, v35")
        a.q_base(l, sF + 2, sF + 3, kind)
        a("s_lshl_b32 s%d, s%d, 3" % (sT0, sJ)); a.lanefn(34, [(5, 1, 4)], 61, s=sT0)
        a("v_and_b32 v60, 31, v%d" % vL); a("v_mov_b32 v61, 0x7f000000"); a("v_cmp_ne_u32 vcc, 31, v60"); a("v_cndmask_b32 v34, v34, v61, vcc")
        a("v_mov_b32 v61, %s" % ONES)
    def p1_slice_write(self):
        self("ds_write_b32 v35, v28"); self("s_waitcnt lgkmcnt(0)")
    def p1_slice_stats(self):
        a = self
        a("v_cndmask_b32 v29, 0, v28, %s" % sr(sF, 2))
        a("v_dot2_f32_bf16 v33, v29, v61, 0"); a("v_dot2_f32_bf16 v32, v29, v29, 0")
        a.unpack_x(); a.flag_cmp()
        a("v_permlane32_swap_b32 v33, v32"); a("v_add_f32 v33, v33, v32")
        for k in (8, 4, 2, 1): a("v_add_f32_dpp v33, v33, v33 row_ror:%d row_mask:0xf bank_mask:0xf" % k)
        a("v_add_f32_dpp v33, v33, v33 row_bcast:15 row_mask:0xa bank_mask:0xf")
        a("v_min_u32 v33, -2, v33")
        a.local_store("buffer_store_dword v33, v34, %s, s%d offen" % (sr(R_WS, 4), sF + 3), pre=True)
        a("s_waitcnt vmcnt(1)")
    def p1_prefetch(self, l, kind, ar):
        a = self
        base, seg, rb = (a.LD_WQ, 1024, (128, 256, 512, 3072, 6144, 12288, 24576)) if kind == "q" else (a.LD_WL, 128, (384, 1024, 2048, 4096, 8192, 16384, 32768))
        a("s_lshr_b32 s%d, s%d, 1" % (sT0, sW)); a("s_mul_i32 s%d, s%d, %d" % (sT0, sT0, seg)); a("s_and_b32 s%d, s%d, 1" % (sT1, sW))
        a("s_lshl_b32 s%d, s%d, 6" % (sT1, sT1)); a("s_add_u32 s%d, s%d, s%d" % (sT0, sT0, sT1))
        a.lanefn(18, [(5, 1, rb[4]), (3, 1, rb[3]), (4, 1, rb[2]), (2, 1, rb[0]), (0, 2, 8)], 60, s=sT0, const=base)
        a.lanefn(19, [(4, 1, rb[3]), (3, 1, rb[2]), (2, 1, rb[0]), (0, 2, 8)], 60, s=sT0, const=base + rb[6])
        for t in range(2):
            for u in range(4): a("ds_read_b64_tr_b16 %s, v18 offset:%d" % (vr(28 + 12 * t + 2 * u, 2), (u // 2) * rb[5] + (u % 2) * rb[1] + 32 * t))
            for u in range(2): a("ds_read_b64_tr_b16 %s, v19 offset:%d" % (vr(36 + 12 * t + 2 * u, 2), u * rb[1] + 32 * t))
        a.lanefn(ar, [(4, 2, 32), (1, 1, 16), (0, 1, 192)], 60, const=a.LD_XB)
        a.lanefn(ar + 1, [(4, 2, 16), (1, 1, 8), (0, 1, 192)], 60, const=a.LD_XB + 128)
        a.zero(20, 28)
        if kind == "q":
            a("s_lshl_b32 s%d, s%d, 1" % (sT0, sJ)); a("s_lshl_b32 s%d, s%d, 9" % (sT1, sW)); a("s_add_u32 s%d, s%d, s%d" % (sT0, sT0, sT1))
            a.lanefn(ar + 2, [(0, 5, 16), (5, 1, 3072 if l == 0 else 1 << 30)], 60, s=sT0)
        else:
            a("s_lshr_b32 s%d, s%d, 1" % (sT0, sW)); a("s_lshl_b32 s%d, s%d, 11" % (sT0, sT0)); a("s_and_b32 s%d, s%d, 1" % (sT1, sW))
            a("s_lshl_b32 s%d, s%d, 9" % (sT1, sT1)); a("s_add_u32 s%d, s%d, s%d" % (sT0, sT0, sT1))
            a("s_lshr_b32 s%d, s%d, 2" % (sT1, sJ)); a("s_lshl_b32 s%d, s%d, 10" % (sT1, sT1)); a("s_add_u32 s%d, s%d, s%d" % (sT0, sT0, sT1))
            a("s_and_b32 s%d, s%d, 3" % (sT1, sJ)); a("s_lshl_b32 s%d, s%d, 2" % (sT1, sT1)); a("s_add_u32 s%d, s%d, s%d" % (sT0, sT0, sT1))
            a.lanefn(ar + 2, [(0, 5, 16), (5, 1, 1 << 30)], 60, s=sT0)
        a.q_base(l, sT2, sT3, kind)
    def p1_mat(self, l, kind, ar):
        a = self; z = 1 if kind == "c" else 0
        a("ds_read_b128 v[12:15], v%d" % ar); a("ds_read_b64 v[16:17], v%d" % (ar + 1))
        a("s_waitcnt lgkmcnt(1)")
        for t in range(2): a("v_smfmac_f32_16x16x64_bf16 %s, v[12:15], %s, v%d" % (vr(20 + 4 * t, 4), vr(28 + 12 * t, 8), vIDX))
        a("s_waitcnt lgkmcnt(0)")
        for t in range(2): a("v_smfmac_f32_16x16x32_bf16 %s, v[16:17], %s, v%d" % (vr(20 + 4 * t, 4), vr(36 + 12 * t, 4), vIDX))
        if kind == "c": a("s_add_u32 s%d, s%d, %d" % (sT3, sLOC, L_CS1))
        a.flag_cmp()
        a("v_add_f32 v12, v%d, v%d" % (20 + z, 22 + z))
        a("v_add_f32_dpp v12, v%d, v%d quad_perm:[0,1,2,3] row_mask:0x2 bank_mask:0xf" % (24 + z, 26 + z))
        if kind == "q":
            if l == 0:
                a("v_add_f32_dpp v12, v21, v23 quad_perm:[0,1,2,3] row_mask:0x4 bank_mask:0xf")
                a("v_add_f32_dpp v12, v25, v27 quad_perm:[0,1,2,3] row_mask:0x8 bank_mask:0xf")
            a("v_cvt_pk_bf16_f32 v12, v12, v12"); a("v_min_u32 v12, -2, v12")
        else:
            a("v_min_u32 v12, -2, v12")
        a.local_store("buffer_store_%s v12, v%d, %s, s%d offen" % ("short" if kind == "q" else "dword", ar + 2, sr(R_WS, 4), sT3 if kind == "c" else sT2), pre=True)
        if kind == "c": a.zero(20, 28)

    def zero(self, lo, hi):
        for r in range(lo, hi, 2): self("v_mov_b64 v[%d:%d], 0" % (r, r + 1))
    POS = [(4, 2, 32), (1, 1, 16), (2, 2, 4), (0, 1, 2)]
    def sum8(self, src, dst, ones):
        return ["v_dot2_f32_bf16 v%d, v%d, v%d, 0" % (dst, src, ones), "v_dot2_f32_bf16 v%d, v%d, v%d, 0" % (dst + 1, src + 1, ones),
                "v_dot2_f32_bf16 v%d, v%d, v%d, v%d" % (dst, src + 2, ones, dst), "v_dot2_f32_bf16 v%d, v%d, v%d, v%d" % (dst + 1, src + 3, ones, dst + 1),
                "v_add_f32 v%d, v%d, v%d" % (dst, dst, dst + 1)]
    def qk(self, dst, fill=()):
        a = self; fill = list(fill)
        for g in range(4):
            for k in range(3):
                a("v_smfmac_f32_16x16x64_bf16 %s, %s, %s, v%d" % (vr(24 + 4 * g, 4), vr(12 + 4 * k, 4), vr(KB + 24 * g + 8 * k, 8), vIDX))
        a.stamp("qk_iss")
        for g in range(4):
            a("v_add_f32_dpp v%d, v%d, v%d quad_perm:[0,1,2,3] row_mask:0x%x bank_mask:0xf" % (dst, 24 + 4 * g, 26 + 4 * g, 1 << g))
            for _ in range(2):
                if fill and g < 3: a(fill.pop(0))
        assert not fill
    def stats_ops(self, st, att=True):
        c = 192 ** -0.5 * math.log2(math.e); o = []
        for k in (4, 2, 1):
            o += ["v_add_f32_dpp v%d, v%d, v%d row_ror:%d row_mask:0xf bank_mask:0xf" % (r, r, r, k) for r in (st, st + 1)]
        o += ["v_mul_f32 v%d, %s, v%d" % (r, f32(1.0 / 640), r) for r in (st, st + 1)]
        o += ["v_fma_f32 v%d, -v%d, v%d, v%d" % (st + 1, st, st, st + 1), "v_max_f32 v%d, 0, v%d" % (st + 1, st + 1),
              "v_add_f32 v%d, %s, v%d" % (st + 1, f32(1e-5), st + 1), "v_rsq_f32 v%d, v%d" % (st + 1, st + 1)]
        if att: o += ["v_mul_f32 v%d, %s, v%d" % (st + 1, f32(c), st + 1), "v_mul_f32 v%d, -v%d, v%d" % (st, st, st + 1)]
        return o
    def att_prep(self, l):
        a = self
        a("s_lshl_b32 s%d, s%d, 7" % (sT0, sW)); a("s_add_u32 s%d, s%d, %d" % (sT0, sT0, a.LD_PB))
        a.lanefn(58, a.POS, 60, s=sT0)
        a.lanefn(61, [(4, 2, 32), (1, 1, 16)], 60, s=sT0); a.lanefn(62, [(2, 2, 2), (0, 1, 1)], 60); a("v_mov_b32 v60, %d" % (a.LD_XB + 160))
        for v in range(6):
            a("v_cmp_eq_u32 vcc, %d, v62" % v); a("v_cndmask_b32 v%d, v60, v61, vcc" % (52 + v))
        a("s_lshl_b32 s%d, s%d, 2" % (sT1, sW)); a("s_add_u32 s%d, s%d, %d" % (sT1, sT1, a.LD_ML + 64 * l)); a("v_mov_b32 v60, s%d" % sT1)
        a.lanefn(59, [(0, 6, 4)], 61, const=a.LD_PP); a("v_cmp_eq_u32 vcc, 63, v%d" % vL); a("v_cndmask_b32 v59, v59, v60, vcc")
        a.lanefn(62, [(0, 3, 4)], 61, const=a.LD_ML + 64 * l)
        a("s_lshl_b32 s%d, s%d, 11" % (sT0, sW)); a.lanefn(63, [(0, 6, 16)], 61, s=sT0, const=a.LD_OC)
    def softmax(self, st):
        a = self
        a("v_fma_f32 v36, v61, v%d, v%d" % (st + 1, st))
        a("v_max_f32_dpp v37, v36, v36 row_ror:8 row_mask:0xf bank_mask:0xf")
        for k in (4, 2, 1): a("v_max_f32_dpp v37, v37, v37 row_ror:%d row_mask:0xf bank_mask:0xf" % k)
        a("v_max_f32_dpp v37, v37, v37 row_bcast:15 row_mask:0xa bank_mask:0xf")
        a("v_max_f32_dpp v37, v37, v37 row_bcast:31 row_mask:0xc bank_mask:0xf")
        a("v_readlane_b32 s%d, v37, 63" % sF); a("ds_write_b32 v59, v37")
        a.stamp("mx")
        a("v_subrev_f32 v36, s%d, v36" % sF); a("v_exp_f32 v36, v36")
        a("v_cvt_pk_bf16_f32 v39, v36, v36"); a("ds_write_b16 v58, v39")
        for v in range(6): a("ds_read_b128 %s, v%d" % (vr(12 + 4 * v, 4), 52 + v))
        return ["v_add_f32_dpp v38, v36, v36 row_ror:8 row_mask:0xf bank_mask:0xf"] + ["v_add_f32_dpp v38, v38, v38 %s bank_mask:0xf" % k for k in
                ("row_ror:4 row_mask:0xf", "row_ror:2 row_mask:0xf", "row_ror:1 row_mask:0xf", "row_bcast:15 row_mask:0xa", "row_bcast:31 row_mask:0xc")]
    def pv(self, T):
        self("v_smfmac_f32_16x16x64_bf16 %s, %s, %s, v%d" % (vr(40 + 4 * (T // 6), 4), vr(12 + 4 * (T % 6), 4), vr(VB + 8 * T, 8), vIDX))
    def g_ops(self):
        return ["v_max_f32_dpp v37, v36, v36 row_ror:4 row_mask:0xf bank_mask:0xf", "v_max_f32_dpp v37, v37, v37 row_ror:2 row_mask:0xf bank_mask:0xf",
                "v_max_f32_dpp v37, v37, v37 row_ror:1 row_mask:0xf bank_mask:0xf", "v_sub_f32 v39, s%d, v37" % sF, "v_exp_f32 v39, v39"]
    def l_write(self):
        return ["v_mul_f32 v38, v38, v39", "ds_write_b32 v63, v38 offset:1024"]
    def pv_end(self):
        a = self
        a("v_pk_add_f32 v[40:41], v[40:41], v[42:43]"); a("v_pk_add_f32 v[42:43], v[44:45], v[46:47]")
        for r in (40, 42): a("v_pk_mul_f32 %s, %s, v[38:39] op_sel:[0,1] op_sel_hi:[1,1]" % (vr(r, 2), vr(r, 2)))
        a("ds_write_b128 v63, v[40:43]")
    def m_publish(self, l):
        a = self
        a("s_mov_b32 s%d, %d" % (sT1, L_O[l])); a("v_min_u32 v37, -2, v37")
        a.local_store("buffer_store_dword v37, v4, %s, s%d offen" % (sr(R_WS, 4), sT1))
    def combine_addr(self):
        a = self
        a("s_lshl_b32 s%d, s%d, 3" % (sT0, sW)); a.lanefn(2, [(0, 6, 16)], 61, s=sT0, const=a.LD_OC)
        a("v_mov_b32 v60, %d" % (a.LD_OC + 1024 + 1008)); a("v_cmp_le_u32 vcc, 48, v%d" % vL); a("v_cndmask_b32 v2, v2, v60, vcc")
        a("s_lshr_b32 s%d, s%d, 1" % (sT0, sJ)); a("s_lshl_b32 s%d, s%d, 2" % (sT0, sT0)); a("s_and_b32 s%d, s%d, 1" % (sT1, sJ))
        a("s_add_u32 s%d, s%d, s%d" % (sT0, sT0, sT1))
        a("s_lshl_b32 s%d, s%d, 4" % (sT1, sT0)); a("s_lshl_b32 s%d, s%d, 3" % (sT0, sT0))
        a.lanefn(3, [(3, 2, 256), (2, 1, 32), (0, 2, 4)], 61, s=sT1)
        a.lanefn(60, [(3, 1, 256), (1, 1, 128), (2, 1, 16), (0, 1, 4)], 61, s=sT0, const=1024)
        a("v_cmp_gt_u32 vcc, 32, v%d" % vL); a("v_cndmask_b32 v3, v60, v3, vcc")
        a("s_lshl_b32 s%d, s%d, 1" % (sT0, sHL)); a("s_add_u32 s%d, s%d, s%d" % (sT0, sT0, sW)); a("s_mul_i32 s%d, s%d, %d" % (sT0, sT0, OB))
        a("s_add_u32 s%d, s%d, s%d" % (sT0, sT0, sLOC)); a("v_add_u32 v3, s%d, v3" % sT0)
        a.oob(3, "le", 48, 60)
        a("s_lshl_b32 s%d, s%d, 2" % (sT1, sJ)); a("s_add_u32 s%d, s%d, s%d" % (sT0, sT0, sT1)); a("s_add_u32 s%d, s%d, 1536" % (sT0, sT0)); a("v_mov_b32 v4, s%d" % sT0)
        a.oob(4, "ne", 48, 60)
    def combine(self, l):
        a = self
        a("s_mov_b32 s%d, %d" % (sT0, L_O[l])); a.flag_cmp()
        a("s_waitcnt lgkmcnt(0)"); a("s_barrier")
        if a.o["stamps"] and ("b2_%d" % l in a.o["stamps"] or "c_b2_%d" % l in a.o["stamps"]): a.stamp("b2_%d" % l); a("s_waitcnt lgkmcnt(0)")
        for n in range(4): a("ds_read2st64_b64 %s, v2 offset0:%d offset1:%d" % (vr(40 + 4 * n, 4), 8 * n, 8 * n + 4))
        a("s_waitcnt lgkmcnt(2)")
        a("v_pk_add_f32 v[40:41], v[40:41], v[42:43]"); a("v_pk_add_f32 v[44:45], v[44:45], v[46:47]"); a("v_pk_add_f32 v[40:41], v[40:41], v[44:45]")
        a("s_waitcnt lgkmcnt(0)")
        a("v_pk_add_f32 v[48:49], v[48:49], v[50:51]"); a("v_pk_add_f32 v[52:53], v[52:53], v[54:55]"); a("v_pk_add_f32 v[40:41], v[40:41], v[48:49]")
        a("v_pk_add_f32 v[40:41], v[40:41], v[52:53]")
        a("v_cvt_pk_bf16_f32 v42, v40, v41"); a("v_min_u32 v40, -2, v40"); a("v_min_u32 v42, -2, v42")
        a.local_store("buffer_store_dword v42, v3, %s, s%d offen" % (sr(R_WS, 4), sT0), pre=True)
        a.local_store("buffer_store_dword v40, v4, %s, s%d offen offset:32" % (sr(R_WS, 4), sT0), pre=True)
        a.stamp("o_pub%d" % l)

    def canary_pre(self, ph, ad, wave):
        a = self
        a("s_lshl_b32 s%d, s%d, 2" % (sM1, sAI)); a("s_add_u32 s%d, s%d, s%d" % (sM1, sM1, sLOC)); a("s_add_u32 s%d, s%d, %d" % (sM1, sM1, L_CAN + 128 * (0, 3, 1, 2)[ph]))
        a("s_xor_b32 s%d, s%d, %d" % (sM1 + 1, sW, wave))
        if ph == 1 and a.o["can1x"]:
            a("s_lshl_b32 s%d, s%d, 24" % (sM1 + 1, sM1 + 1)); a.lanefn(ad, [(0, 2, 128), (2, 4, 1 << 24)], 60, s=sM1 + 1)
        else:
            a("v_add_u32 v%d, s%d, v%d" % (ad, sM1 + 1, vL)); a("v_lshlrev_b32 v%d, 24, v%d" % (ad, ad))
    def canary_store(self, ad, pre=False):
        self.local_store("buffer_store_dword v%d, v%d, %s, s%d offen" % (vL, ad, sr(R_WS, 4), sM1), pre)
    def canary_poll(self, ph):
        a = self
        if a.o["can"][ph] == 3: return
        if a.o["can"][ph] == 5:
            a("s_add_u32 s%d, s%d, %d" % (sM1 + 1, sXPR, 7168 + 4 * ph)); a.lanefn(9, [(0, 3, 32768)], 60)
            a.poll(["buffer_load_dword v12, v9, %s, s%d offen sc1" % (sr(R_WS, 4), sM1 + 1)], [12], 13, depth=a.o["dc"])
            a.stamp("can%d" % ph)
            if a.o["gd"][ph]: a("s_sleep %d" % a.o["gd"][ph])
            return
        a("s_add_u32 s%d, s%d, %d" % (sM1 + 1, sLOC, L_CAN + 128 * (0, 3, 1, 2)[ph]))
        if ph == 1 and a.o["can1x"]: a("s_lshl_b32 s%d, s%d, 7" % (sM1, sHL)); a("s_add_u32 s%d, s%d, s%d" % (sM1 + 1, sM1 + 1, sM1))
        a("v_min_u32 v9, 19, v%d" % vL); a("v_lshlrev_b32 v9, 2, v9")
        a.poll(["buffer_load_dword v12, v9, %s, s%d offen sc1" % (sr(R_WS, 4), sM1 + 1)], [12], 13, depth=a.o["dc"])
        a.stamp("can%d" % ph)
        if a.o["gd"][ph]: a("s_sleep %d" % a.o["gd"][ph])
    def p3(self, l):
        a = self; can = a.o["can"][2 * l]
        a("s_mul_i32 s%d, s%d, %d" % (sT3, sW, OB)); a("s_add_u32 s%d, s%d, s%d" % (sT3, sT3, sLOC)); a("s_add_u32 s%d, s%d, %d" % (sT3, sT3, L_O[l]))
        a.lanefn(5, [(0, 3, 4)], 60); a.lanefn(22, [(4, 2, 8)], 60)
        lse = ["buffer_load_dword v18, v5, %s, s%d offen offset:1536 sc1" % (sr(R_WS, 4), sT3), "buffer_load_dwordx2 v[20:21], v22, %s, s%d offen offset:1536 sc1" % (sr(R_WS, 4), sT3)]
        ol = ["buffer_load_dwordx4 v[12:15], v9, %s, s%d offen sc1" % (sr(R_WS, 4), sT3),
              "buffer_load_dwordx2 v[16:17], v10, %s, s%d offen offset:1024 sc1" % (sr(R_WS, 4), sT3),
              "buffer_load_dword v23, v5, %s, s%d offen offset:1568 sc1" % (sr(R_WS, 4), sT3)]
        def sh1():
            a("v_lshlrev_b32 v9, 4, v%d" % vL); a("v_lshlrev_b32 v10, 3, v%d" % vL)
            a("s_mul_i32 s%d, s%d, 6144" % (sT0, sW))
            a.lanefn(7, [(2, 4, 64), (4, 1, 32), (0, 2, 8)], 60, s=sT0, const=a.LD_WL)
            a("v_xor_b32 v8, 32, v7")
            for t in range(2):
                for m in range(6): a("ds_read_b64_tr_b16 %s, v%d offset:%d" % (vr(36 + 12 * t + 2 * m, 2), 7 + t, 1024 * m))
            for r in range(24, 32, 2): a("v_mov_b64 v[%d:%d], 0" % (r, r + 1))
            a("s_lshl_b32 s%d, s%d, 8" % (sT0, sW))
            a.lanefn(11, [(0, 6, 4)], 60, s=sT0, const=a.LD_PP)
            a.lanefn(32, [(0, 6, 4)], 60, const=a.LD_PP)
            a("s_add_u32 s%d, s%d, %d" % (sT1, sXPW, 2 * l * XPS)); a("s_add_u32 s%d, s%d, 16384" % (sT0, sT1))
            a.lanefn(33, [(0, 4, 4), (5, 1, 64), (4, 1, 8192 if a.o["nc"] > 1 else 1 << 30)], 60)
            a.canary_pre(2 * l, 34, 3 if can == 1 else 2)
        mg = a.o["merge3"]
        if mg:
            w = a.lab("L_ew"); r = a.lab("L_er"); e1 = a.lab("L_e1"); e2 = a.lab("L_e2")
            for x in lse: a(x)
            sh1(); a("s_cmp_lt_u32 s%d, 2" % sW); a("s_cbranch_scc0 " + e1)
            for x in ol: a(x)
            a("s_waitcnt vmcnt(3)"); a(w + ":"); a.check([18, 20, 21], 19); a("s_cbranch_vccnz " + r)
            a.ool += [r + ":"] + lse + a.budget() + [e1 + ":", "s_cmp_lt_u32 s%d, 2" % sW, "s_waitcnt vmcnt(0)", "s_branch " + w]
        else: a.poll(lse, [18, 20, 21], 19, shadow=sh1)
        def sh2():
            a("v_max_f32_dpp v19, v18, v18 row_ror:4 row_mask:0xf bank_mask:0xf")
            for k in (2, 1): a("v_max_f32_dpp v19, v19, v19 row_ror:%d row_mask:0xf bank_mask:0xf" % k)
            for r in (18, 20, 21): a("v_sub_f32 v%d, v%d, v19" % (r, r))
            for r in (18, 20, 21): a("v_exp_f32 v%d, v%d" % (r, r))
            a("s_waitcnt lgkmcnt(0)")
        a.poll(ol, list(range(12, 18)) + [23], 19, shadow=sh2, skip_first=e2 if mg else None, depth=a.o["do"], mask=a.o["omask"])
        a.stamp("o_in%d" % l)
        red = ["v_add_f32_dpp v18, v18, v18 row_ror:%d row_mask:0xf bank_mask:0xf" % k for k in (4, 2, 1)]
        a("v_smfmac_f32_16x16x64_bf16 v[24:27], v[12:15], v[36:43], v%d" % vIDX)
        if a.o["omask"]: a("s_mov_b64 exec, -1")
        a("v_mul_f32 v18, v18, v23")
        a("v_smfmac_f32_16x16x64_bf16 v[28:31], v[12:15], v[48:55], v%d" % vIDX)
        a("v_smfmac_f32_16x16x32_bf16 v[24:27], v[16:17], v[44:47], v%d" % vIDX); a(red[0])
        a("v_smfmac_f32_16x16x32_bf16 v[28:31], v[16:17], v[56:59], v%d" % vIDX)
        a(red[1]); a(red[2]); a("v_rcp_f32 v18, v18")
        for t in range(2): a("v_pk_add_f32 %s, %s, %s" % (vr(24 + 4 * t, 2), vr(24 + 4 * t, 2), vr(26 + 4 * t, 2)))
        a("v_pk_mul_f32 v[20:21], v[20:21], v[18:19] op_sel:[0,0] op_sel_hi:[1,0]")
        for t in range(2): a("v_mul_f32 v%d, v%d, v20" % (24 + 4 * t, 24 + 4 * t))
        for t in range(2): a("v_fmac_f32 v%d, v%d, v21" % (24 + 4 * t, 25 + 4 * t))
        a("v_permlane32_swap_b32 v24, v28"); a("v_add_f32 v24, v24, v28")
        a("ds_write_b32 v11, v24")
        fin = a.lab("L_fin"); bk = a.lab("L_finb")
        a("s_cmp_eq_u32 s%d, 2" % sW); a("s_cbranch_scc1 " + fin)
        a.flag_cmp()
        assert can != 2
        a("s_waitcnt vmcnt(0) lgkmcnt(0)"); a("s_barrier")
        if can == 1: a.canary_store(34, True)
        a(bk + ":")
        def final():
            a(fin + ":"); a.flag_cmp()
            a("s_waitcnt vmcnt(0) lgkmcnt(0)"); a("s_barrier")
            for n in range(4): a("ds_read2st64_b32 %s, v32 offset0:%d offset1:%d" % (vr(12 + 2 * n, 2), 2 * n, 2 * n + 1))
            a("s_waitcnt lgkmcnt(2)"); a("v_pk_add_f32 v[12:13], v[12:13], v[14:15]")
            a("s_waitcnt lgkmcnt(0)"); a("v_pk_add_f32 v[16:17], v[16:17], v[18:19]")
            a("v_pk_add_f32 v[12:13], v[12:13], v[16:17]"); a("v_add_f32 v14, v12, v13"); a("v_add_f32 v15, v12, v13")
            if can == 4: a.canary_store(34, True)
            a("v_permlane16_swap_b32 v14, v15"); a("v_add_f32 v12, v14, v15"); a("v_min_u32 v12, -2, v12")
            a("buffer_store_dword v12, v33, %s, s%d offen sc1" % (sr(R_WS, 4), sT1))
            if a.o["nc"] == 4: a("buffer_store_dword v12, v33, %s, s%d offen sc1" % (sr(R_WS, 4), sT0))
            a.stamp("xp_pub%d" % (2 * l))
            if can == 0: a.canary_store(34, True)
            a("s_branch " + bk)
        a.aside(final)
    def p4b(self, l):
        a = self; can = a.o["can"][2 * l + 1]
        a("s_sub_u32 s%d, s%d, 4" % (sT3, sW))
        a("s_lshl_b32 s%d, s%d, 12" % (sT2, sT3)); a("s_add_u32 s%d, s%d, %d" % (sT2, sT2, a.LD_W2))
        a("s_lshl_b32 s%d, s%d, 11" % (sT0, sT3)); a.lanefn(11, [(0, 6, 16)], 60, s=sT0)
        two = ["buffer_load_dwordx4 %s, v11, %s, s%d offen offset:%d sc1" % (vr(12 + 4 * n, 4), sr(R_WS, 4), sT1, 1024 * n) for n in range(2)]
        sums = lambda d: ["v_pk_add_f32 v[20:21], v[12:13], v[14:15]", "v_pk_add_f32 v[22:23], v[16:17], v[18:19]",
                          "v_pk_add_f32 v[20:21], v[20:21], v[22:23]", "v_add_f32 v%d, v20, v21" % d]
        a("s_add_u32 s%d, s%d, %d" % (sT1, sLOC, L_CS1))
        for x in two: a(x)
        dma = l == 0 and a.o["w2at"] < 0
        if dma:
            a.srd(R_WQ, P_W2, 1536 * 1280)
            a("s_mul_i32 s%d, s%d, 3" % (sT0, sX)); a("s_add_u32 s%d, s%d, s%d" % (sT0, sT0, sT3)); a("s_mul_i32 s%d, s%d, %d" % (sT0, sT0, 64 * 1280))
            a("s_lshl_b32 s%d, s%d, 6" % (sF, sAI)); a("s_add_u32 s%d, s%d, s%d" % (sT0, sT0, sF))
            a.lanefn(5, [(2, 4, 1280), (0, 2, 16)], 60, s=sT0)
            for m in range(4):
                a("s_add_u32 m0, s%d, %d" % (sT2, 1024 * m)); a("s_mov_b32 s%d, %d" % (sT0, m * 16 * 1280))
                a("buffer_load_dwordx4 v5, %s, s%d offen nt lds" % (sr(R_WQ, 4), sT0))
        a.lanefn(35, [(4, 2, 8 * 64), (2, 2, 64), (0, 2, 8)], 60, s=sT2)
        def operands():
            for t in range(2):
                for u in range(4): a("ds_read_b64_tr_b16 %s, v35 offset:%d" % (vr(36 + 8 * t + 2 * u, 2), (32 * (u // 2) + 4 * (u % 2)) * 64 + 32 * t))
        cw = a.lab("L_sw"); cr = a.lab("L_sr")
        a("s_waitcnt vmcnt(%d)" % (4 if dma else 0)); a(cw + ":"); a.check(range(12, 20), 60); a("s_cbranch_vccnz " + cr)
        a.ool += [cr + ":"] + two + a.budget() + ["s_waitcnt vmcnt(0)", "s_branch " + cw]
        for x in sums(8): a(x)
        a.zero(52, 60)
        if l == 0 and a.o["lateclr"] & 2:
            sk = a.skip_unless("eq", "s%d" % sW, 4)
            a("v_mov_b64 v[20:21], -1"); a("v_mov_b64 v[22:23], -1"); a.xp_clear(2, 2, 20, 60)
            a(sk + ":")
        k2 = -2.0 * math.log2(math.e) * math.sqrt(2.0 / math.pi)
        a("v_mov_b32 v9, %s" % f32(k2 * 0.044715)); a("v_mov_b32 v10, %s" % f32(k2))
        a("s_lshl_b32 s%d, s%d, 7" % (sT0, sT3)); a("s_add_u32 s%d, s%d, %d" % (sT0, sT0, a.LD_HX + 384 * l))
        a.lanefn(32, [(0, 6, 8)], 60, s=sT0); a.lanefn(33, [(0, 6, 8)], 60, const=a.LD_QS + 4096)
        a("v_cmp_gt_u32 vcc, 16, v%d" % vL); a("v_cndmask_b32 v32, v33, v32, vcc")
        a.lanefn(33, [(0, 4, 8), (5, 1, 4)], 60, const=a.LD_HX + 384 * l)
        a.lanefn(34, [(0, 4, 4), (5, 1, 64), (4, 1, 8192 if a.o["nc"] > 1 else 1 << 30)], 60)
        a("s_add_u32 s%d, s%d, %d" % (sT3, sXPW, (2 * l + 1) * XPS)); a("s_add_u32 s%d, s%d, 16384" % (sT2, sT3))
        a.canary_pre(2 * l + 1, 5, 5 if can in (1, 2) else 4)
        a.q_base(l, sT1, sT0, "h"); a.lanefn(7, [(0, 3, 8)], 60)
        d = a.o["dh"]
        def sh():
            if dma: a("s_waitcnt vmcnt(3)")
            operands(); a("s_waitcnt lgkmcnt(0)")
        a.poll(["buffer_load_dwordx2 v[24:25], v7, %s, s%d offen sc1" % (sr(R_WS, 4), sT0)] + two, [24, 25], 26, shadow=sh, depth=d, extra=2)
        w = a.lab("L_hw"); r = a.lab("L_hr"); ok = a.lab("L_hk")
        for x in two: a(x)
        st = a.stats_ops(2, False)
        a("v_add_f32_dpp v2, v24, v24 row_ror:4 row_mask:0xf bank_mask:0xf"); a("v_add_f32_dpp v3, v25, v25 row_ror:4 row_mask:0xf bank_mask:0xf")
        for x in st[2:]: a(x)
        a("v_mul_f32 v2, v2, v3"); a("v_fma_f32 v8, -v2, v8, v4")
        a("s_waitcnt vmcnt(%d)" % (3 * (d - 1) + 2))
        a(w + ":")
        for x in sums(20): a(x)
        a("v_cmp_u_f32 vcc, v20, v20"); a("v_fma_f32 v20, v20, v3, v8"); a("s_cbranch_vccnz " + r)
        a(ok + ":")
        def slow():
            again = a.lab("L_ha")
            a(r + ":")
            for x in a.budget(): a(x)
            a("s_and_b32 s%d, s%d, 15" % (sF, sBUD)); a("s_cbranch_scc1 " + again)
            a("s_waitcnt vmcnt(0)"); a.check(range(12, 20), 21); a("s_cbranch_vccnz " + again)
            for x in sums(20): a(x)
            a("v_fma_f32 v20, v20, v3, v8"); a("s_branch " + ok)
            a(again + ":")
            for x in two: a(x)
            a("s_waitcnt vmcnt(2)"); a("s_branch " + w)
        a.aside(slow)
        a.stamp("h_in%d" % l)
        a("v_mul_f32 v21, v20, v20"); a("v_fma_f32 v21, v21, v9, v10"); a("v_mul_f32 v21, v21, v20")
        a("v_exp_f32 v21, v21"); a.flag_cmp(); a("v_add_f32 v21, 1.0, v21"); a("v_rcp_f32 v21, v21")
        if can == 2: a.canary_store(5, True)
        a("v_mul_f32 v20, v20, v21")
        a("v_mov_b32_dpp v21, v20 row_shl:1 row_mask:0xf bank_mask:0xf bound_ctrl:0")
        a("v_cvt_pk_bf16_f32 v28, v20, v21")
        for r_ in (1, 2, 3): a("v_mov_b32_dpp v%d, v28 row_shl:%d row_mask:0xf bank_mask:0xf bound_ctrl:0" % (28 + r_, 4 * r_))
        for t in range(2): a("v_smfmac_f32_16x16x64_bf16 %s, v[28:31], %s, v%d" % (vr(52 + 4 * t, 4), vr(36 + 8 * t, 8), vIDX))
        a("v_add_f32 v22, v52, v54"); a("v_add_f32 v23, v56, v58")
        a("ds_write_b64 v32, v[22:23]")
        if can == 1: a.canary_store(5, True)
        sk = a.skip_unless("eq", "s%d" % sW, 4)
        lw = a.lab("L_xw"); lr = a.lab("L_xr")
        a(lw + ":")
        a("ds_read2_b32 v[20:21], v33 offset0:0 offset1:32"); a("ds_read_b32 v22, v33 offset:256"); a.flag_cmp()
        a("s_waitcnt lgkmcnt(0)")
        a("v_max3_u32 v23, v20, v21, v22"); a("v_add_f32 v20, v20, v21"); a("v_cmp_eq_u32 vcc, -1, v23"); a("v_add_f32 v20, v20, v22")
        a("s_cbranch_vccnz " + lr)
        a.ool += [lr + ":"] + a.budget() + ["s_branch " + lw]
        if can == 4: a.canary_store(5, True)
        a("v_min_u32 v20, -2, v20")
        a("buffer_store_dword v20, v34, %s, s%d offen sc1" % (sr(R_WS, 4), sT3))
        if a.o["nc"] == 4: a("buffer_store_dword v20, v34, %s, s%d offen sc1" % (sr(R_WS, 4), sT2))
        a.stamp("xp_pub%d" % (2 * l + 1))
        if can == 0: a.canary_store(5, True)
        if l == 0:
            e = a.lab("L_pe"); a("s_waitcnt vmcnt(%d)" % (2 if can in (0, 4) else 1)); a("s_branch " + e)
            a(sk + ":"); a("s_waitcnt vmcnt(0)"); a(e + ":")
        else: a(sk + ":")
    def slab(self, l, kind, ph, lazy=False):
        a = self; w7 = a.lab("L_w7"); end = a.lab("L_se")
        a("s_cmp_eq_u32 s%d, 7" % sW); a("s_cbranch_scc1 " + w7)
        sk = a.skip_unless("lt", "s%d" % sW, 6)
        a.p1_prefetch(l, kind, 9)
        if kind == "h" and l == 0: a.p1_mat(l, "c", 9)
        a(sk + ":")
        a("s_cmp_lt_u32 s%d, 6" % sW)
        a("s_barrier")
        if a.o["stamps"] and "bx%d" % ph in a.o["stamps"]: a.stamp("bx%d" % ph); a("s_waitcnt lgkmcnt(0)")
        a("s_cbranch_scc0 " + end)
        a.p1_mat(l, kind, 9)
        a.stamp("q1_pub" if kind == "q" else "h_pub%d" % l)
        a(end + ":")
        def wave7():
            a(w7 + ":")
            a.slice_addr(5, 16, 2560); a.p1_slice_pre(l, kind)
            if lazy:
                sk2 = a.skip_unless("lg", "s%d" % sHL, 3)
                a("s_add_u32 s%d, s%d, %d" % (sT0, sLOC, L_STH)); a("v_mov_b32 v9, 0")
                a.poll(["buffer_load_dword v12, v9, %s, s%d offen sc1" % (sr(R_WS, 4), sT0)], [12], 13)
                a.gather(ph - 1); a.unpack_x()
                a(sk2 + ":")
            if kind == "q": a.add_b2()
            a.gather(ph, pre=lambda: a.canary_poll(ph))
            a.stamp("xp_in%d" % ph)
            a.p1_slice_write()
            a("s_barrier")
            a.p1_slice_stats()
            a("s_branch " + end)
        a.aside(wave7)
    def q_reads(self, base, st):
        a = self
        for k in range(3): a("ds_read_b128 %s, v5 offset:%d" % (vr(12 + 4 * k, 4), base + 128 * k))
        if st: a("ds_read_b64 %s, v%d" % (vr(st, 2), st))
    def attention1(self):
        a = self
        def prep():
            a.zero(24, 48); a.lanefn(5, [(4, 2, 32), (1, 1, 16)], 60, const=a.LD_QS)
        oth = a.lab("L_qo"); bar = a.lab("L_qb")
        a("s_sub_u32 s%d, s%d, 1" % (sT0, sW)); a("s_cmp_lt_u32 s%d, 3" % sT0); a("s_cbranch_scc0 " + oth)
        ld = "buffer_load_dwordx4 v[48:51], v7, %s, s%d offen sc1" % (sr(R_WS, 4), sT2)
        d = a.o["dq"]; w = a.lab("L_qw"); r = a.lab("L_qr"); ok = a.lab("L_qk"); assert d in (1, 2)
        if d == 2: a(ld)
        prep(); a("v_add_u32 v9, %d, v58" % ((a.LD_QS - a.LD_PB - 128) & 0xffffffff)); a("v_mov_b32 v10, %s" % ONES)
        a(w + ":"); a(ld)
        for x in a.budget(): a(x)
        a("s_and_b32 s%d, s%d, 31" % (sT0, sBUD)); a("s_waitcnt vmcnt(%d)" % (d - 1))
        for x in a.sum8(48, 60, 10): a(x)
        a("v_cmp_u_f32 vcc, v60, v60"); a("v_cvt_pk_bf16_f32 v60, v60, v60"); a("s_cbranch_vccnz " + r)
        a(ok + ":")
        a("ds_write_b16 v9, v60")
        def slow():
            a(r + ":"); a("s_cbranch_scc1 " + w); a("s_waitcnt vmcnt(0)")
            a("v_pk_max_u16 v60, v48, v49"); a("v_pk_max_u16 v61, v50, v51"); a("v_pk_max_u16 v60, v60, v61")
            a("v_lshlrev_b32 v61, 16, v60"); a("v_max_u32 v60, v60, v61"); a("v_cmp_le_u32 vcc, 0xffff0000, v60"); a("s_cbranch_vccnz " + w)
            for x in a.sum8(48, 60, 10): a(x)
            a("v_cvt_pk_bf16_f32 v60, v60, v60"); a("s_branch " + ok)
        a.aside(slow)
        a(bar + ":")
        a("s_waitcnt lgkmcnt(0)")
        def others():
            a(oth + ":"); prep()
            a("s_cmp_eq_u32 s%d, 6" % sW); a("s_cbranch_scc0 " + bar)
            a.q_base(1, sT2, sT3); a.lanefn(16, [(0, 3, 8)], 17)
            a.poll(["buffer_load_dwordx2 v[10:11], v16, %s, s%d offen sc1" % (sr(R_WS, 4), sT3)], [10, 11], 18)
            for x in a.stats_ops(10): a(x)
            a("ds_write_b64 v8, v[10:11]"); a("s_branch " + bar)
        a.aside(others)
        a("s_barrier")
        if a.o["stamps"] and ("q1_in" in a.o["stamps"] or "c_q1_in" in a.o["stamps"]): a.stamp("q1_in"); a("s_waitcnt lgkmcnt(0)")
        a.q_reads(0, 8); a("s_waitcnt lgkmcnt(1)")
        a.qk(61, ["s_waitcnt vmcnt(0) lgkmcnt(0)", "v_mul_f32 v8, v8, v%d" % vKC])
        a.stamp("qk_end"); ls = a.softmax(8); n0 = a.o["lpre"]
        for x in ls[:n0]: a(x)
        g = a.g_ops(); lw = a.l_write(); mg = a.o["mgap"]
        fill = {mg: ["ds_read_b32 v36, v62"], 5: ["s_waitcnt lgkmcnt(0)", g[0]], 7: [g[1]], 8: ["v_cmp_eq_u32 vcc, -1, v36"], 9: [g[2]], 10: [g[3]], 11: [g[4]]}
        for i, x in enumerate(ls[n0:]): fill.setdefault(2 * i, []).append(x)
        cnt = not (a.o["stamps"] and any(x.endswith("mx") or x.endswith("qk_end") or x.endswith("qk_iss") for x in a.o["stamps"]))
        for n in range(12):
            if n in (0, 2, 4) and (cnt or n == 0): a("s_waitcnt lgkmcnt(%d)" % ((5 - n // 2 + (mg < n)) if cnt else 0))
            if n == 0: a.stamp("sm_end") if not cnt else None
            a.pv(6 * (n % 2) + n // 2)
            for x in fill.get(n, []): a(x)
        a.stamp("pv_iss")
        r = a.lab("L_mr"); ok = a.lab("L_mk")
        a("s_cbranch_vccnz " + r); a(ok + ":")
        def late():
            a(r + ":"); a("ds_read_b32 v36, v62")
            for x in a.budget(): a(x)
            a("s_waitcnt lgkmcnt(0)"); a("v_cmp_eq_u32 vcc, -1, v36"); a("s_cbranch_vccnz " + r)
            for x in g: a(x)
            a("s_branch " + ok)
        a.aside(late)
        for x in lw: a(x)
        a("s_cmp_lt_u32 s%d, 2" % sW)
        a.pv_end()
        a.stamp("pv1")

    def build(self):
        a = self; o = a.o
        W = lambda w: a.skip_unless("eq", "s%d" % sW, w)
        if o["diag_hold"]: a("s_mov_b64 s[100:101], 0")
        a.stamp("start")
        a("s_load_dwordx16 s[4:19], s[0:1], 0"); a("s_load_dwordx8 s[20:27], s[0:1], 64"); a("s_load_dwordx2 s[28:29], s[0:1], 96")
        a("s_cmp_ge_u32 s2, 256"); a("s_cbranch_scc1 L_exit")
        if o["l2warm"]:
            a("s_getpc_b64 %s" % sr(sM1, 2)); a("L_pc:")
            a("v_lshlrev_b32 v5, 6, v0"); a("v_min_u32 v5, L_exit-L_pc, v5")
            a("global_load_dword v63, v5, %s" % sr(sM1, 2))
        a("v_lshrrev_b32 v5, 6, v0"); a("v_and_b32 v0, 63, v0"); a("v_readfirstlane_b32 s%d, v5" % sW)
        a("s_and_b32 s%d, s2, 7" % sX); a("s_lshr_b32 s%d, s2, 3" % sC); a("s_and_b32 s%d, s%d, 3" % (sHL, sC)); a("s_lshr_b32 s%d, s%d, 2" % (sJ, sC))
        a("s_lshl_b32 s%d, s%d, 2" % (sH, sX)); a("s_add_u32 s%d, s%d, s%d" % (sH, sH, sHL))
        a("s_mul_i32 s%d, s%d, 3" % (sAI, sJ)); a("s_add_u32 s%d, s%d, s%d" % (sAI, sAI, sHL)); a("s_cmp_eq_u32 s%d, 3" % sHL); a("s_cselect_b32 s%d, 31, s%d" % (sAI, sAI))
        if o["lv"]:
            a("s_cselect_b32 s%d, %d, %d" % (sLVL, o["lv0"][1], o["lv0"][2])); a("s_cmp_lt_u32 s%d, 20" % sAI); a("s_cselect_b32 s%d, %d, s%d" % (sLVL, o["lv0"][0], sLVL))
        a.lanefn(8, [(5, 1, 4), (4, 1, 1)], 60); a("v_and_b32 v9, 7, v0"); a("v_xor_b32 v8, v8, v9")
        a.lanefn(10, [(3, 3, 384)], 60); a("v_lshl_add_u32 v5, v8, 4, v10"); a("v_xor_b32 v6, 32, v5")
        a.lanefn(8, [(4, 2, 2)], 60); a("v_xor_b32 v8, v8, v9"); a("v_lshl_add_u32 v7, v8, 4, v10")
        a.lanefn(vX0, [(3, 3, 12288), (0, 3, 16)], 60)
        a("s_mul_i32 s%d, s%d, 12582912" % (sT0, sH)); a("s_mul_i32 s%d, s%d, %d" % (sT1, sJ, 1024 * o["lin"] if o["lin"] else 3072 if o["ilv"] else 24576))
        if o["lin"]: a("v_lshlrev_b32 v61, 4, v0")
        a("s_add_u32 s%d, s%d, s%d" % (sT0, sT0, sT1)); a("s_add_u32 s%d, s%d, %d" % (sT0, sT0, 11010048 - (1024 if o["rot"] else 0)))
        a("s_sub_u32 s%d, %d, s%d" % (sT1, 1572864 + (1024 if o["rot"] else 0), sT1))
        if o["rot"] == 1: a("s_and_b32 s%d, s%d, 7" % (sROT, sH))
        if o["rot"] == 2: a("s_mov_b32 s%d, s%d" % (sROT, sX))
        if o["rot"] == 3: a("s_lshl_b32 s%d, s%d, 1" % (sROT, sHL))
        if o["rot"] == 4: a("s_add_u32 s%d, s%d, s%d" % (sROT, sH, sX)); a("s_and_b32 s%d, s%d, 7" % (sROT, sROT))
        a("s_mul_i32 s%d, s%d, 384" % (sT2, sH)); a("s_mul_i32 s%d, s%d, %d" % (sT3, sJ, 80 * 12288)); a("s_add_u32 s%d, s%d, s%d" % (sT2, sT2, sT3))
        a("s_sub_u32 s%d, %d, s%d" % (sT3, 640 * 12288 + 2048, sT2))
        a("s_lshl_b32 s%d, s%d, 11" % (sRING, sW)); a("s_add_u32 s%d, s%d, %d" % (sRING, sRING, a.LD_RING))
        a("s_mul_i32 s%d, s%d, %d" % (sLOC, sX, LOC))
        a("s_lshl_b32 s%d, s%d, 9" % (sARR, sX)); a("s_add_u32 s%d, s%d, %d" % (sARR, sARR, ARR))
        a("s_mov_b32 s%d, %d" % (sBUD, o["budget"])); a("s_mov_b32 s%d, 1" % sFLAG)
        a("s_getreg_b32 s%d, hwreg(20, 0, 3)" % sXCC)
        if o["lvp"]: a("s_andn2_b32 s%d, 1, s%d" % (sF, sXCC)); a("s_mul_i32 s%d, s%d, %d" % (sF, sF, o["lvp"])); a("s_add_u32 s%d, s%d, s%d" % (sLVL, sLVL, sF))
        for r in (vX1, vB, 11, 24, 34): a("v_mov_b32 v%d, 0" % r)
        a("v_mov_b64 v[12:13], -1"); a("v_mov_b64 v[14:15], -1"); a("v_lshlrev_b32 v10, 4, v0")
        a("s_waitcnt lgkmcnt(0)")
        a.srd(R_K, P_K, "s%d" % sT1, off=sT0); a.srd(R_V, P_V, "s%d" % sT1, off=sT0); a.srd(R_WS, P_WS, WS_BYTES)
        a.srd(R_WQ, P_WQ, "s%d" % sT3, off=sT2); a("s_sub_u32 s%d, s%d, 2048" % (R_WQ, R_WQ)); a("s_subb_u32 s%d, s%d, 0" % (R_WQ + 1, R_WQ + 1))
        a.stamp("pre_dma")
        order, upto, wait = a.plan(); done = [0]
        def wl_setup():
            lb = a.lab("L_wb"); le = a.lab("L_we")
            a("s_cmp_lg_u32 s%d, 3" % sHL); a("s_cbranch_scc0 " + lb)
            a("s_mul_i32 s%d, s%d, %d" % (sT0, sX, 768 * 1280)); a("s_lshl_b32 s%d, s%d, 6" % (sT1, sAI)); a("s_add_u32 s%d, s%d, s%d" % (sT0, sT0, sT1))
            a.lanefn(38, [(4, 1, 2)], 39); a("v_xor_b32 v38, v38, v0"); a("v_and_b32 v38, 3, v38")
            a.lanefn(vX1, [(5, 1, 8 * 1280), (4, 1, 2 * 1280), (3, 1, 4 * 1280), (2, 1, 16 * 1280)], 39, s=sT0); a("v_lshl_add_u32 v%d, v38, 4, v%d" % (vX1, vX1))
            a("s_mov_b32 s%d, %d" % (sWA, 32 * 1280)); a("s_mov_b32 s%d, %d" % (sWB, 1280 - 1024))
            a("s_branch " + le)
            a(lb + ":")
            a("s_mul_i32 s%d, s%d, 384" % (sT0, sX)); a("s_mul_i32 s%d, s%d, %d" % (sT1, sJ, 80 * 3072)); a("s_add_u32 s%d, s%d, s%d" % (sT0, sT0, sT1))
            a.lanefn(vX1, [(0, 6, 16)], 39, s=sT0)
            a("v_mov_b32 v38, %d" % (3072 - 384)); a("v_cmp_lt_u32 vcc, 23, v0"); a("v_cndmask_b32 v38, 0, v38, vcc"); a("v_add_u32 v%d, v38, v%d" % (vX1, vX1))
            a("v_mov_b32 v38, 0x7f000000"); a("v_cmp_lt_u32 vcc, 47, v0"); a("v_cndmask_b32 v%d, v%d, v38, vcc" % (vX1, vX1))
            a("s_mov_b32 s%d, %d" % (sWA, 4 * 3072)); a("s_mov_b32 s%d, %d" % (sWB, 2 * 3072 - 1024))
            a(le + ":")
        def issue(k, burst=False, first=False):
            if done[0] >= k: return
            sk = W(LOADER)
            if first and o["prio"]: a("s_setprio %d" % o["prio"])
            for i in range(done[0], k):
                if order[i] == ("w0" if o["nwl"] else "r0"): wl_setup()
                a.block(order[i], None if burst or i >= (order.index(o["burst_st"]) if o["burst_st"] < 24 else 999) or i < o["fast0"] else o["W"])
            a(sk + ":"); done[0] = k
        issue(upto[0], first=True)
        a.stamp("post_dma")
        assert "w0" not in order[:upto[0]]
        a("s_cmp_lt_u32 s%d, 20" % sAI); a("s_cselect_b32 s%d, %d, 0" % (sT0, 6144 * 1280))
        a("s_add_u32 s%d, s%d, 1" % (sT1, sJ)); a("s_mul_i32 s%d, s%d, %d" % (sT1, sT1, 80 * 3072))
        a("s_cmp_lg_u32 s%d, 3" % sHL); a("s_cselect_b64 %s, %s, %s" % (sr(R_WL, 2), sr(P_WO, 2), sr(P_W1, 2)))
        a("s_cselect_b32 s%d, s%d, s%d" % (R_WL + 2, sT0, sT1)); a("s_mov_b32 s%d, 0x20000" % (R_WL + 3))
        a("s_add_u32 s%d, s%d, %d" % (sT0, P_WS, XP)); a("s_sub_u32 s%d, 0, s%d" % (sT0, sT0)); a("s_and_b32 s%d, s%d, 0x7fff" % (sT0, sT0)); a("s_add_u32 s%d, s%d, %d" % (sT0, sT0, XP))
        a("s_lshr_b32 s%d, s%d, 1" % (sT1, sX)); a("s_lshl_b32 s%d, s%d, 15" % (sT1, sT1)); a("s_add_u32 s%d, s%d, s%d" % (sXPW, sT0, sT1))
        a("s_and_b32 s%d, s%d, 1" % (sT1, sX)); a("s_mul_i32 s%d, s%d, 2560" % (sT1, sT1)); a("s_add_u32 s%d, s%d, s%d" % (sXPW, sXPW, sT1))
        a("s_lshl_b32 s%d, s%d, 7" % (sT1, sAI)); a("s_add_u32 s%d, s%d, s%d" % (sXPW, sXPW, sT1))
        a("s_mov_b32 s%d, s%d" % (sXPB, sT0))
        a("s_lshr_b32 s%d, s%d, 4" % (sT1, sC)); a("s_lshl_b32 s%d, s%d, 15" % (sT1, sT1)); a("s_and_b32 s%d, s%d, 15" % (sT2, sC)); a("s_lshl_b32 s%d, s%d, 7" % (sT2, sT2))
        a("s_add_u32 s%d, s%d, s%d" % (sT2, sT2, sT1)); a("s_add_u32 s%d, s%d, s%d" % (sT2, sT2, sT0)); a("s_add_u32 s%d, s%d, 5120" % (sT2, sT2))
        a("s_lshl_b32 s%d, s%d, 16" % (sT1, sX)); a("s_add_u32 s%d, s%d, s%d" % (sT2, sT2, sT1))
        a("s_add_u32 s10, s%d, s%d" % (P_WS, sT2)); a("s_addc_u32 s11, s%d, 0" % (P_WS + 1))
        a("s_lshr_b32 s%d, s%d, 2" % (sT1, sXCC)); a("s_xor_b32 s%d, s%d, %d" % (sT1, sT1, o["pol"])); a("s_mul_i32 s%d, s%d, %d" % (sT1, sT1, 8192 if o["nc"] > 1 else 0)); a("s_add_u32 s%d, s%d, s%d" % (sXPR, sT0, sT1))
        if o["nc"] == 4: a("s_and_b32 s%d, s%d, 1" % (sT1, sXCC)); a("s_lshl_b32 s%d, s%d, 14" % (sT1, sT1)); a("s_add_u32 s%d, s%d, s%d" % (sXPR, sXPR, sT1))
        sk = W(9 if o["strip"] & 2 else CTRL)
        sk2 = a.skip_unless("eq", "s%d" % sC, 31)
        a.exec_(0xffffff)
        a("buffer_store_dwordx4 v[12:15], v10, %s, s%d offen sc1" % (sr(R_WS, 4), sARR))
        a.exec_(-1)
        a(sk2 + ":")
        sk2 = a.skip_unless("lt", "s%d" % sAI, 20)
        if not o["noclr"] & 1: a.xp_clear(0, {0: 4, 2: 2}[o["lateclr"] & 3], 12, 16)
        a(sk2 + ":")
        if 5 in o["can"]:
            sk2 = a.skip_unless("eq", "s%d" % sAI, 20)
            a("s_lshl_b32 s%d, s%d, 15" % (sT1, sX)); a("s_add_u32 s%d, s%d, s%d" % (sT1, sT1, sXPB)); a("s_add_u32 s%d, s%d, 7168" % (sT1, sT1))
            a.lanefn(16, [(0, 3, 16), (3, 1, 8192), (4, 2, 1 << 28)], 60)
            a("buffer_store_dwordx4 v[12:15], v16, %s, s%d offen sc1" % (sr(R_WS, 4), sT1))
            a(sk2 + ":")
        if o["race"]:
            a("s_sub_u32 s%d, s%d, 20" % (sT1, sAI)); a("s_cmp_lt_u32 s%d, 4" % sT1); a("s_cselect_b32 s%d, s%d, 0x7f000000" % (sT2, sT2))
            a.lanefn(16, [(0, 3, 16), (3, 1, 8192), (4, 2, 1 << 28)], 60)
            a("buffer_store_dwordx4 v[12:15], v16, %s, s%d offen sc1" % (sr(R_WS, 4), sT2))
        def clear_local(ad, fl):
            a("s_mul_i32 s%d, s%d, %d" % (sT0, sC, CLR)); a("s_add_u32 s%d, s%d, s%d" % (sT0, sT0, sLOC))
            a.exec_((1 << ((CLR - 1024) // 16)) - 1)
            a("buffer_store_dwordx4 v[12:15], v%d, %s, s%d offen offset:1024 %s" % (ad, sr(R_WS, 4), sT0, fl))
            a.exec_(-1)
            a("buffer_store_dwordx4 v[12:15], v%d, %s, s%d offen %s" % (ad, sr(R_WS, 4), sT0, fl))
        if not o["noclr"] & 2 and o["lclr_at"] < 0: clear_local(10, o["lclrf"])
        a.exec_(-1)
        a.lanefn(16, [(0, 6, 16)], 60, const=a.LD_ML); a("ds_write_b128 v16, v[12:15]")
        a("v_subrev_u32 v16, 8, v0"); a("v_cmp_gt_u32 vcc, 40, v16"); a("v_mov_b32 v16, %s" % ONES); a("v_cndmask_b32 v18, 0, v16, vcc")
        a("v_min_u32 v16, 55, v0"); a("v_lshlrev_b32 v16, 2, v16"); a("v_add_u32 v16, %d, v16" % (a.LD_XB + 160))
        a("ds_write_b32 v16, v18")
        a.lanefn(vX1, [(0, 3, 32)], 60)
        a(sk + ":")
        sk = W(7); a.slice_addr(16, 8, 4)
        a("global_load_dword v28, v16, %s" % sr(P_X, 2)); a("global_load_dword v%d, v16, %s" % (vB, sr(P_B2, 2)))
        a(sk + ":")
        a("s_sub_u32 s%d, s%d, 4" % (sT1, sW))
        sk = a.skip_unless("lt", "s%d" % sT1, 3)
        a("s_mul_i32 s%d, s%d, 3" % (sT0, sX)); a("s_add_u32 s%d, s%d, s%d" % (sT0, sT0, sT1)); a("s_lshl_b32 s%d, s%d, 7" % (sT0, sT0))
        a.lanefn(16, [(0, 6, 2)], 60, s=sT0)
        a("global_load_short_d16_hi v%d, v16, %s" % (vB, sr(P_B1, 2)))
        a(sk + ":")
        a.lanefn(8, [(1, 3, 1)], 60); a("v_lshrrev_b32 v9, 4, v0"); a("v_xor_b32 v9, v8, v9")
        a.lanefn(8, [(2, 1, 1024), (3, 1, 512), (0, 2, 128)], 60, s=sRING); a("v_lshl_add_u32 v8, v9, 4, v8"); a("v_xor_b32 v9, 64, v8")
        a.lanefn(vIDX, [(1, 1, 0xAAAA)], 60, const=0x4444)

        go_ld = "global_load_dword v%d, v%d, %s sc1" % (vX0, vX1, sr(P_DBG, 2))
        arr_ld = "buffer_load_dword v%d, v24, %s, s%d offen sc1" % (vX0, sr(R_WS, 4), sARR)
        vd_ld = go_ld.replace(" sc1", " offset:4 sc1"); sSAME = sF
        e = {k: o[k] for k in ("go_s", "go_i", "arr_s", "arr_i", "arr_c", "q_c", "vd_i", "vd_c", "warm", "preread")}
        e["p1"] = max(3, max(o["qpos"]) + 1 if o["qpos"] else 0)
        e["dec"] = e["arr_c"] + 1; e["kc"] = e["q_c"] + 1; e["qk"] = e["kc"] + 1; e["ml"] = e["qk"] + 1
        assert e["go_s"] < e["go_i"] < e["arr_s"] < e["arr_i"] < e["arr_c"] < e["vd_i"] - 1 < e["vd_c"] <= 20 and e["go_s"] < e["p1"] < e["arr_s"] - 1
        assert e["dec"] < e["q_c"] and e["kc"] >= 12 and e["ml"] <= e["preread"] <= 20
        late = "r0" in order
        self.sched = dict(order=order, upto=upto, wait=wait, ev=e)
        STG = a.LD_PP + 256; STS = a.LD_FLAG + 16
        for s in range(24):
            if s == 21:
                if o["diag_bud"]: a("s_sub_u32 s97, %d, s%d" % (o["budget"], sBUD)); a("s_mul_i32 s97, s97, 100"); a("s_waitcnt lgkmcnt(0)"); a("s_add_u32 s100, s100, s97")
                a("s_branch L_tail"); a(".p2align 10"); a("L_tail:")
            a("s_waitcnt vmcnt(%d)" % wait[s])
            a.stamp("bw%d" % s)
            a("s_barrier")
            a.stamp("ba%d" % s)
            a.reads(s)
            if s < 21 or o["strip"]: issue(upto[s + 1] if s < 23 else len(order), burst=s in (e["kc"], e["qk"]) and not o["strip"])
            a("s_waitcnt lgkmcnt(0)")
            a.stamp("v_in" if s == 23 else "st%d" % s)
            if s == 4 and o["w2at"] >= 0:
                assert "q1" in order[:upto[4]] and "u0" not in order[:upto[5]]
                a("s_cmp_lt_u32 s%d, 20" % sAI); a("s_cselect_b32 s%d, %d, 0" % (sT2, 1536 * 1280)); a.srd(R_WQ, P_W2, "s%d" % sT2)
                sk = W(LOADER)
                a("s_mul_i32 s%d, s%d, %d" % (sT0, sX, 192 * 1280)); a("s_lshl_b32 s%d, s%d, 6" % (sT1, sAI)); a("s_add_u32 s%d, s%d, s%d" % (sT0, sT0, sT1))
                a.lanefn(vX0, [(2, 4, 1280), (0, 2, 16)], 60, s=sT0)
                a(sk + ":")
            if s == 11:
                a.lanefn(8, [(2, 4, 128), (3, 2, 32), (0, 2, 8)], 60, s=sRING)
                for tt in (1, 2, 3): a("v_xor_b32 v%d, %d, v8" % (8 + tt, 32 * tt))
            if s == e["warm"] and o["pads"]:
                sk = a.skip_unless("lt", "s%d" % sW, o["npad"])
                a("s_mov_b64 exec, 0")
                for k in range(1, o["npad"]): a("s_cmp_eq_u32 s%d, %d" % (sW, k)); a("s_cbranch_scc1 L_padin%d" % k)
                a("s_branch L_padin0"); a("L_padback:"); a("s_mov_b64 exec, -1")
                a(sk + ":")
            if o["strip"]:
                if s == 23: a("s_waitcnt vmcnt(0)"); a.stamp("out"); a("s_branch L_done")
                if s >= 21 or s > o["upto_ev"] or o["upto_ev"] == 99: continue
            if s == e["go_s"]:
                sk = W(CTRL); sk2 = a.skip_unless("eq", "s%d" % sC, 31)
                a("s_lshl_b32 s%d, s%d, 5" % (sT0, sX)); a("v_mov_b32 v16, s%d" % sT0)
                a("s_add_u32 s%d, s%d, 1" % (sT0, sXCC)); a("v_mov_b32 v12, s%d" % sT0)
                a("s_waitcnt vmcnt(%d)" % (0 if o["noclr"] or o["lclr_at"] >= 0 else 4 if o["race"] else 3))
                a.stamp("clr_ack")
                a.exec_(1); a("global_store_dword v16, v12, %s sc1" % sr(P_DBG, 2)); a.exec_(-1)
                a(sk2 + ":"); a(sk + ":")
            if s == e["p1"] - 1 or s == e["preread"] + 2:
                sk = a.skip_unless("lt", "s%d" % sW, 5); a("s_waitcnt vmcnt(0)"); a(sk + ":")
            if s == e["p1"] - 1:
                sk = W(7); a.p1_slice_pre(0); a("s_waitcnt vmcnt(0)"); a.p1_slice_write(); a(sk + ":")
            def p1_layer0():
                sk = W(7); a.p1_slice_stats(); a(sk + ":")
                sk = a.skip_unless("lt", "s%d" % sW, 6)
                a.p1_prefetch(0, "q", 52); a.p1_mat(0, "q", 52)
                a(sk + ":")
            def arrive(off, fl):
                return ["s_lshl_b32 s%d, s%d, 2" % (sT0, sC), "s_add_u32 s%d, s%d, s%d" % (sT0, sT0, sARR), "s_mov_b64 exec, 1",
                        "buffer_store_dword v25, v0, %s, s%d offen offset:%d %s" % (sr(R_WS, 4), sT0, off, fl), "s_mov_b64 exec, -1"]
            if s == e["p1"] and "p" not in o["omit"]:
                p1_layer0(); a.stamp("q0_pub")
            if s == o["lclr_at"]:
                assert s < e["arr_s"] - 1
                sk = W(CTRL); a("v_mov_b64 v[12:13], -1"); a("v_mov_b64 v[14:15], -1"); a("v_lshlrev_b32 v16, 4, v0"); clear_local(16, o["lclrf"]); a(sk + ":")
            if s == o["race_at"]:
                sk = W(CTRL)
                assert s < e["p1"]
                a("s_waitcnt vmcnt(0)")
                a("s_lshr_b32 s%d, s%d, 2" % (sF + 1, sXCC))
                if o["race"]:
                    a("s_sub_u32 s%d, s%d, 20" % (sT1, sAI)); sk2 = a.skip_unless("lt", "s%d" % sT1, 4); a.race(sF + 1); a(sk2 + ":")
                a(sk + ":")
            if s == e["go_i"]:
                sk = W(CTRL); a(go_ld); a(sk + ":")
            if s == e["arr_s"] - 1:
                sk = a.skip_unless("lg", "s%d" % sW, LOADER); a("s_waitcnt vmcnt(0)"); a.stamp("ack_ok"); a(sk + ":")
            if s == e["arr_s"]:
                sk = W(CTRL)
                w = a.lab("L_cw"); r = a.lab("L_cr")
                a(w + ":")
                a("v_readlane_b32 s%d, v%d, s%d" % (sT0, vX0, sX)); a("s_cmp_eq_u32 s%d, 0" % sT0); a("s_cbranch_scc1 " + r)
                a.ool += [r + ":"] + a.budget() + [go_ld, "s_waitcnt vmcnt(0)", "s_branch " + w]
                far = a.lab("L_far"); bk = a.lab("L_fb")
                a("s_lshr_b32 s%d, s%d, 2" % (sT1, sXCC)); a("s_xor_b32 s%d, s%d, s%d" % (sT1, sT1, sF + 1))
                a("s_and_b32 s%d, s%d, 1" % (sT1, sT1)); a("v_mov_b32 v25, s%d" % sT1)
                a("s_sub_u32 s%d, s%d, 1" % (sT0, sT0)); a("s_cmp_eq_u32 s%d, s%d" % (sT0, sXCC)); a("s_cselect_b32 s%d, 1, 0" % sSAME)
                a("s_cbranch_scc0 " + far)
                for x in arrive(0, ""): a(x)
                a(bk + ":")
                a.ool += [far + ":"] + arrive(128, "sc1") + ["s_branch " + bk]
                a.stamp("go_ok")
                a(sk + ":")
            if s == e["arr_i"]:
                sk = W(CTRL); a("v_lshlrev_b32 v24, 2, v0"); a(arr_ld); a(sk + ":")
            if s == e["vd_i"]:
                sk = W(CTRL); a(vd_ld); a(sk + ":")
            if s == e["vd_c"]:
                sk = W(CTRL)
                w = a.lab("L_cw"); r = a.lab("L_cr")
                a(w + ":"); a("s_waitcnt vmcnt(0)")
                a("v_cmp_eq_u32 vcc, 0, v%d" % vX0); a("s_cbranch_vccnz " + r)
                a.ool += [r + ":"] + a.budget() + [vd_ld, "s_branch " + w]
                if o["race"]:
                    for k in (4, 2, 1): a("v_add_u32_dpp v%d, v%d, v%d row_ror:%d row_mask:0xf bank_mask:0xf" % (vX0, vX0, vX0, k))
                    a("v_mov_b32 v60, %d" % (a.LD_FLAG + 4)); a("ds_write_b32 v60, v%d" % vX0); a("s_waitcnt lgkmcnt(0)")
                a.stamp("vd_ok")
                a(sk + ":")
            if s == e["vd_c"] + 1 and o["race"]:
                sk = W(7)
                a("v_mov_b32 v60, %d" % (a.LD_FLAG + 4)); a("ds_read_b32 v60, v60"); a("s_lshr_b32 s%d, s%d, 2" % (sT1, sXCC)); a("s_waitcnt lgkmcnt(0)")
                a("v_readfirstlane_b32 s%d, v60" % sT0); a("s_cmp_gt_u32 s%d, %d" % (sT0, 16 + 8)); a("s_cselect_b32 s%d, 1, 0" % sT0)
                a("s_xor_b32 s%d, s%d, s%d" % (sT0, sT0, sT1)); a("s_lshl_b32 s%d, s%d, 13" % (sT0, sT0)); a("s_add_u32 s%d, s%d, s%d" % (sXPR, sXPB, sT0))
                a(sk + ":")
            if s == e["arr_c"]:
                sk = W(CTRL)
                w = a.lab("L_cw"); r = a.lab("L_cr"); dn = a.lab("L_cd")
                a(w + ":"); a("s_waitcnt vmcnt(0)")
                a("v_cmp_ne_u32 vcc, -1, v%d" % vX0); a("s_mov_b32 s%d, 0" % sT0); a("s_mov_b32 s%d, 2" % (sF + 4))
                a("s_cmp_eq_u32 s%d, 0" % sSAME); a("s_cbranch_scc1 " + dn)
                a("s_cmp_lg_u32 vcc_hi, 0"); a("s_cbranch_scc1 " + dn)
                a("s_cmp_lg_u32 vcc_lo, -1"); a("s_cbranch_scc1 " + r)
                a.ool += [r + ":"] + a.budget() + [arr_ld, "s_branch " + w]
                a("v_cmp_eq_u32 vcc, 1, v%d" % vX0); a("s_bcnt1_i32_b32 s%d, vcc_lo" % (sF + 4))
                a("s_mov_b32 s%d, %d" % (sT0, 0 if o["force_global"] else 1))
                a(dn + ":")
                a("v_mov_b32 v37, %d" % a.LD_FLAG); a("v_mov_b32 v38, s%d" % sT0); a("ds_write_b32 v37, v38"); a("s_waitcnt lgkmcnt(0)")
                a.stamp("arr_ok")
                a(sk + ":")
            if s == e["dec"]:
                a("v_mov_b32 v41, %d" % a.LD_FLAG); a("ds_read_b32 v42, v41"); a("s_waitcnt lgkmcnt(0)"); a("v_readfirstlane_b32 s%d, v42" % sFLAG)
                a("s_cmp_eq_u32 s%d, 0" % sFLAG); a("s_cbranch_scc1 L_spread"); a("L_spread_back:")
                keep = a.L; a.L = []
                a("L_spread:")
                a("s_add_u32 s%d, s%d, %d" % (sLOC, sLOC, LOC_B))
                sk = W(CTRL)
                a("v_mov_b64 v[12:13], -1"); a("v_mov_b64 v[14:15], -1"); a("v_lshlrev_b32 v16, 4, v0"); clear_local(16, "sc1")
                a(sk + ":")
                sk = W(7); a.p1_slice_pre(0); a("v_cvt_pk_bf16_f32 v28, v%d, v%d" % (vX0, vX1)); a(sk + ":")
                p1_layer0()
                a("s_waitcnt vmcnt(0)"); a("s_barrier")
                sk = W(CTRL)
                a("v_mov_b32 v25, 0")
                for x in arrive(256, "sc1"): a(x)
                a.lanefn(16, [(0, 5, 4)], 39)
                a.poll(["buffer_load_dword v17, v16, %s, s%d offen offset:256 sc1" % (sr(R_WS, 4), sARR)], [17], 18)
                a(sk + ":")
                a("s_barrier"); a("s_branch L_spread_back")
                self.cold = a.L; a.L = keep
                sk = W(CTRL); sk2 = a.skip_unless("eq", "s%d" % sC, 31)
                a("s_lshl_b32 s%d, s%d, 5" % (sT0, sX)); a("v_mov_b32 v16, s%d" % sT0); a("s_add_u32 s%d, s%d, 1" % (sT0, sF + 4)); a("v_mov_b32 v12, s%d" % sT0)
                a.exec_(1); a("global_store_dword v16, v12, %s offset:4 sc1" % sr(P_DBG, 2)); a.exec_(-1)
                a(sk2 + ":"); a(sk + ":")
                a("s_sub_u32 s%d, s%d, 1" % (sT1, sW)); sk = a.skip_unless("lt", "s%d" % sT1, 4)
                a.q_base(0, sT2, sT3); a("s_lshl_b32 s%d, s%d, 10" % (sT0, sT1)); a.lanefn(16, [(0, 6, 16)], 60, s=sT0); a.lanefn(17, [(0, 3, 8)], 60)
                sk2 = W(4); a("buffer_load_dwordx2 v[12:13], v17, %s, s%d offen %s" % (sr(R_WS, 4), sT3, o["qf"])); a("s_branch " + sk); a(sk2 + ":")
                a("buffer_load_dwordx4 v[12:15], v16, %s, s%d offen %s" % (sr(R_WS, 4), sT2, o["qf"]))
                a("buffer_load_dwordx4 v[20:23], v16, %s, s%d offen offset:3072 %s" % (sr(R_WS, 4), sT2, o["qf"]))
                a(sk + ":")
            if s == e["q_c"]:
                a("s_sub_u32 s%d, s%d, 1" % (sT1, sW)); sk = a.skip_unless("lt", "s%d" % sT1, 4)
                a("s_waitcnt vmcnt(0)"); a.stamp("q0_in")
                sk2 = W(4)
                for x in a.stats_ops(12): a(x)
                a("v_mov_b32 v16, %d" % STS); a("ds_write_b64 v16, v[12:13]"); a("s_waitcnt lgkmcnt(0)"); a("s_branch " + sk); a(sk2 + ":")
                a("s_lshl_b32 s%d, s%d, 7" % (sT0, sT1)); a.lanefn(16, a.POS, 60, s=sT0, const=STG); a("v_mov_b32 v17, %s" % ONES)
                for n, src in enumerate((12, 20)):
                    for x in a.sum8(src, 24, 17): a(x)
                    a("v_cvt_pk_bf16_f32 v24, v24, v24"); a("ds_write_b16 v16, v24 offset:%d" % (384 * n))
                a("s_waitcnt lgkmcnt(0)")
                a(sk + ":")
            if s == e["kc"]:
                a.lanefn(5, [(4, 2, 32), (1, 1, 16)], 60, const=STG)
                a.q_reads(384, None); a.att_prep(0); a.zero(24, 48); a("s_waitcnt lgkmcnt(0)")
                a.qk(vKC)
            if s == e["qk"]:
                a("v_mov_b32 v48, %d" % STS); a.q_reads(0, 48)
                a.zero(24, 40); a("s_waitcnt lgkmcnt(0)")
                a.qk(61, ["v_mul_f32 v48, v48, v%d" % vKC]); ls = a.softmax(48)
                for x in ls: a(x)
                a("s_waitcnt lgkmcnt(0)")
                a.stamp("qk0")
            if s == e["ml"]:
                a("ds_read_b32 v36, v62"); a("s_waitcnt lgkmcnt(0)")
                for x in a.g_ops(): a(x)
                sk = a.skip_unless("lt", "s%d" % sW, 2)
                a.combine_addr(); a.m_publish(0)
                a(sk + ":")
            if s == e["preread"] and o["touch"]:
                sk = W(3); sk2 = a.skip_unless("lt", "s%d" % sAI, 20)
                a("s_mul_i32 s%d, s%d, 245760" % (sT0, sX)); a("s_lshl_b32 s%d, s%d, 6" % (sT1, sAI)); a("s_add_u32 s%d, s%d, s%d" % (sT0, sT0, sT1))
                a.lanefn(50, [(0, 1, 191 * 1280)], 60, s=sT0)
                a.exec_(3); a("global_load_dword v50, v50, %s nt" % sr(P_W2, 2)); a.exec_(-1)
                a(sk2 + ":"); a(sk + ":")
            if s == e["preread"]:
                sk = W(2); a("s_sub_u32 s%d, s%d, 20" % (sT0, sAI)); sk2 = a.skip_unless("lt", "s%d" % sT0, 4)
                a.preread(0, o["pref"], 50)
                a.preread(1, o["pref"], 51)
                a(sk2 + ":"); a(sk + ":")
            if s >= 21:
                seg = s - 21
                for T in range(4 * seg, 4 * seg + 4): a.pv(T)
                if s < 23: issue(upto[s + 1])
                assert s < 23 or done[0] == len(order)
                if s == 22:
                    for x in a.l_write(): a(x)
                if s == 23:
                    if o["prio"]: a("s_setprio 0")
                    a("s_cmp_lt_u32 s%d, 2" % sW); a.pv_end()
        for l in (0, 1):
            cb = "L_comb_%d" % l
            a("s_cbranch_scc1 " + cb); a("s_waitcnt lgkmcnt(0)"); a("s_barrier"); a(cb + "b:")
            def comb():
                a(cb + ":")
                if l == 1: a.m_publish(1); a.stamp("ml_end")
                a.combine(l); a("s_branch " + cb + "b")
            a.aside(comb)
            if l == 0 and late:
                sk = W(LOADER); a("s_waitcnt vmcnt(0)"); a(sk + ":"); a("s_barrier")
            tb = "L_typeB_%d" % l
            nxt = "L_done" if l == 1 else "L_p1"
            a("s_cmp_lt_u32 s%d, 20" % sAI); a("s_cbranch_scc0 " + tb)
            a.p3(l)
            a("s_sub_u32 s%d, s%d, 4" % (sT0, sW))
            sk = a.skip_unless("lt", "s%d" % sT0, 3)
            a.p4b(l)
            a(sk + ":")
            a("s_branch " + nxt)
            a(tb + ":")
            if 5 in o["can"][2 * l:2 * l + 2]:
                lc = a.lab("L_typeC"); a("s_cmp_eq_u32 s%d, 3" % sHL); a("s_cbranch_scc0 " + lc)
                def typec():
                    a(lc + ":"); a("s_cmp_eq_u32 s%d, 6" % sW); a("s_cbranch_scc0 " + nxt); a("s_cmp_eq_u32 s%d, 20" % sAI); a("s_cbranch_scc0 " + nxt)
                    a("s_lshl_b32 s%d, s%d, 15" % (sT2, sX)); a("s_add_u32 s%d, s%d, s%d" % (sT2, sT2, sXPB)); a("s_add_u32 s%d, s%d, 7168" % (sT2, sT2))
                    a.lanefn(10, [(0, 1, 8192), (1, 5, 1 << 24)], 60)
                    for ph in (2 * l, 2 * l + 1):
                        if o["can"][ph] != 5: continue
                        if ph % 2 == 0: a("s_add_u32 s%d, s%d, %d" % (sT1, sLOC, L_O[l] + 1568)); a.lanefn(9, [(3, 3, OB), (0, 3, 4)], 60)
                        else: a("s_add_u32 s%d, s%d, %d" % (sT1, sLOC, L_STH + 128 * l)); a.lanefn(9, [(0, 4, 4)], 60)
                        a.poll(["buffer_load_dword v%d, v9, %s, s%d offen sc1" % (12 + ph % 2, sr(R_WS, 4), sT1)], [12 + ph % 2], 14, depth=o["dw"])
                        if o["wd"][ph]: a("s_sleep %d" % o["wd"][ph])
                        a("buffer_store_dword v%d, v10, %s, s%d offen offset:%d sc1" % (vL, sr(R_WS, 4), sT2, 4 * ph))
                    a("s_waitcnt vmcnt(1)"); a("s_branch " + nxt)
                a.aside(typec)
            else:
                a("s_cmp_eq_u32 s%d, 3" % sHL); a("s_cbranch_scc0 " + nxt)
            a.slab(l, "h", 2 * l)
            if l == 1:
                a("s_cmp_eq_u32 s%d, 7" % sW); a("s_cbranch_scc0 L_done")
                a("s_cmp_eq_u32 s%d, 0" % sX); a("s_cbranch_scc0 L_done")
                a.add_b2(); a.slice_addr(7, 8, 4)
                a.gather(3, pre=lambda: a.canary_poll(3))
                a("global_store_dword v7, v28, %s %s" % (sr(P_OUT, 2), o["outf"]))
                a.stamp("out")
                a("s_branch L_done")
                break
            a("L_p1:")
            a.att_prep(1); a("v_mov_b32 v8, %d" % (a.LD_QS + 512))
            a("s_sub_u32 s%d, s%d, 1" % (sT0, sW)); a("s_lshl_b32 s%d, s%d, 10" % (sT0, sT0)); a.lanefn(7, [(0, 6, 16)], 60, s=sT0)
            a.slab(1, "q", 1, lazy=True)
            a.attention1()
        for x in a.ool: a(x)
        a("L_tail_end:")
        for x in a.cold: a(x)
        a("L_done:")
        if o["diag_hold"]:
            if o["diag_x"] >= 0: a("s_cmp_eq_u32 s%d, %d" % (sXCC, o["diag_x"])); a("s_cbranch_scc0 L_exit")
            a("s_waitcnt lgkmcnt(0)"); a("s_cmp_eq_u64 s[100:101], 0"); a("s_cbranch_scc1 L_exit")
            a("L_hold:"); a("s_memrealtime s[98:99]"); a("s_waitcnt lgkmcnt(0)"); a("s_sub_u32 s98, s98, s100")
            a("s_cmp_lt_i32 s98, %d" % o["diag_hold"]); a("s_cbranch_scc1 L_hold")
        if o["stamps"]:
            n = len(o["stamps"])
            a("s_mov_b64 exec, -1"); a("s_waitcnt vmcnt(0) lgkmcnt(0)")
            for i in range(n): a("v_writelane_b32 v12, s%d, %d" % (sST + 2 * i, i))
            a("s_getreg_b32 s%d, hwreg(4, 0, 16)" % sT0); a("s_lshl_b32 s%d, s%d, 16" % (sT1, sXCC)); a("s_or_b32 s%d, s%d, s%d" % (sT0, sT0, sT1)); a("v_writelane_b32 v12, s%d, 13" % sT0)
            a("v_writelane_b32 v12, s%d, 14" % sBUD); a("s_sub_u32 s%d, s%d, s%d" % (sT0, sXPR, sXPB)); a("s_or_b32 s%d, s%d, s%d" % (sT0, sT0, sFLAG)); a("s_lshl_b32 s%d, s%d, 16" % (sT1, sF + 4)); a("s_or_b32 s%d, s%d, s%d" % (sT0, sT0, sT1)); a("v_writelane_b32 v12, s%d, 15" % sT0)
            a("s_lshl_b32 s%d, s2, 3" % sT0); a("s_add_u32 s%d, s%d, s%d" % (sT0, sT0, sW)); a("s_lshl_b32 s%d, s%d, 6" % (sT0, sT0))
            a("s_add_u32 s%d, s%d, %d" % (sT0, sT0, STAMP_OFF))
            a.lanefn(13, [(0, 6, 4)], 60, s=sT0)
            a.exec_(0xffff)
            a("global_store_dword v13, v12, %s" % sr(P_WS, 2))
        a("L_exit:")
        a("s_endpgm")
        L = a.L
        if o["stamps"]:
            pre = ["s_mov_b64 %s, 0" % sr(sST + 2 * i, 2) for i in range(len(o["stamps"]))]
            L = pre + L
        if o["pads"]:
            L0 = [re.sub(r"L_padin(\d)", r"L_padback ; in\1", x) for x in L]
            L1, nops = fix_hazards(L0)
            L1, npad, tb = insert_pads(L1, "L_tail", "L_tail_end", "L_padback", o["padstep"], o["npad"])
            L1 = [re.sub(r"L_padback ; in(\d)", r"L_pad\1", x) for x in L1]
            L = L1; self.info = (nops, npad, tb)
        else:
            L, nops = fix_hazards(L); self.info = (nops, 0, 0)
        return L

def render(name=NAME + "_kernel", **kw):
    g = G(**kw); L = g.build()
    ref = open("cdna_kernels/%s.s.ref" % NAME).read().split("\n") if name.startswith(NAME) else []
    head = [x for x in ref if x.startswith(";") and "@launch" not in x and "Override" not in x and "grid=ceil" not in x]
    out = head + ["; Generated by gen/gen.py (hand-written generator): one persistent launch, K/V held in registers across both layers.",
                  "; @launch grid=(256,1,1) block=(512,1,1) lds=%d" % g.LDS,
                  '.amdgcn_target "amdgcn-amd-amdhsa--gfx950"', ".text", ".fill 64, 4, 0xbf800000", ".globl " + name, ".p2align 8", ".type %s,@function" % name, name + ":"]
    out += [x if x.endswith(":") or x.startswith(".") else "    " + x for x in L]
    out += ['.section .rodata,"a"', ".p2align 6", ".amdhsa_kernel " + name, "  .amdhsa_next_free_vgpr 256", "  .amdhsa_next_free_sgpr 102",
            "  .amdhsa_accum_offset 256", "  .amdhsa_group_segment_fixed_size 0", "  .amdhsa_kernarg_size 104", "  .amdhsa_user_sgpr_count 2",
            "  .amdhsa_user_sgpr_kernarg_segment_ptr 1", "  .amdhsa_system_sgpr_workgroup_id_x 1", "  .amdhsa_float_denorm_mode_32 3", ".end_amdhsa_kernel"]
    return "\n".join(out) + "\n", g

if __name__ == "__main__":
    kw = {}
    path = "cdna_kernels/%s.s" % NAME
    for x in sys.argv[1:]:
        k, v = x.split("=")
        if k == "out": path = v
        else: kw[k] = int(v) if v.lstrip('-').isdigit() else tuple(int(t) for t in v.split(',') if t) if ',' in v else v
    txt, g = render(**kw)
    open(path, "w").write(txt)
    print("wrote", path, "lds", g.LDS, "nops/pads/tailbytes", g.info, g.sched)
```

```python
import re, subprocess, os, tempfile

LLVM = "bin"

def vr(a, n=1):
    return "v%d" % a if n == 1 else "v[%d:%d]" % (a, a + n - 1)
def sr(a, n=1):
    return "s%d" % a if n == 1 else "s[%d:%d]" % (a, a + n - 1)

_REG = re.compile(r"^(-|abs\()?([vs])(?:(\d+)|\[(\d+):(\d+)\])\)?$")
def regs(tok):
    tok = tok.strip()
    if tok == "vcc": return {"vcc"}
    if tok == "exec": return {"exec"}
    if tok == "m0": return {"m0"}
    m = _REG.match(tok)
    if not m: return set()
    if m.group(3) is not None: return {m.group(2) + m.group(3)}
    return {m.group(2) + str(i) for i in range(int(m.group(4)), int(m.group(5)) + 1)}

TRANS = ("v_exp_f32", "v_log_f32", "v_rcp_f32", "v_rsq_f32", "v_sqrt_f32", "v_sin_f32", "v_cos_f32")

class Ins:
    def __init__(self, text):
        self.text = text
        t = text.split(";")[0].strip()
        self.label = t[:-1] if t.endswith(":") else None
        self.directive = t.startswith(".") and self.label is None
        self.isins = bool(t) and self.label is None and not self.directive
        self.w = set(); self.r = set(); self.target = None
        self.mn = ""
        self.valu = self.mfma = self.trans = self.dpp = self.perm = self.rdlane = self.vmem = self.ds = self.salu = self.dot = False
        self.wide_store = set(); self.lds_dma = False; self.srcc = set(); self.states = 1
        if not self.isins: return
        parts = t.split(None, 1)
        mn = self.mn = parts[0]
        rest = parts[1] if len(parts) > 1 else ""
        ops = [o.strip() for o in rest.split(",")]
        if ops:
            lastp = ops[-1].split()
        ops = [o.split()[0] if o.split() else "" for o in ops]
        R = [regs(o) for o in ops]
        allr = lambda lst: set().union(*lst) if lst else set()
        if mn == "s_nop": self.states = int(ops[0], 0) + 1
        if mn.startswith("s_cbranch") or mn == "s_branch": self.target = ops[0]
        if mn.startswith("v_smfmac"):
            self.mfma = True; self.w = R[0]; self.srcc = R[0]; self.r = allr(R[1:])
        elif mn.startswith("v_mfma"):
            self.mfma = True; self.w = R[0]; self.srcc = R[3]; self.r = allr(R[1:3])
        elif mn.startswith("v_"):
            self.valu = True
            base = re.sub(r"_(e32|e64|dpp|sdwa)$", "", mn)
            self.trans = base in TRANS
            self.dpp = bool(re.search(r"quad_perm|row_shl|row_shr|row_ror|row_mirror|row_half_mirror|row_bcast|row_newbcast|wave_", rest))
            self.perm = base.startswith("v_permlane")
            self.rdlane = base in ("v_readlane_b32", "v_readfirstlane_b32")
            self.dot = base.startswith("v_dot"); self.ab = allr(R[1:3])
            self.w = set(R[0]); self.r = allr(R[1:])
            if self.perm: self.w |= R[1]; self.r |= R[0]
            if base in ("v_fmac_f32", "v_dot2c_f32_bf16", "v_writelane_b32") or self.dpp: self.r |= R[0]
            if base.startswith("v_cndmask") and len(ops) == 3: self.r |= {"vcc"}
            if base.startswith("v_add_co") or base.startswith("v_addc_co"): self.w |= R[1]
        elif mn.startswith("buffer_") or mn.startswith("global_"):
            self.vmem = True
            toks = rest.replace(",", " ").split()
            self.lds_dma = "lds" in toks
            if self.lds_dma: self.r = allr(R) | {"m0"}
            elif "load" in mn: self.w = R[0]; self.r = allr(R[1:])
            else:
                self.r = allr(R)
                data = R[0] if mn.startswith("buffer_") else R[1]
                if mn.endswith("x3") or mn.endswith("x4"): self.wide_store = data
        elif mn.startswith("ds_"):
            self.ds = True
            if "read" in mn or "permute" in mn or "swizzle" in mn: self.w = R[0]; self.r = allr(R[1:])
            else: self.r = allr(R)
        elif mn.startswith("s_"):
            self.salu = True
            if mn.startswith("s_cmp") or mn.startswith("s_bitcmp") or self.target or mn in ("s_nop", "s_waitcnt", "s_barrier", "s_endpgm", "s_sleep", "s_setprio"):
                self.r = allr(R)
            else:
                self.w = set(R[0]); self.r = allr(R[1:])

def isv(s): return {x for x in s if x[0] == "v" and x != "vcc"}
def iss(s): return {x for x in s if x[0] == "s" or x == "vcc"}

def need(p, c):
    n = 0
    if p.valu:
        wv = isv(p.w); ws = iss(p.w)
        if wv & c.r or (c.mfma and wv & c.srcc):
            if c.dpp or c.perm or c.mfma: n = max(n, 2)
            if c.rdlane: n = max(n, 1)
            if p.trans and c.valu and not c.trans: n = max(n, 1)
        if p.dot and (wv & (c.r | c.w)) and (c.valu or c.mfma or c.vmem or c.ds) and not (c.mn == p.mn and wv & c.r and not wv & c.ab): n = max(n, 3)
        if ws & c.r:
            if c.valu: n = max(n, 4 if c.rdlane else 2)
            if c.vmem: n = max(n, 5)
    if p.mfma:
        if c.mfma:
            if p.w & c.r: n = max(n, 8)
            if p.w & c.srcc and (p.w != c.srcc or p.mn != c.mn): n = max(n, 6)
        elif (c.valu or c.vmem or c.ds) and (p.w & (c.r | c.w)): n = max(n, 8)
        if c.valu and (p.srcc & c.w): n = max(n, 3)
    if p.salu and "m0" in p.w and c.lds_dma: n = max(n, 1)
    if p.wide_store and (p.wide_store & c.w): n = max(n, 2)
    return n

def fix_hazards(lines):
    L = [Ins(x) for x in lines]
    added = 0
    i = 0
    while i < len(L):
        c = L[i]
        if c.isins:
            srcs = {}
            for k, x in enumerate(L):
                if x.target: srcs.setdefault(x.target, []).append(k)
            deficit = 0
            stack = [(i - 1, 0)]; seen = set()
            while stack:
                k, d = stack.pop()
                while k >= 0 and d < 8:
                    if (k, d) in seen: break
                    seen.add((k, d))
                    x = L[k]
                    if x.label:
                        for s in srcs.get(x.label, []): stack.append((s, d))
                        kk = k - 1
                        while kk >= 0 and not L[kk].isins and not L[kk].label: kk -= 1
                        if kk >= 0 and L[kk].isins and L[kk].mn in ("s_branch", "s_endpgm"): break
                    elif x.isins:
                        deficit = max(deficit, need(x, c) - d)
                        d += x.states
                    k -= 1
            if deficit > 0:
                L.insert(i, Ins("s_nop %d" % (deficit - 1))); added += deficit; i += 1
        i += 1
    return [x.text for x in L], added

def sizes(lines):
    d = tempfile.mkdtemp()
    s = os.path.join(d, "a.s"); o = os.path.join(d, "a.o")
    body = [x for x in lines if not Ins(x).directive]
    open(s, "w").write('.amdgcn_target "amdgcn-amd-amdhsa--gfx950"\n.text\n' + "\n".join(body) + "\n")
    r = subprocess.run([LLVM + "/clang", "-x", "assembler", "-target", "amdgcn-amd-amdhsa", "-mcpu=gfx950", "-c", s, "-o", o], capture_output=True, text=True)
    if r.returncode: print(r.stderr[:3000]); raise SystemExit("size pass failed")
    dis = subprocess.run([LLVM + "/llvm-objdump", "-d", "--mcpu=gfx950", o], capture_output=True, text=True).stdout
    sz = [4 * len(m.group(1).split()) for m in re.finditer(r"//\s+[0-9A-F]{12}:((?: [0-9A-F]{8})+)", dis)]
    out = []; k = 0
    for x in lines:
        if Ins(x).isins: out.append(sz[k]); k += 1
        else: out.append(None)
    assert k == len(sz), (k, len(sz))
    return out

def layout(lines, align_re, pad=None):
    sz = sizes(lines); out = []; pos = 0; prev = ""; on = False; nxt = 0; n = 0; used = set(Ins(x).target for x in lines)
    for x, b in zip(lines, sz):
        t = x.strip()
        if t.startswith(".p2align"):
            k = 1 << int(t.split()[1]); pos = -(-pos // k) * k
        if pad and t == pad[1] + ":": on = False
        if t.endswith(":") and align_re is not None and t[:-1] in used and (prev in ("s_branch", "s_endpgm") or re.match(align_re, t)):
            if on and prev in ("s_branch", "s_endpgm") and -(-pos // 32) * 32 > nxt >= pos - 60 and pos % 32:
                while pos < nxt: out.append("s_nop 0"); pos += 4
                out.append("L_pad%d:" % n); out.append("s_branch L_pad%d" % (n + pad[4])); n += 1; pos += 4; nxt += pad[3]
            if pos % 32: out.append(".p2align 5"); pos = -(-pos // 32) * 32
            prev = ""
        if b is not None:
            if on and pos >= nxt:
                out.append("L_pad%d:" % n); out.append("s_cbranch_execz L_pad%d" % (n + pad[4])); n += 1; pos += 4; nxt += pad[3]
            pos += b; prev = t.split()[0]
        out.append(x)
        if pad and t == pad[0] + ":": on = True; nxt = pos
    fix = lambda y: re.sub(r"L_pad(\d+)$", lambda m: pad[2] if int(m.group(1)) >= n else m.group(0), y) if pad and y.startswith("s_") else y
    return [fix(y) for y in out], n, pos
```

```python
import sys, math, struct
from asmlib import *

NAME = "interleave_layers__sliding_block_cached__dense_activation_gelu__decode"

def f32(x): return "0x%08x" % struct.unpack("<I", struct.pack("<f", x))[0]

DEF = dict(
    W=24, Wb=30, Wr=0, burst_st=18, prio=3, ilv=1,
    qpos=(1, 2),
    wl0=3, nwl=24,
    go_s=0, race_at=2, go_i=3, arr_s=6, arr_i=8, arr_c=10, q_c=13, vd_i=17, vd_c=19, warm=1, preread=19, early3=19,
    dc=1, dw=1, dh=1, dg=1, gs=2, gd=(0, 0, 0, 0), relay=(1,), dual=1, shd=(0, 1, 0, 0), stb=2, ahead=1, qahead=1, race=1, budget=0x10000,
    lpre=2, mgap=1, split=0, pads=1, padstep=512, npad=4, l2warm=1, align='pr|comb_.b|se|p1|finb',
    wqf='nt', wlf='nt', qf='sc1 nt', pref='sc1 nt',
    stamps=None, force_global=0, strip=0, upto_ev=99, noclr=0, pol=0, diag_hold=0, diag_at='start', diag_a='', diag_b='', diag_c='')

LOC = 120832
CLR = 2208
OB = 1664
L_P1 = 26624
L_O, L_H, L_Q1 = (0, L_P1), (8 * OB, L_P1 + 8 * OB), L_P1 + 8 * OB + 6144
L_CS1, L_ST1, L_STH, L_CAN = 19456, 25600, 25856, 26112
L_Q0 = 32 * CLR; Q0S = 12416
LOC_B = 8 * LOC
XP = 0; XPS = 65536 + 512
PRB = 262144; NTC = PRB + 4096
ARR = XP + PRB + 32768
LOC0 = ARR + 8 * 512
WS_BYTES = LOC0 + 16 * LOC
STAMP_OFF = 3 << 20
P_X, P_K, P_V, P_WQ, P_WO, P_W1, P_B1, P_W2, P_B2, P_OUT, P_DBG, P_WS = 4, 6, 8, 10, 12, 16, 18, 20, 22, 24, 26, 28
sW, sX = 30, 31
R_K, R_V, R_WS, R_WQ, R_WL = 32, 36, 40, 44, 48
sC, sHL, sJ, sFLAG, sBUD, sT0, sT1, sT2, sT3, sRING, sLOC, sXCC = 52, 53, 54, 55, 56, 57, 58, 59, 60, 61, 62, 63
sF = 64
sARR, sH, sM1 = 72, 73, 74
sXPW, sXPR = 6, 7
sXPB = 8
sST = 76
sWA, sWB, sAI = 14, 15, 3
LOADER, CTRL = 6, 5
vL, vIDX, vX0, vX1, vB, vCS = 0, 1, 2, 3, 4, 6
KB, VB = 64, 160
ONES = "0x3f803f80"

class G:
    def __init__(self, **kw):
        assert set(kw) <= set(DEF), set(kw) - set(DEF)
        self.o = dict(DEF); self.o.update(kw)
        self.L = []; self.ool = []; self.cold = []; self.n = 0
        R = self.R = 4
        self.LD_WQ = 0; self.LD_WL = 30720; self.LD_W2 = self.LD_WL + 49152
        self.LD_RING = self.LD_W2 + 12288; self.LD_PP = self.LD_RING + R * 16384
        self.LD_ML = self.LD_PP + 2048; self.LD_HX = self.LD_ML + 128; self.LD_PB = self.LD_PP + 1024; self.LD_FLAG = self.LD_HX + 768 + 128; self.LD_XB = self.LD_FLAG + 64; self.LDS = self.LD_XB + 384
        self.LD_OC = self.LD_RING; self.LD_QS = self.LD_RING + 32768
        assert self.LDS <= 163840 and R == 4
    def __call__(self, s): self.L.extend(s.split("\n"))
    def lab(self, p="L"):
        self.n += 1; return "%s_%d" % (p, self.n)
    def stamp(self, name):
        if self.o["diag_hold"] and name == self.o["diag_at"]: self("s_memrealtime s[100:101]")
        if name == self.o["diag_a"]: self("s_memrealtime s[92:93]")
        if name == self.o["diag_b"]: self("s_memrealtime s[94:95]")
        if name == self.o["diag_c"]: self("s_memrealtime s[90:91]")
        st = self.o["stamps"]
        if st and name in st:
            i = st.index(name); self("s_memrealtime %s" % sr(sST + 2 * i, 2))
        if st and "c_" + name in st:
            i = st.index("c_" + name); self("s_memtime %s" % sr(sST + 2 * i, 2))
    def lanefn(self, dst, terms, tmp, s=None, const=0, src=vL):
        a = self; first = True
        for sh, nb, mul in terms:
            t = dst if first else tmp
            p2 = mul & (mul - 1) == 0
            if nb >= 6 - sh and src == vL:
                if sh: a("v_lshrrev_b32 v%d, %d, v%d" % (t, sh, src)); x = t
                else: x = src
            elif sh == 0: a("v_and_b32 v%d, %d, v%d" % (t, (1 << nb) - 1, src)); x = t
            else: a("v_bfe_u32 v%d, v%d, %d, %d" % (t, src, sh, nb)); x = t
            if first:
                if p2:
                    if mul > 1 or x != dst: a("v_lshlrev_b32 v%d, %d, v%d" % (dst, mul.bit_length() - 1, x))
                else: a("v_mul_u32_u24 v%d, %d, v%d" % (dst, mul, x))
            elif p2: a("v_lshl_add_u32 v%d, v%d, %d, v%d" % (dst, x, mul.bit_length() - 1, dst))
            else:
                a("v_mul_u32_u24 v%d, %d, v%d" % (tmp, mul, x)); a("v_add_u32 v%d, v%d, v%d" % (dst, tmp, dst))
            first = False
        if s is not None: a("v_add_u32 v%d, s%d, v%d" % (dst, s, dst))
        if const: a("v_add_u32 v%d, %d, v%d" % (dst, const, dst))
    def srd(self, r, p, nbytes, off=None):
        a = self
        if off is None: a("s_mov_b32 s%d, s%d" % (r, p)); a("s_mov_b32 s%d, s%d" % (r + 1, p + 1))
        else: a("s_add_u32 s%d, s%d, s%d" % (r, p, off)); a("s_addc_u32 s%d, s%d, 0" % (r + 1, p + 1))
        a("s_mov_b32 s%d, %s" % (r + 2, nbytes)); a("s_mov_b32 s%d, 0x20000" % (r + 3))
    def skip_unless(self, cmp, a_, b_):
        l = self.lab("L_skip"); self("s_cmp_%s_u32 %s, %s" % (cmp, a_, b_)); self("s_cbranch_scc0 " + l); return l
    def exec_(self, m):
        if m == -1: self("s_mov_b64 exec, -1")
        elif m < (1 << 31): self("s_mov_b64 exec, 0x%x" % m)
        else: self("s_mov_b32 exec_lo, 0x%x" % (m & 0xffffffff)); self("s_mov_b32 exec_hi, 0x%x" % (m >> 32))
    def flag_cmp(self): self("s_cmp_eq_u32 s%d, 0" % sFLAG)
    def oob(self, dst, cmp, n, tmp):
        a = self; a("v_mov_b32 v%d, 0x7f000000" % tmp); a("v_cmp_%s_u32 vcc, %d, v%d" % (cmp, n, vL)); a("v_cndmask_b32 v%d, v%d, v%d, vcc" % (dst, dst, tmp))
    def aside(self, fn):
        keep = self.L; self.L = []; fn(); blk = self.L; self.L = keep; self.ool += blk
    def local_store(self, ins, pre=False):
        a = self; l = a.lab("L_gs"); b = a.lab("L_gb")
        if not pre: a.flag_cmp()
        a("s_cbranch_scc1 " + l); a(ins); a(b + ":")
        a.ool += [l + ":", ins + " sc1", "s_branch " + b]
    def budget(self):
        return ["s_sub_u32 s%d, s%d, 1" % (sBUD, sBUD), "s_cbranch_scc1 L_done"]
    def check(self, rs, t):
        a = self; rs = list(rs)
        if len(rs) == 1: a("v_cmp_eq_u32 vcc, -1, v%d" % rs[0]); return
        if len(rs) == 2: a("v_max_u32 v%d, v%d, v%d" % (t, rs[0], rs[1])); rs = []
        else: a("v_max3_u32 v%d, v%d, v%d, v%d" % (t, rs[0], rs[1], rs[2])); rs = rs[3:]
        while len(rs) >= 2: a("v_max3_u32 v%d, v%d, v%d, v%d" % (t, t, rs[0], rs[1])); rs = rs[2:]
        if rs: a("v_max_u32 v%d, v%d, v%d" % (t, t, rs[0]))
        a("v_cmp_eq_u32 vcc, -1, v%d" % t)
    def poll(self, loads, rs, t, shadow=None, depth=1):
        a = self; w = a.lab("L_pw"); r = a.lab("L_pr"); n = len(loads)
        for d in range(depth - 1):
            for x in loads: a(x)
            if d == 0 and shadow: shadow()
            else: a("s_sleep %d" % (2 if depth == 2 else 1))
        if depth == 1 and shadow:
            for x in loads: a(x)
            shadow(); a("s_branch " + w)
        a(r + ":")
        for x in loads: a(x)
        for x in a.budget(): a(x)
        a(w + ":")
        a("s_waitcnt vmcnt(%d)" % (n * (depth - 1)))
        a.check(rs, t)
        a("s_cbranch_vccnz " + r)

    def dma_loop(self, n, lds, R, vo, so, step, flags, pace):
        a = self; k = len(so); l = a.lab("L_dma")
        for i, x in enumerate(so):
            if isinstance(x, int): a("s_mov_b32 s%d, %d" % (sT0 + i, x - 1024 * i))
            else: x(sT0 + i)
        a("s_mov_b32 m0, %d" % lds)
        a(l + ":")
        if pace: a("s_waitcnt vmcnt(%d)" % (pace - k // 2 - 1))
        for i in range(k):
            a("buffer_load_dwordx4 v%d, %s, s%d offen offset:%d %s lds" % (vo[i], sr(R, 4), sT0 + i, 1024 * i, flags))
        for i in range(k): a("s_add_u32 s%d, s%d, %s" % (sT0 + i, sT0 + i, step))
        a("s_add_u32 m0, m0, %d" % (1024 * k))
        a("s_cmp_lg_u32 m0, %d" % (lds + 1024 * k * n)); a("s_cbranch_scc1 " + l)
    def block(self, b, pace, part=(0, 8)):
        a = self; o = a.o
        if isinstance(b, int):
            seg = b % 3
            if b < 12: gA = b // 3; runs = [4 * (gA // 2) + 2 * (gA % 2) + i for i in (0, 1)]; vo = (5, 6); R = R_K
            else: u = (b - 12) // 3; runs = [4 * (u // 2) + 2 * i + u % 2 for i in (0, 1)]; vo = (7, 7); R = R_V
            st = 24576 if o["ilv"] else 3072
            a.dma_loop(part[1], a.LD_RING + (b % a.R) * 16384 + part[0] * 2048, R, vo, [r * 196608 + seg * 128 + part[0] * st for r in runs], str(st), "nt", pace)
        elif b[0] == "q":
            n = int(b[1])
            a.dma_loop(5, a.LD_WQ + n * 15360, R_WQ, (vX0,) * 3, [n * 5 * 98304 + 128 * i + 2048 for i in range(3)], "98304", o["wqf"], pace)
        elif b[0] == "w":
            n = int(b[1:])
            a("s_mul_i32 s%d, s%d, %d" % (sT0, sWA, n // 2))
            if n % 2: a("s_add_u32 s%d, s%d, s%d" % (sT0, sT0, sWB))
            a("s_mov_b32 m0, %d" % (a.LD_WL + (n & ~1) * 1024))
            a("buffer_load_dwordx4 v%d, %s, s%d offen offset:%d %s lds" % (vX1, sr(R_WL, 4), sT0, 1024 * (n % 2), o["wlf"]))
        else:
            n0 = o["nwl"] // 2; h = (24 - n0 + 1) // 2; n, cnt = (n0, h) if b == "r0" else (n0 + h, 24 - n0 - h)
            pace = o["Wr"] or None
            f0 = lambda d: a("s_mul_i32 s%d, s%d, %d" % (d, sWA, n))
            f1 = lambda d: a("s_add_u32 s%d, s%d, s%d" % (d, sT0, sWB))
            a.dma_loop(cnt, a.LD_WL + n * 2048, R_WL, (vX1, vX1), [f0, f1], "s%d" % sWA, o["wlf"], pace)
    def reads(self, s):
        a = self; seg = s % 3; slot = (s % a.R) * 16384
        if s < 12:
            d = KB + 24 * (s // 3) + 8 * seg
            a("ds_read_b128 %s, v8 offset:%d" % (vr(d, 4), slot)); a("ds_read_b128 %s, v9 offset:%d" % (vr(d + 4, 4), slot))
        else:
            u = (s - 12) // 3
            for tt in range(4):
                a("ds_read_b64_tr_b16 %s, v%d offset:%d" % (vr(VB + 8 * (4 * seg + tt) + 2 * u, 2), 8 + tt, slot))
    def plan(self):
        o = self.o; order = []
        qp = list(o["qpos"]); nwl = o["nwl"]; assert nwl % 2 == 0
        per = -(-nwl // (23 - o["wl0"])) if nwl > 0 else 1
        for s in range(-1, 24):
            if s >= 0: order.append(s)
            order += ["q%d" % i for i, p in enumerate(qp) if p == s] + ["w%d" % i for i in range(nwl) if o["wl0"] + i // per == s]
        if 0 <= nwl < 46: order += ["r0", "r1"]
        h = (24 - nwl // 2 + 1) // 2
        size = lambda b: 16 if isinstance(b, int) else {"q": 15, "w": 1, "r": 2 * h if b == "r0" else 48 - nwl - 2 * h}[b[0]]
        upto = []; k = 0
        for s in range(24):
            p = order.index(s); k = max(k, p + 1)
            while k < len(order) and sum(map(size, order[p + 1:k])) < o["Wb"]:
                if isinstance(order[k], int) and order[k] - self.R + 1 > s - 1 and order[k] >= self.R: break
                k += 1
            upto.append(k)
        wait = [sum(map(size, order[order.index(s) + 1:upto[s]])) for s in range(24)]
        return order, upto, wait

    def gather(self, ph, pre=None, setup=None):
        a = self; w = a.lab("L_gw"); r = a.lab("L_gr"); ok = a.lab("L_gk")
        def prep():
            for n in range(4): a("s_add_u32 s%d, s%d, %d" % (sT0 + n, sXPR, ph * XPS + n * 16384))
            a.zero(36, 40)
            for i in range(4): a("v_mov_b32_dpp v%d, v%d quad_perm:[0,1,2,3] row_mask:0x%x bank_mask:0xf" % (36 + i, vX0 + i % 2, 3 if i < 2 else 12))
        if pre and a.o["shd"][ph]: pre(lambda: (setup() if setup else None, prep()))
        else:
            if setup: setup()
            prep()
            if pre: pre(None)
        d = a.o["dg"] if pre else 1; k = 4 * (d - 1)
        def loads():
            for n in range(4): a("buffer_load_dwordx4 %s, v5, %s, s%d offen sc1" % (vr(12 + 4 * n, 4), sr(R_WS, 4), sT0 + n))
        def sums(waits):
            if waits: a("s_waitcnt vmcnt(%d)" % (k + 3))
            a("v_pk_add_f32 v[28:29], v[12:13], v[36:37]"); a("v_pk_add_f32 v[30:31], v[14:15], v[38:39]")
            if waits: a("s_waitcnt vmcnt(%d)" % (k + 2))
            a("v_pk_add_f32 v[28:29], v[28:29], v[16:17]"); a("v_pk_add_f32 v[30:31], v[30:31], v[18:19]")
            if waits: a("s_waitcnt vmcnt(%d)" % (k + 1))
            a("v_pk_add_f32 v[28:29], v[28:29], v[20:21]"); a("v_pk_add_f32 v[30:31], v[30:31], v[22:23]")
            if waits: a("s_waitcnt vmcnt(%d)" % k)
            a("v_pk_add_f32 v[28:29], v[28:29], v[24:25]"); a("v_pk_add_f32 v[30:31], v[30:31], v[26:27]")
            if waits: a("v_pk_add_f32 v[32:33], v[28:29], v[30:31]"); a("v_cmp_u_f32 vcc, v32, v33")
            a("v_permlane32_swap_b32 v28, v30"); a("v_permlane32_swap_b32 v29, v31")
        for _ in range(d - 1): loads(); a("s_sleep %d" % a.o["gs"])
        a(w + ":")
        loads()
        for x in a.budget(): a(x)
        a("s_and_b32 s%d, s%d, 31" % (sM1, sBUD))
        sums(True)
        a("s_cbranch_vccnz " + r)
        a(ok + ":")
        a("v_pk_add_f32 v[28:29], v[28:29], v[30:31]")
        a("v_cvt_pk_bf16_f32 v28, v28, v29")
        def slow():
            a(r + ":"); a("s_cbranch_scc1 " + w)
            a("s_waitcnt vmcnt(0)"); a.check(range(12, 28), 32); a("s_cbranch_vccnz " + w); sums(False); a("s_branch " + ok)
        a.aside(slow)
    def preread(self, part, fl, d):
        a = self; lo, hi = ((0, L_P1), (L_P1, L_Q1), (L_Q1, L_Q1 + 24576))[part]
        a("s_sub_u32 s%d, s%d, 20" % (sT0, sAI)); a("s_lshl_b32 s%d, s%d, 6" % (sT0, sT0)); a("v_add_u32 v%d, s%d, v%d" % (d, sT0, vL))
        a("v_min_u32 v%d, %d, v%d" % (d, (hi - lo) // 128 - 1, d)); a("v_lshlrev_b32 v%d, 7, v%d" % (d, d)); a("s_add_u32 s%d, s%d, %d" % (sT0, sLOC, lo))
        a("buffer_load_dword v%d, v%d, %s, s%d offen %s" % (d, d, sr(R_WS, 4), sT0, fl))
    def unpack_x(self):
        self("v_lshlrev_b32 v%d, 16, v28" % vX0); self("v_and_b32 v%d, 0xffff0000, v28" % vX1)
    def add_b2(self):
        a = self
        a("v_lshlrev_b32 v60, 16, v%d" % vB); a("v_add_f32 v%d, v%d, v60" % (vX0, vX0))
        a("v_and_b32 v60, 0xffff0000, v%d" % vB); a("v_add_f32 v%d, v%d, v60" % (vX1, vX1))
    def q_base(self, l, dst, st, kind="q"):
        a = self
        if kind == "h":
            a("s_add_u32 s%d, s%d, %d" % (dst, sLOC, L_H[l])); a("s_add_u32 s%d, s%d, %d" % (st, sLOC, L_STH + 128 * l))
        elif l == 0:
            a("s_mul_i32 s%d, s%d, %d" % (dst, sHL, Q0S)); a("s_add_u32 s%d, s%d, s%d" % (dst, dst, sLOC)); a("s_add_u32 s%d, s%d, %d" % (dst, dst, L_Q0))
            a("s_add_u32 s%d, s%d, 12288" % (st, dst))
        else:
            a("s_mul_i32 s%d, s%d, 6144" % (dst, sHL)); a("s_add_u32 s%d, s%d, s%d" % (dst, dst, sLOC)); a("s_add_u32 s%d, s%d, %d" % (dst, dst, L_Q1))
            a("s_lshl_b32 s%d, s%d, 6" % (st, sHL)); a("s_add_u32 s%d, s%d, s%d" % (st, st, sLOC)); a("s_add_u32 s%d, s%d, %d" % (st, st, L_ST1))
    def slice_addr(self, dst, unit, hi):
        a = self
        a("v_and_b32 v60, 31, v%d" % vL); a("v_min_u32 v60, 19, v60"); a("s_mul_i32 s%d, s%d, %d" % (sT0, sJ, 20 * unit))
        a.lanefn(dst, [(5, 1, hi)], 61, s=sT0); a("v_lshl_add_u32 v%d, v60, %d, v%d" % (dst, unit.bit_length() - 1, dst))
    def p1_slice_pre(self, l, kind="q"):
        a = self
        a("v_and_b32 v60, 31, v%d" % vL); a("v_cmp_gt_u32 %s, 20, v60" % sr(sF, 2)); a("v_min_u32 v60, 19, v60")
        a.lanefn(35, [(5, 1, 4)], 61, const=a.LD_XB); a("v_lshl_add_u32 v35, v60, 3, v35")
        a.q_base(l, sF + 2, sF + 3, kind)
        a("s_lshl_b32 s%d, s%d, 3" % (sT0, sJ)); a.lanefn(34, [(5, 1, 4)], 61, s=sT0)
        a("v_and_b32 v60, 31, v%d" % vL); a("v_mov_b32 v61, 0x7f000000"); a("v_cmp_ne_u32 vcc, 31, v60"); a("v_cndmask_b32 v34, v34, v61, vcc")
        a("v_mov_b32 v61, %s" % ONES)
    def p1_slice_write(self):
        self("ds_write_b32 v35, v28"); self("s_waitcnt lgkmcnt(0)")
    def p1_slice_stats(self, bar=0):
        a = self
        a("v_cndmask_b32 v29, 0, v28, %s" % sr(sF, 2))
        a("v_dot2_f32_bf16 v33, v29, v61, 0"); a("v_dot2_f32_bf16 v32, v29, v29, 0")
        a.unpack_x(); a.flag_cmp()
        if bar == 1: a("s_waitcnt lgkmcnt(0)"); a("s_barrier")
        a("v_permlane32_swap_b32 v33, v32"); a("v_add_f32 v33, v33, v32")
        if bar == 2: a("s_waitcnt lgkmcnt(0)"); a("s_barrier")
        for k in (8, 4, 2, 1): a("v_add_f32_dpp v33, v33, v33 row_ror:%d row_mask:0xf bank_mask:0xf" % k)
        a("v_add_f32_dpp v33, v33, v33 row_bcast:15 row_mask:0xa bank_mask:0xf")
        a.local_store("buffer_store_dword v33, v34, %s, s%d offen" % (sr(R_WS, 4), sF + 3), pre=True)
        a("s_waitcnt vmcnt(1)")
    def p1_prefetch(self, l, kind, ar):
        a = self
        base, seg, rb = (a.LD_WQ, 1024, (128, 256, 512, 3072, 6144, 12288, 24576)) if kind == "q" else (a.LD_WL, 128, (384, 1024, 2048, 4096, 8192, 16384, 32768))
        a("s_lshr_b32 s%d, s%d, 1" % (sT0, sW)); a("s_mul_i32 s%d, s%d, %d" % (sT0, sT0, seg)); a("s_and_b32 s%d, s%d, 1" % (sT1, sW))
        a("s_lshl_b32 s%d, s%d, 6" % (sT1, sT1)); a("s_add_u32 s%d, s%d, s%d" % (sT0, sT0, sT1))
        a.lanefn(18, [(5, 1, rb[4]), (3, 1, rb[3]), (4, 1, rb[2]), (2, 1, rb[0]), (0, 2, 8)], 60, s=sT0, const=base)
        a.lanefn(19, [(3, 1, rb[3]), (4, 1, rb[2]), (2, 1, rb[0]), (0, 2, 8), (5, 1, 32)], 60, s=sT0, const=base + rb[6])
        for t in range(2):
            for u in range(4): a("ds_read_b64_tr_b16 %s, v18 offset:%d" % (vr(28 + 8 * t + 2 * u, 2), (u // 2) * rb[5] + (u % 2) * rb[1] + 32 * t))
        for u in range(2): a("ds_read_b64_tr_b16 %s, v19 offset:%d" % (vr(24 + 2 * u, 2), u * rb[1]))
        a.lanefn(49, [(4, 2, 32), (1, 1, 16), (3, 1, 192)], 60, const=a.LD_XB); a.lanefn(50, [(1, 1, 16), (3, 1, 192)], 60, const=a.LD_XB + 128)
        a("v_mov_b32 v60, %d" % (a.LD_XB + 160)); a("v_and_b32 v51, 5, v%d" % vL)
        a("v_cmp_eq_u32 vcc, 0, v51"); a("v_cndmask_b32 v%d, v60, v49, vcc" % ar); a("v_cmp_eq_u32 vcc, 4, v51"); a("v_cndmask_b32 v%d, v60, v49, vcc" % (ar + 1))
        a("v_lshrrev_b32 v49, 2, v%d" % vL); a("v_and_b32 v49, 12, v49"); a("v_cmp_eq_u32 vcc, v49, v51"); a("v_cndmask_b32 v48, v60, v50, vcc")
        a.zero(44, 48)
        a("s_lshr_b32 s%d, s%d, 1" % (sT0, sW)); a("s_lshl_b32 s%d, s%d, 11" % (sT0, sT0)); a("s_lshl_b32 s%d, s%d, 1" % (sT1, sT1)); a("s_add_u32 s%d, s%d, s%d" % (sT0, sT0, sT1))
        a("s_lshl_b32 s%d, s%d, 8" % (sT1, sJ)); a("s_add_u32 s%d, s%d, s%d" % (sT0, sT0, sT1))
        a.lanefn(ar + 2, [(0, 5, 4), (5, 1, 6144 if (l, kind) == (0, "q") else 1 << 30)], 60, s=sT0)
        if (l, kind) == (0, "h"): a("v_xor_b32 v49, 0x40000000, v%d" % (ar + 2))
        a.q_base(l, sT2, sT3, kind)
    def p1_mat(self, l, kind, ar):
        a = self
        a("ds_read_b128 v[12:15], v%d" % ar); a("ds_read_b128 v[16:19], v%d" % (ar + 1)); a("ds_read_b128 v[20:23], v48")
        for t in range(3):
            a("s_waitcnt lgkmcnt(%d)" % (2 - t)); a("v_smfmac_f32_16x16x64_bf16 v[44:47], %s, %s, v%d" % (vr(12 + 4 * t, 4), vr((28, 36, 24)[t], 8), vIDX))
        if kind == "c": a("s_add_u32 s%d, s%d, %d" % (sT3, sLOC, L_CS1))
        a.flag_cmp()
        a("v_add_f32 v12, v44, v46")
        a.local_store("buffer_store_dword v12, v%d, %s, s%d offen" % (49 if kind == "c" else ar + 2, sr(R_WS, 4), sT3 if kind == "c" else sT2), pre=True)
        if kind == "c": a.zero(44, 48)

    def zero(self, lo, hi):
        for r in range(lo, hi, 2): self("v_mov_b64 v[%d:%d], 0" % (r, r + 1))
    POS = [(4, 2, 32), (1, 1, 16), (2, 2, 4), (0, 1, 2)]
    POSU = [(2, 2, 32), (5, 1, 16), (0, 2, 4), (4, 1, 2)]
    def two(self, src, ad, so, fl="sc1", off=0):
        return ["buffer_load_dwordx4 %s, v%d, %s, s%d offen offset:%d %s" % (vr(src + 4 * n, 4), ad, sr(R_WS, 4), so, off + 1024 * n, fl) for n in range(2)]
    def sum8(self, src, t):
        return ["v_pk_add_f32 %s, %s, %s" % (vr(t, 2), vr(src, 2), vr(src + 4, 2)), "v_pk_add_f32 %s, %s, %s" % (vr(t + 2, 2), vr(src + 2, 2), vr(src + 6, 2)),
                "v_permlane32_swap_b32 v%d, v%d" % (t, t + 2), "v_permlane32_swap_b32 v%d, v%d" % (t + 1, t + 3),
                "v_pk_add_f32 %s, %s, %s" % (vr(t, 2), vr(t, 2), vr(t + 2, 2)), "v_permlane16_swap_b32 v%d, v%d" % (t, t + 1), "v_add_f32 v%d, v%d, v%d" % (t, t, t + 1)]
    def centre(self, st, m, cs, u, k2=60, src=12):
        a = self; sm = a.sum8(src, 20)
        red = lambda k, s0: ["v_add_f32_dpp v%d, v%d, v%d row_ror:%d row_mask:0xf bank_mask:0xf" % (m + i, s0 + i, s0 + i, k) for i in (0, 1)]
        for x in red(4, st) + sm[:2] + red(2, m) + sm[2:4] + red(1, m) + sm[4:5]: a(x)
        a("v_mul_f32 v%d, v%d, v60" % (m, m)); a("v_fma_f32 v%d, v%d, v%d, v61" % (m + 1, m + 1, k2)); a(sm[5])
        a("v_fma_f32 v%d, -v%d, v%d, v%d" % (m + 1, m, m, m + 1)); a(sm[6]); a("v_max_f32 v%d, v%d, v61" % (m + 1, m + 1)); a("v_mul_f32 v%d, v%d, v%d" % (u, cs, m))
        a("v_rsq_f32 v%d, v%d" % (m + 1, m + 1)); a("v_cmp_u_f32 vcc, v20, v20"); a("v_sub_f32 v20, v20, v%d" % u)
    QC = 192 ** -0.5 * math.log2(math.e)
    def consts(self, k2=None):
        c = self.QC if k2 else 1.0
        self("v_mov_b32 v60, %s" % f32(1.0 / 640 / c)); self("v_mov_b32 v61, %s" % f32(1e-5 / c / c))
        if k2: self("v_mov_b32 v%d, %s" % (k2, f32(1.0 / 640 / c / c)))
    def fetch(self, ad, so, sad, sso, st, m, cs, u, shadow, depth, ahead, tag, k2=60, src=12):
        a = self; two = a.two(src, ad, so); sm = a.sum8(src, 20)
        a.poll(["buffer_load_dwordx2 %s, v%d, %s, s%d offen sc1" % (vr(st, 2), sad, sr(R_WS, 4), sso)] + two, [st, st + 1], 20, shadow=shadow, depth=depth)
        r = a.lab("L_hr"); ok = a.lab("L_hk"); a.stamp(tag)
        if ahead:
            for x in two: a(x)
        a.centre(st, m, cs, u, k2, src); a("s_cbranch_vccnz " + r)
        a(ok + ":")
        def slow():
            ex = a.lab("L_hx")
            a(r + ":")
            for x in two + a.budget(): a(x)
            a("s_and_b32 s%d, s%d, 31" % (sF, sBUD)); a("s_cbranch_scc0 " + ex); a("s_waitcnt vmcnt(%d)" % (2 if ahead else 0))
            for x in sm: a(x)
            a("v_cmp_u_f32 vcc, v20, v20"); a("v_sub_f32 v20, v20, v%d" % u); a("s_cbranch_vccnz " + r); a("s_branch " + ok)
            a(ex + ":"); a("s_waitcnt vmcnt(0)"); a.check(range(src, src + 8), 20); a("s_cbranch_vccnz " + r)
            for x in sm: a(x)
            a("v_sub_f32 v20, v20, v%d" % u); a("s_branch " + ok)
        a.aside(slow)
    def q_out(self, m, ad):
        a = self
        a("v_mul_f32 v20, v20, v%d" % (m + 1)); a("v_cvt_pk_bf16_f32 v20, v20, v20"); a("ds_write_b16 v%d, v20" % ad)
    def qk(self, drain=False):
        a = self
        for g in range(4):
            for k in range(3):
                a("v_smfmac_f32_16x16x64_bf16 %s, %s, %s, v%d" % (vr(24 + 4 * g, 4), vr(12 + 4 * k, 4), vr(KB + 24 * g + 8 * k, 8), vIDX))
        a.stamp("qk_iss")
        sel = lambda g: a("v_mov_b32_dpp v24, v%d quad_perm:[0,1,2,3] row_mask:0x%x bank_mask:0xf" % (24 + 4 * g, 1 << g))
        for g in range(3):
            a("v_add_f32 v%d, v%d, v%d" % (24 + 4 * g, 24 + 4 * g, 26 + 4 * g))
            if drain and g == 0: a("s_waitcnt vmcnt(0)")
        a("v_max3_f32 v61, v24, v28, v32"); sel(1)
        a("v_add_f32 v36, v36, v38"); a("v_max_f32 v61, v61, v36"); sel(2)
        for k in (8, 4, 2, 1):
            a("v_max_f32_dpp v61, v61, v61 row_ror:%d row_mask:0xf bank_mask:0xf" % k)
            if k == 8: a("s_nop 0"); sel(3)
    def att_prep(self, l):
        a = self
        a("s_lshl_b32 s%d, s%d, 7" % (sT0, sW)); a("s_add_u32 s%d, s%d, %d" % (sT0, sT0, a.LD_PB))
        a.lanefn(58, a.POS, 60, s=sT0)
        a.lanefn(61, [(4, 2, 32), (1, 1, 16)], 60, s=sT0); a.lanefn(62, [(2, 2, 2), (0, 1, 1)], 60); a("v_mov_b32 v60, %d" % (a.LD_XB + 160))
        for v in range(6):
            a("v_cmp_eq_u32 vcc, %d, v62" % v); a("v_cndmask_b32 v%d, v60, v61, vcc" % (52 + v))
        a("s_lshl_b32 s%d, s%d, 2" % (sT1, sW)); a("s_add_u32 s%d, s%d, %d" % (sT1, sT1, a.LD_ML + 64 * l)); a("v_mov_b32 v60, s%d" % sT1)
        a.lanefn(59, [(0, 6, 4)], 61, const=a.LD_PP + 512); a("v_cmp_eq_u32 vcc, 63, v%d" % vL); a("v_cndmask_b32 v59, v59, v60, vcc")
        a.lanefn(62, [(0, 3, 4)], 61, const=a.LD_ML + 64 * l)
        a("s_lshl_b32 s%d, s%d, 11" % (sT0, sW)); a.lanefn(63, [(0, 6, 16)], 61, s=sT0, const=a.LD_OC)
    def softmax(self):
        a = self
        a("v_sub_f32 v36, v24, v61"); a("ds_write_b32 v59, v61"); a("v_exp_f32 v36, v36")
        a.stamp("mx")
        a("v_cvt_pk_bf16_f32 v39, v36, v36"); a("ds_write_b16 v58, v39")
        for v in range(6): a("ds_read_b128 %s, v%d" % (vr(12 + 4 * v, 4), 52 + v))
        return ["v_add_f32_dpp v38, v36, v36 row_ror:8 row_mask:0xf bank_mask:0xf"] + ["v_add_f32_dpp v38, v38, v38 %s bank_mask:0xf" % k for k in
                ("row_ror:4 row_mask:0xf", "row_ror:2 row_mask:0xf", "row_ror:1 row_mask:0xf", "row_bcast:15 row_mask:0xa", "row_bcast:31 row_mask:0xc")]
    def pv(self, T):
        self("v_smfmac_f32_16x16x64_bf16 %s, %s, %s, v%d" % (vr(40 + 4 * (T // 6), 4), vr(12 + 4 * (T % 6), 4), vr(VB + 8 * T, 8), vIDX))
    def g_ops(self):
        return ["v_max_f32_dpp v37, v36, v36 row_ror:4 row_mask:0xf bank_mask:0xf", "v_max_f32_dpp v37, v37, v37 row_ror:2 row_mask:0xf bank_mask:0xf",
                "v_max_f32_dpp v37, v37, v37 row_ror:1 row_mask:0xf bank_mask:0xf", "v_sub_f32 v39, v61, v37", "v_exp_f32 v39, v39"]
    def l_write(self):
        return ["v_mul_f32 v38, v38, v39", "ds_write_b32 v63, v38 offset:1024"]
    def pv_end(self):
        a = self
        a("v_pk_add_f32 v[40:41], v[40:41], v[42:43]"); a("v_pk_add_f32 v[42:43], v[44:45], v[46:47]")
        for r in (40, 42): a("v_pk_mul_f32 %s, %s, v[38:39] op_sel:[0,1] op_sel_hi:[1,1]" % (vr(r, 2), vr(r, 2)))
        a("ds_write_b128 v63, v[40:43]")
    def m_publish(self, l):
        a = self
        a("s_mov_b32 s%d, %d" % (sT1, L_O[l]))
        a.local_store("buffer_store_dword v37, v4, %s, s%d offen" % (sr(R_WS, 4), sT1))
    def combine_addr(self):
        a = self
        a("s_lshl_b32 s%d, s%d, 3" % (sT0, sW)); a.lanefn(2, [(0, 6, 16)], 61, s=sT0, const=a.LD_OC)
        a("v_mov_b32 v60, %d" % (a.LD_OC + 1024 + 1008)); a("v_cmp_le_u32 vcc, 48, v%d" % vL); a("v_cndmask_b32 v2, v2, v60, vcc")
        a("s_lshr_b32 s%d, s%d, 1" % (sT0, sJ)); a("s_lshl_b32 s%d, s%d, 2" % (sT0, sT0)); a("s_and_b32 s%d, s%d, 1" % (sT1, sJ))
        a("s_add_u32 s%d, s%d, s%d" % (sT0, sT0, sT1))
        a("s_lshl_b32 s%d, s%d, 4" % (sT1, sT0)); a("s_lshl_b32 s%d, s%d, 3" % (sT0, sT0))
        a.lanefn(3, [(3, 2, 256), (2, 1, 32), (0, 2, 4)], 61, s=sT1)
        a.lanefn(60, [(3, 1, 256), (1, 1, 128), (2, 1, 16), (0, 1, 4)], 61, s=sT0, const=1024)
        a("v_cmp_gt_u32 vcc, 32, v%d" % vL); a("v_cndmask_b32 v3, v60, v3, vcc")
        a("s_lshl_b32 s%d, s%d, 1" % (sT0, sHL)); a("s_add_u32 s%d, s%d, s%d" % (sT0, sT0, sW)); a("s_mul_i32 s%d, s%d, %d" % (sT0, sT0, OB))
        a("s_add_u32 s%d, s%d, s%d" % (sT0, sT0, sLOC)); a("v_add_u32 v3, s%d, v3" % sT0)
        a.oob(3, "le", 48, 60)
        a("s_lshl_b32 s%d, s%d, 2" % (sT1, sJ)); a("s_add_u32 s%d, s%d, s%d" % (sT0, sT0, sT1)); a("s_add_u32 s%d, s%d, 1536" % (sT0, sT0)); a("v_mov_b32 v4, s%d" % sT0)
        a.oob(4, "ne", 48, 60)
    def combine(self, l):
        a = self
        a("s_mov_b32 s%d, %d" % (sT0, L_O[l])); a.flag_cmp()
        a("s_waitcnt lgkmcnt(0)"); a("s_barrier")
        if a.o["stamps"] and ("b2_%d" % l in a.o["stamps"] or "c_b2_%d" % l in a.o["stamps"]): a.stamp("b2_%d" % l); a("s_waitcnt lgkmcnt(0)")
        for n in range(4): a("ds_read2st64_b64 %s, v2 offset0:%d offset1:%d" % (vr(12 + 4 * n, 4), 8 * n, 8 * n + 4))
        a("s_waitcnt lgkmcnt(2)")
        a("v_pk_add_f32 v[12:13], v[12:13], v[14:15]"); a("v_pk_add_f32 v[16:17], v[16:17], v[18:19]"); a("v_pk_add_f32 v[12:13], v[12:13], v[16:17]")
        a("s_waitcnt lgkmcnt(0)")
        a("v_pk_add_f32 v[20:21], v[20:21], v[22:23]"); a("v_pk_add_f32 v[24:25], v[24:25], v[26:27]"); a("v_pk_add_f32 v[12:13], v[12:13], v[20:21]")
        a("v_pk_add_f32 v[12:13], v[12:13], v[24:25]")
        a("v_cvt_pk_bf16_f32 v14, v12, v13"); a("v_min_u32 v14, -2, v14")
        a.local_store("buffer_store_dword v14, v3, %s, s%d offen" % (sr(R_WS, 4), sT0), pre=True)
        a.local_store("buffer_store_dword v12, v4, %s, s%d offen offset:32" % (sr(R_WS, 4), sT0), pre=True)
        a.stamp("o_pub%d" % l)

    def notice_poll(self, ph, direct=False, sh=None):
        a = self
        if ph in a.o["relay"] and not direct:
            a("s_lshl_b32 s%d, s%d, 7" % (sM1, sHL)); a("s_add_u32 s%d, s%d, s%d" % (sM1 + 1, sLOC, sM1)); a("s_add_u32 s%d, s%d, %d" % (sM1 + 1, sM1 + 1, L_CAN + 4 * ph))
            a("v_mov_b32 v9, 0")
            a.poll(["buffer_load_dword v12, v9, %s, s%d offen sc1" % (sr(R_WS, 4), sM1 + 1)], [12], 13, depth=2 if sh else a.o["dc"], shadow=sh)
            a.stamp("can%d" % ph)
            return
        a("s_add_u32 s%d, s%d, %d" % (sM1 + 1, sXPR, NTC + 4 * ph)); a.lanefn(9, [(0, 3, 512)], 60)
        a.poll(["buffer_load_dword v12, v9, %s, s%d offen sc1" % (sr(R_WS, 4), sM1 + 1)], [12], 13, depth=2 if sh else a.o["dc"], shadow=sh)
        if not direct: a.stamp("can%d" % ph)
        if a.o["gd"][ph]: a("s_sleep %d" % a.o["gd"][ph])
    def p3_addr(self, l):
        a = self
        a("s_mul_i32 s%d, s%d, %d" % (sM1, sW, OB)); a("s_add_u32 s%d, s%d, s%d" % (sM1, sM1, sLOC)); a("s_add_u32 s%d, s%d, %d" % (sM1, sM1, L_O[l]))
        a.lanefn(56, [(0, 3, 4)], 53); a.lanefn(62, [(4, 2, 8)], 53)
        return ["buffer_load_dword v52, v56, %s, s%d offen offset:1536 sc1" % (sr(R_WS, 4), sM1), "buffer_load_dwordx2 v[54:55], v62, %s, s%d offen offset:1536 sc1" % (sr(R_WS, 4), sM1)]
    def p3_addr2(self):
        a = self
        a("v_lshlrev_b32 v57, 4, v%d" % vL); a("v_lshlrev_b32 v58, 3, v%d" % vL)
        a("s_mul_i32 s%d, s%d, 6144" % (sT0, sW)); a("s_add_u32 s%d, s%d, %d" % (sT0, sT0, a.LD_WL))
        a.lanefn(59, [(2, 4, 64), (4, 1, 32), (0, 2, 8)], 53, s=sT0); a("v_xor_b32 v60, 32, v59")
        a("s_lshl_b32 s%d, s%d, 8" % (sT0, sW)); a("s_add_u32 s%d, s%d, %d" % (sT0, sT0, a.LD_PP)); a("v_lshl_add_u32 v61, v%d, 2, s%d" % (vL, sT0))
    def p3_weights(self):
        a = self
        a("v_max_f32_dpp v53, v52, v52 row_ror:4 row_mask:0xf bank_mask:0xf")
        for k in (2, 1): a("v_max_f32_dpp v53, v53, v53 row_ror:%d row_mask:0xf bank_mask:0xf" % k)
        for r in (52, 54, 55): a("v_sub_f32 v%d, v%d, v53" % (r, r))
        for r in (52, 54, 55): a("v_exp_f32 v%d, v%d" % (r, r))
    def p3_final_addr(self):
        a = self
        a.lanefn(2, [(0, 6, 4)], 60, const=a.LD_PP); a.lanefn(3, [(0, 4, 4), (5, 1, 64), (4, 1, 8192)], 60)
    def p3(self, l):
        a = self
        ol = ["buffer_load_dwordx4 v[12:15], v57, %s, s%d offen sc1" % (sr(R_WS, 4), sM1),
              "buffer_load_dwordx2 v[16:17], v58, %s, s%d offen offset:1024 sc1" % (sr(R_WS, 4), sM1),
              "buffer_load_dword v18, v56, %s, s%d offen offset:1568 sc1" % (sr(R_WS, 4), sM1)]
        def operands():
            for t in range(2):
                for m in range(6): a("ds_read_b64_tr_b16 %s, v%d offset:%d" % (vr(28 + 12 * t + 2 * m, 2), 59 + t, 1024 * m))
            a.zero(20, 28); a("s_add_u32 s%d, s%d, %d" % (sT1, sXPW, 2 * l * XPS))
        if l == 0 and a.o["early3"]: sh = operands
        else:
            a.poll(a.p3_addr(l), [52, 54, 55], 53, shadow=lambda: (a.p3_addr2(), operands())); sh = a.p3_weights
        red = ["v_add_f32_dpp v53, v53, v53 row_ror:%d row_mask:0xf bank_mask:0xf" % k for k in (4, 2, 1)]
        mm = ["v_smfmac_f32_16x16x64_bf16 v[20:23], v[12:15], v[28:35], v%d" % vIDX, "v_smfmac_f32_16x16x64_bf16 v[24:27], v[12:15], v[40:47], v%d" % vIDX,
              "v_smfmac_f32_16x16x32_bf16 v[20:23], v[16:17], v[36:39], v%d" % vIDX, "v_smfmac_f32_16x16x32_bf16 v[24:27], v[16:17], v[48:51], v%d" % vIDX]
        w = a.lab("L_ow"); r = a.lab("L_or")
        for x in ol: a(x)
        sh(); a("s_waitcnt lgkmcnt(0)"); a("s_branch " + w)
        a(r + ":")
        for x in ol + a.budget(): a(x)
        a.zero(20, 28)
        a(w + ":"); a("s_waitcnt vmcnt(2)")
        a(mm[0]); a("s_nop 2"); a(mm[1]); a("s_waitcnt vmcnt(0)"); a("v_mul_f32 v53, v52, v18"); a(mm[2]); a(mm[3])
        a(red[0]); a("v_max3_u32 v19, v12, v13, v14"); a("v_max3_u32 v62, v15, v16, v17"); a(red[1])
        a("v_max3_u32 v19, v19, v62, v18"); a("s_cmp_eq_u32 s%d, 2" % sW); a(red[2]); a("v_cmp_eq_u32 vcc, -1, v19"); a("v_rcp_f32 v53, v53")
        a("s_cbranch_vccnz " + r)
        a.stamp("o_in%d" % l)
        for t in range(2): a("v_pk_add_f32 %s, %s, %s" % (vr(20 + 4 * t, 2), vr(20 + 4 * t, 2), vr(22 + 4 * t, 2)))
        a("v_pk_mul_f32 v[54:55], v[54:55], v[52:53] op_sel:[0,1] op_sel_hi:[1,1]")
        for t in range(2): a("v_mul_f32 v%d, v%d, v54" % (20 + 4 * t, 20 + 4 * t))
        for t in range(2): a("v_fmac_f32 v%d, v%d, v55" % (20 + 4 * t, 21 + 4 * t))
        a("v_permlane32_swap_b32 v20, v24"); a("v_add_f32 v20, v20, v24")
        a("ds_write_b32 v61, v20")
        bk = a.lab("L_finb")
        a("s_waitcnt lgkmcnt(0)"); a("s_barrier"); a("s_cbranch_scc0 " + bk)
        for n in range(4): a("ds_read2st64_b32 %s, v2 offset0:%d offset1:%d" % (vr(12 + 2 * n, 2), 2 * n, 2 * n + 1))
        a("s_waitcnt lgkmcnt(2)"); a("v_pk_add_f32 v[12:13], v[12:13], v[14:15]")
        a("s_waitcnt lgkmcnt(0)"); a("v_pk_add_f32 v[16:17], v[16:17], v[18:19]")
        a("v_pk_add_f32 v[12:13], v[12:13], v[16:17]"); a("v_add_f32 v14, v12, v13"); a("v_add_f32 v15, v12, v13")
        a("v_permlane16_swap_b32 v14, v15"); a("v_add_f32 v12, v14, v15")
        a("buffer_store_dword v12, v3, %s, s%d offen sc1" % (sr(R_WS, 4), sT1))
        a.stamp("xp_pub%d" % (2 * l))
        a(bk + ":")
    def p4b(self, l):
        a = self
        a("s_sub_u32 s%d, s%d, 4" % (sT3, sW))
        a("s_lshl_b32 s%d, s%d, 11" % (sT0, sT3)); a.lanefn(11, [(0, 6, 16)], 60, s=sT0)
        a("s_add_u32 s%d, s%d, %d" % (sF + 1, sLOC, L_CS1))
        cs = a.two(52, 11, sF + 1)
        for x in cs: a(x)
        a("s_lshl_b32 s%d, s%d, 12" % (sT2, sT3)); a("s_add_u32 s%d, s%d, %d" % (sT2, sT2, a.LD_W2))
        if l == 0:
            a.srd(R_WQ, P_W2, 1536 * 1280)
            a("s_mul_i32 s%d, s%d, 3" % (sT0, sX)); a("s_add_u32 s%d, s%d, s%d" % (sT0, sT0, sT3)); a("s_mul_i32 s%d, s%d, %d" % (sT0, sT0, 64 * 1280))
            a("s_lshl_b32 s%d, s%d, 6" % (sF, sAI)); a("s_add_u32 s%d, s%d, s%d" % (sT0, sT0, sF))
            a.lanefn(5, [(2, 4, 1280), (0, 2, 16)], 60, s=sT0)
            for m in range(4):
                a("s_add_u32 m0, s%d, %d" % (sT2, 1024 * m)); a("s_mov_b32 s%d, %d" % (sT0, m * 16 * 1280))
                a("buffer_load_dwordx4 v5, %s, s%d offen nt lds" % (sr(R_WQ, 4), sT0))
        a.lanefn(35, [(4, 1, 32 * 64), (2, 2, 4 * 64), (5, 1, 64), (0, 2, 8)], 60, s=sT2)
        k2 = -2.0 * math.log2(math.e) * math.sqrt(2.0 / math.pi)
        a("v_mov_b32 v9, %s" % f32(k2 * 0.044715)); a("v_mov_b32 v10, %s" % f32(k2))
        a("s_lshl_b32 s%d, s%d, 7" % (sT0, sT3)); a("s_add_u32 s%d, s%d, %d" % (sT0, sT0, a.LD_HX + 384 * l))
        a.lanefn(32, [(0, 6, 8)], 60, s=sT0); a.lanefn(33, [(0, 6, 8)], 60, const=a.LD_QS + 4096)
        a("v_cmp_gt_u32 vcc, 16, v%d" % vL); a("v_cndmask_b32 v32, v33, v32, vcc")
        a.lanefn(33, [(0, 4, 8), (5, 1, 4)], 60, const=a.LD_HX + 384 * l)
        a.lanefn(34, [(0, 4, 4), (5, 1, 64), (4, 1, 8192)], 60)
        a("s_add_u32 s%d, s%d, %d" % (sT3, sXPW, (2 * l + 1) * XPS))
        a.q_base(l, sT1, sT0, "h"); a.lanefn(7, [(0, 3, 8)], 60)
        a.consts(); a.stamp("p4_set%d" % l)
        a("s_waitcnt vmcnt(0)"); a.stamp("w2_in%d" % l)
        def sh():
            for t in range(2):
                for u in range(4): a("ds_read_b64_tr_b16 %s, v35 offset:%d" % (vr(36 + 8 * t + 2 * u, 2), (16 * (u % 2) + 2 * (u // 2)) * 64 + 32 * t))
            cw = a.lab("L_sw"); cr = a.lab("L_sr")
            a(cw + ":"); a.check(range(52, 60), 20); a("s_cbranch_vccnz " + cr)
            a.ool += [cr + ":"] + cs + a.budget() + ["s_waitcnt vmcnt(0)", "s_branch " + cw]
            for x in a.sum8(52, 28): a(x)
            a.zero(52, 60); a("s_waitcnt lgkmcnt(0)")
        a.fetch(11, sT1, 7, sT0, 24, 2, 28, 26, sh, a.o["dh"], a.o["ahead"], "st_in%d" % l)
        a("v_fma_f32 v20, v20, v3, v%d" % vB)
        a.stamp("h_in%d" % l)
        a("v_mul_f32 v21, v20, v20"); a("v_mul_f32 v22, v20, v9"); a("v_mul_f32 v23, v20, v10"); a("v_fma_f32 v21, v21, v22, v23")
        a("v_exp_f32 v21, v21"); a("v_add_f32 v21, 1.0, v21"); a("v_rcp_f32 v21, v21")
        a("v_mul_f32 v20, v20, v21")
        a("v_mov_b32_dpp v21, v20 row_shl:1 row_mask:0xf bank_mask:0xf bound_ctrl:0")
        a("v_cvt_pk_bf16_f32 v28, v20, v21")
        for r_ in (1, 2, 3): a("v_mov_b32_dpp v%d, v28 row_shl:%d row_mask:0xf bank_mask:0xf bound_ctrl:0" % (28 + r_, 4 * r_))
        for t in range(2): a("v_smfmac_f32_16x16x64_bf16 %s, v[28:31], %s, v%d" % (vr(52 + 4 * t, 4), vr(36 + 8 * t, 8), vIDX))
        sk = a.lab("L_skip"); a("s_cmp_eq_u32 s%d, 4" % sW)
        a("v_add_f32 v22, v52, v54"); a("v_add_f32 v23, v56, v58")
        a("ds_write_b64 v32, v[22:23]")
        a("s_cbranch_scc0 " + sk)
        lw = a.lab("L_xw")
        a(lw + ":")
        a("ds_read2_b32 v[20:21], v33 offset0:0 offset1:32"); a("ds_read_b32 v22, v33 offset:256")
        for x in a.budget(): a(x)
        a("s_waitcnt lgkmcnt(0)")
        a("v_max3_u32 v23, v20, v21, v22"); a("v_add_f32 v20, v20, v21"); a("v_cmp_eq_u32 vcc, -1, v23"); a("v_add_f32 v20, v20, v22")
        a("s_cbranch_vccnz " + lw)
        a("buffer_store_dword v20, v34, %s, s%d offen sc1" % (sr(R_WS, 4), sT3))
        a.stamp("xp_pub%d" % (2 * l + 1))
        if l == 0:
            e = a.lab("L_pe"); a("s_waitcnt vmcnt(1)"); a("s_branch " + e)
            a(sk + ":"); a("s_waitcnt vmcnt(0)"); a(e + ":")
        else: a(sk + ":")
    def slab(self, l, kind, ph, lazy=False):
        a = self; w7 = a.lab("L_w7"); end = a.lab("L_se")
        a("s_cmp_eq_u32 s%d, 7" % sW); a("s_cbranch_scc1 " + w7)
        sk = a.skip_unless("lt", "s%d" % sW, 6)
        a.p1_prefetch(l, kind, 9)
        if kind == "h" and l == 0: a.p1_mat(l, "c", 9)
        a(sk + ":")
        a("s_cmp_lt_u32 s%d, 6" % sW)
        a("s_barrier")
        if a.o["stamps"] and "bx%d" % ph in a.o["stamps"]: a.stamp("bx%d" % ph); a("s_waitcnt lgkmcnt(0)")
        a("s_cbranch_scc0 " + end)
        a.p1_mat(l, kind, 9)
        a.stamp("q1_pub" if kind == "q" else "h_pub%d" % l)
        a(end + ":")
        def wave7():
            a(w7 + ":")
            a.slice_addr(5, 16, 4096)
            if kind == "q": a.p1_slice_pre(l, kind)
            if lazy:
                sk2 = a.skip_unless("lg", "s%d" % sHL, 3)
                a("s_add_u32 s%d, s%d, %d" % (sT0, sLOC, L_STH)); a("v_mov_b32 v9, 0")
                a.poll(["buffer_load_dword v12, v9, %s, s%d offen sc1" % (sr(R_WS, 4), sT0)], [12], 13)
                a.gather(ph - 1); a.unpack_x()
                a(sk2 + ":")
            a.gather(ph, pre=lambda sh: a.notice_poll(ph, sh=sh), setup=a.add_b2 if kind == "q" else lambda: a.p1_slice_pre(l, kind))
            a.stamp("xp_in%d" % ph)
            if a.o["stb"]: a("ds_write_b32 v35, v28")
            else: a.p1_slice_write(); a("s_barrier")
            a.p1_slice_stats(a.o["stb"])
            a("s_branch " + end)
        a.aside(wave7)
    def q_reads(self):
        for k in range(3): self("ds_read_b128 %s, v5 offset:%d" % (vr(12 + 4 * k, 4), 128 * k))
    def attention1(self):
        a = self; qa = a.o["qahead"]
        def prep():
            a.zero(24, 40 if qa else 48); a.lanefn(5, [(4, 2, 32), (1, 1, 16)], 60, const=a.LD_QS)
        oth = a.lab("L_qo"); bar = a.lab("L_qb")
        a("s_sub_u32 s%d, s%d, 1" % (sT0, sW)); a("s_cmp_lt_u32 s%d, 3" % sT0); a("s_cbranch_scc0 " + oth)
        a.lanefn(9, [(0, 3, 8)], 60)
        a.fetch(7, sT2, 9, sT3, 10, 48, vCS, 50, lambda: (prep(), a.consts(51)), 1, qa, "st_q", 51, 40 if qa else 12)
        a.q_out(48, 8)
        a(bar + ":")
        a("s_waitcnt lgkmcnt(0)")
        a.aside(lambda: (a(oth + ":"), prep(), a("s_branch " + bar)))
        a("s_barrier")
        if a.o["stamps"] and ("q1_in" in a.o["stamps"] or "c_q1_in" in a.o["stamps"]): a.stamp("q1_in"); a("s_waitcnt lgkmcnt(0)")
        a.q_reads(); a("s_cmp_lt_u32 s%d, 4" % sW); a("s_waitcnt lgkmcnt(0)")
        a.qk(qa)
        a.stamp("qk_end"); ls = a.softmax(); n0 = a.o["lpre"]
        for i, x in enumerate(ls[:n0]):
            a(x)
            if qa and i < 2: a.zero(40 + 4 * i, 44 + 4 * i)
        g = a.g_ops(); lw = a.l_write(); mg = a.o["mgap"]
        fill = {mg: ["ds_read_b32 v36, v62"], 5: ["s_waitcnt lgkmcnt(0)", g[0]], 7: [g[1]], 8: ["v_cmp_eq_u32 vcc, -1, v36"], 9: [g[2]], 10: [g[3]], 11: [g[4]]}
        for i, x in enumerate(ls[n0:]): fill.setdefault(2 * i, []).append(x)
        cnt = not (a.o["stamps"] and any(x.endswith("mx") or x.endswith("qk_end") or x.endswith("qk_iss") for x in a.o["stamps"]))
        r = a.lab("L_mr"); ok = a.lab("L_mk")
        def run(fill, mg):
            for n in range(12):
                if n in (0, 2, 4) and (cnt or n == 0): a("s_waitcnt lgkmcnt(%d)" % ((5 - n // 2 + (mg < n)) if cnt else 0))
                if n == 0: a.stamp("sm_end") if not cnt else None
                a.pv(6 * (n % 2) + n // 2)
                for x in fill.get(n, []): a(x)
        if a.o["split"]:
            eo = a.lab("L_eo"); a("s_cbranch_scc1 " + eo)
            f2 = {5: ["s_waitcnt lgkmcnt(0)"]}
            for i, x in enumerate(ls[n0:]): f2.setdefault(2 * i, []).append(x)
            a.aside(lambda: (a(eo + ":"), run(f2, 99), a.stamp("pv_iss"), a("s_branch " + r) if a.o["stamps"] else None))
        run(fill, mg)
        a.stamp("pv_iss")
        a("s_cbranch_vccnz " + r); a(ok + ":")
        def late():
            a(r + ":"); a("ds_read_b32 v36, v62")
            for x in a.budget(): a(x)
            a("s_waitcnt lgkmcnt(0)"); a("v_cmp_eq_u32 vcc, -1, v36"); a("s_cbranch_vccnz " + r)
            for x in g: a(x)
            a("s_branch " + ok)
        a.aside(late)
        for x in lw: a(x)
        a("s_cmp_lt_u32 s%d, 2" % sW)
        a.pv_end()
        a.stamp("pv1")

    def build(self):
        a = self; o = a.o
        W = lambda w: a.skip_unless("eq", "s%d" % sW, w)
        if o["diag_hold"]: a("s_mov_b64 s[100:101], 0"); a("s_mov_b64 s[92:93], 0"); a("s_mov_b64 s[94:95], 0")
        a.stamp("start")
        rest = lambda: (a("s_load_dwordx8 s[20:27], s[0:1], 64"), a("s_load_dwordx2 s[28:29], s[0:1], 96"))
        a("s_load_dwordx16 s[4:19], s[0:1], 0")
        a("s_cmp_ge_u32 s2, 256"); a("s_cbranch_scc1 L_exit")
        def warm():
            a("s_getpc_b64 %s" % sr(sM1, 2)); a("L_pc:")
            a("v_min_u32 v62, L_exit-L_pc, v62"); a("global_load_dword v63, v62, %s" % sr(sM1, 2))
        a("v_lshrrev_b32 v5, 6, v0"); a("v_lshlrev_b32 v62, 6, v0"); a("v_readfirstlane_b32 s%d, v5" % sW); a("v_and_b32 v0, 63, v0")
        if o["l2warm"]: warm()
        if o["prio"]: sk = W(LOADER); a("s_setprio %d" % o["prio"]); a(sk + ":")
        a("s_and_b32 s%d, s2, 7" % sX); a("s_lshr_b32 s%d, s2, 3" % sC); a("s_and_b32 s%d, s%d, 3" % (sHL, sC)); a("s_lshr_b32 s%d, s%d, 2" % (sJ, sC))
        a("s_lshl_b32 s%d, s%d, 2" % (sH, sX)); a("s_add_u32 s%d, s%d, s%d" % (sH, sH, sHL))
        a.lanefn(8, [(5, 1, 4), (4, 1, 1)], 60); a("v_and_b32 v9, 7, v0"); a("v_xor_b32 v8, v8, v9")
        a.lanefn(10, [(3, 3, 384)], 60); a("v_lshl_add_u32 v5, v8, 4, v10"); a("v_xor_b32 v6, 32, v5")
        a("s_mul_i32 s%d, s%d, 12582912" % (sF, sH)); a("s_mul_i32 s%d, s%d, %d" % (sT1, sJ, 3072 if o["ilv"] else 24576))
        a("s_add_u32 s%d, s%d, s%d" % (sF, sF, sT1)); a("s_add_u32 s%d, s%d, 11010048" % (sF, sF))
        a("s_sub_u32 s%d, 1572864, s%d" % (R_K + 2, sT1)); a("s_mov_b32 s%d, 0x20000" % (R_K + 3))
        def others():
            a("s_mul_i32 s%d, s%d, 3" % (sAI, sJ)); a("s_add_u32 s%d, s%d, s%d" % (sAI, sAI, sHL)); a("s_cmp_eq_u32 s%d, 3" % sHL); a("s_cselect_b32 s%d, 31, s%d" % (sAI, sAI))
            a.lanefn(8, [(4, 2, 2)], 60); a("v_xor_b32 v8, v8, v9"); a("v_lshl_add_u32 v7, v8, 4, v10")
            a.lanefn(vX0, [(3, 3, 12288), (0, 3, 16)], 60)
            a("s_mul_i32 s%d, s%d, 384" % (sT2, sH)); a("s_mul_i32 s%d, s%d, %d" % (sT3, sJ, 80 * 12288)); a("s_add_u32 s%d, s%d, s%d" % (sT2, sT2, sT3))
            a("s_sub_u32 s%d, %d, s%d" % (sT3, 640 * 12288 + 2048, sT2))
            a("s_lshl_b32 s%d, s%d, 11" % (sRING, sW)); a("s_add_u32 s%d, s%d, %d" % (sRING, sRING, a.LD_RING))
            a("s_mul_i32 s%d, s%d, %d" % (sLOC, sX, LOC)); a("s_add_u32 s%d, s%d, %d" % (sLOC, sLOC, LOC0))
            a("s_lshl_b32 s%d, s%d, 9" % (sARR, sX)); a("s_add_u32 s%d, s%d, %d" % (sARR, sARR, ARR))
            a("s_mov_b32 s%d, %d" % (sBUD, o["budget"])); a("s_mov_b32 s%d, 1" % sFLAG)
            a("s_getreg_b32 s%d, hwreg(20, 0, 3)" % sXCC)
            for r in (vX1, vB, 11, 24, 34): a("v_mov_b32 v%d, 0" % r)
            a("v_mov_b64 v[12:13], -1"); a("v_mov_b64 v[14:15], -1"); a("v_lshlrev_b32 v10, 4, v0")
        order, upto, wait = a.plan(); done = [0]
        assert order[:2] == [0, 1]
        keep = a.L; a.L = []; a.block(0, None); blk = a.L; a.L = keep; k = [i for i, x in enumerate(blk) if x.endswith(":")][0]
        for x in blk[:k]: a(x)
        sk = a.lab("L_skip"); a("s_cmp_eq_u32 s%d, %d" % (sW, LOADER)); a("s_cselect_b64 vcc, -1, 0")
        a.stamp("pre_wait"); a("s_waitcnt lgkmcnt(0)"); a.stamp("args")
        a("s_add_u32 s%d, s%d, s%d" % (R_K, P_K, sF)); a("s_addc_u32 s%d, s%d, 0" % (R_K + 1, P_K + 1))
        rest()
        a("s_cbranch_vccz " + sk)
        for x in blk[k:]: a(x)
        a.stamp("d_iss")
        a.block(1, None, (0, 4))
        a(sk + ":"); done[0] = 1
        others(); a("s_waitcnt lgkmcnt(0)")
        a.srd(R_V, P_V, "s%d" % (R_K + 2), off=sF)
        a.srd(R_WS, P_WS, WS_BYTES)
        a.srd(R_WQ, P_WQ, "s%d" % sT3, off=sT2); a("s_sub_u32 s%d, s%d, 2048" % (R_WQ, R_WQ)); a("s_subb_u32 s%d, s%d, 0" % (R_WQ + 1, R_WQ + 1))
        a.stamp("pre_dma")
        def wl_setup():
            lb = a.lab("L_wb"); le = a.lab("L_we")
            a("s_cmp_lg_u32 s%d, 3" % sHL); a("s_cbranch_scc0 " + lb)
            a("s_mul_i32 s%d, s%d, %d" % (sT0, sX, 768 * 1280)); a("s_lshl_b32 s%d, s%d, 6" % (sT1, sAI)); a("s_add_u32 s%d, s%d, s%d" % (sT0, sT0, sT1))
            a.lanefn(38, [(4, 1, 2)], 39); a("v_xor_b32 v38, v38, v0"); a("v_and_b32 v38, 3, v38")
            a.lanefn(vX1, [(5, 1, 8 * 1280), (4, 1, 2 * 1280), (3, 1, 4 * 1280), (2, 1, 16 * 1280)], 39, s=sT0); a("v_lshl_add_u32 v%d, v38, 4, v%d" % (vX1, vX1))
            a("s_mov_b32 s%d, %d" % (sWA, 32 * 1280)); a("s_mov_b32 s%d, %d" % (sWB, 1280 - 1024))
            a("s_branch " + le)
            a(lb + ":")
            a("s_mul_i32 s%d, s%d, 384" % (sT0, sX)); a("s_mul_i32 s%d, s%d, %d" % (sT1, sJ, 80 * 3072)); a("s_add_u32 s%d, s%d, s%d" % (sT0, sT0, sT1))
            a.lanefn(vX1, [(0, 6, 16)], 39, s=sT0)
            a("v_mov_b32 v38, %d" % (3072 - 384)); a("v_cmp_lt_u32 vcc, 23, v0"); a("v_cndmask_b32 v38, 0, v38, vcc"); a("v_add_u32 v%d, v38, v%d" % (vX1, vX1))
            a("v_mov_b32 v38, 0x7f000000"); a("v_cmp_lt_u32 vcc, 47, v0"); a("v_cndmask_b32 v%d, v%d, v38, vcc" % (vX1, vX1))
            a("s_mov_b32 s%d, %d" % (sWA, 4 * 3072)); a("s_mov_b32 s%d, %d" % (sWB, 2 * 3072 - 1024))
            a(le + ":")
        def issue(k, burst=False):
            if done[0] >= k: return
            sk = W(LOADER)
            for i in range(done[0], k):
                if order[i] == ("w0" if o["nwl"] else "r0"): wl_setup()
                a.block(order[i], None if burst or i >= (order.index(o["burst_st"]) if o["burst_st"] < 24 else 999) else o["W"], (4, 4) if i == 1 else (0, 8))
            a(sk + ":"); done[0] = k
        a.stamp("post_dma")
        assert "w0" not in order[:upto[0]]
        a("s_cmp_lt_u32 s%d, 20" % sAI); a("s_cselect_b32 s%d, %d, 0" % (sT0, 6144 * 1280))
        a("s_add_u32 s%d, s%d, 1" % (sT1, sJ)); a("s_mul_i32 s%d, s%d, %d" % (sT1, sT1, 80 * 3072))
        a("s_cmp_lg_u32 s%d, 3" % sHL); a("s_cselect_b64 %s, %s, %s" % (sr(R_WL, 2), sr(P_WO, 2), sr(P_W1, 2)))
        a("s_cselect_b32 s%d, s%d, s%d" % (R_WL + 2, sT0, sT1)); a("s_mov_b32 s%d, 0x20000" % (R_WL + 3))
        a("s_add_u32 s%d, s%d, %d" % (sT0, P_WS, XP)); a("s_sub_u32 s%d, 0, s%d" % (sT0, sT0)); a("s_and_b32 s%d, s%d, 0x3fff" % (sT0, sT0)); a("s_add_u32 s%d, s%d, %d" % (sT0, sT0, XP))
        a("s_lshr_b32 s%d, s%d, 1" % (sT1, sX)); a("s_lshl_b32 s%d, s%d, 14" % (sT1, sT1)); a("s_add_u32 s%d, s%d, s%d" % (sXPW, sT0, sT1))
        a("s_and_b32 s%d, s%d, 1" % (sT1, sX)); a("s_lshl_b32 s%d, s%d, 12" % (sT1, sT1)); a("s_add_u32 s%d, s%d, s%d" % (sXPW, sXPW, sT1))
        a("s_lshl_b32 s%d, s%d, 7" % (sT1, sAI)); a("s_add_u32 s%d, s%d, s%d" % (sXPW, sXPW, sT1))
        a("s_mov_b32 s%d, s%d" % (sXPB, sT0))
        a("s_and_b32 s%d, s%d, 3" % (sT2, sAI)); a("s_lshl_b32 s%d, s%d, 2" % (sT1, sX)); a("s_add_u32 s%d, s%d, s%d" % (sT2, sT2, sT1)); a("s_lshl_b32 s%d, s%d, 7" % (sT2, sT2))
        a("s_add_u32 s%d, s%d, s%d" % (sT2, sT2, sT0)); a("s_add_u32 s%d, s%d, %d" % (sT2, sT2, PRB))
        a("s_add_u32 s10, s%d, s%d" % (P_WS, sT2)); a("s_addc_u32 s11, s%d, 0" % (P_WS + 1))
        a("s_lshr_b32 s%d, s%d, 2" % (sT1, sXCC)); a("s_xor_b32 s%d, s%d, %d" % (sT1, sT1, o["pol"])); a("s_mul_i32 s%d, s%d, %d" % (sT1, sT1, 8192)); a("s_add_u32 s%d, s%d, s%d" % (sXPR, sT0, sT1))
        sk = W(9 if o["strip"] & 2 else CTRL)
        sk2 = a.skip_unless("eq", "s%d" % sC, 31)
        a.exec_(0xffffff)
        a("buffer_store_dwordx4 v[12:15], v10, %s, s%d offen sc1" % (sr(R_WS, 4), sARR))
        a.exec_(-1)
        a(sk2 + ":")
        sk2 = a.skip_unless("lt", "s%d" % sAI, 20)
        if not o["noclr"] & 1:
            a.lanefn(16, [(0, 3, 16), (3, 1, 8192), (4, 2, XPS)], 17)
            a("buffer_store_dwordx4 v[12:15], v16, %s, s%d offen sc1" % (sr(R_WS, 4), sXPW))
        a(sk2 + ":")
        if True:
            sk2 = a.skip_unless("eq", "s%d" % sAI, 20)
            a("s_lshl_b32 s%d, s%d, 9" % (sT1, sX)); a("s_add_u32 s%d, s%d, s%d" % (sT1, sT1, sXPB)); a("s_add_u32 s%d, s%d, %d" % (sT1, sT1, NTC))
            a.lanefn(16, [(0, 3, 16), (3, 1, 8192), (4, 2, 1 << 28)], 60)
            a("buffer_store_dwordx4 v[12:15], v16, %s, s%d offen sc1" % (sr(R_WS, 4), sT1))
            a(sk2 + ":")
        if o["race"]:
            a("s_sub_u32 s%d, s%d, 20" % (sT1, sAI)); a("s_cmp_lt_u32 s%d, 4" % sT1); a("s_cselect_b32 s%d, s%d, 0x7f000000" % (sT2, sT2))
            a.lanefn(16, [(0, 3, 16), (3, 1, 8192), (4, 2, 1 << 28)], 60)
            a("buffer_store_dwordx4 v[12:15], v16, %s, s%d offen sc1" % (sr(R_WS, 4), sT2))
        def clear_local(ad, fl):
            a("s_mul_i32 s%d, s%d, %d" % (sT0, sC, CLR)); a("s_add_u32 s%d, s%d, s%d" % (sT0, sT0, sLOC))
            a.exec_((1 << ((CLR - 2048) // 16)) - 1)
            a("buffer_store_dwordx4 v[12:15], v%d, %s, s%d offen offset:2048 %s" % (ad, sr(R_WS, 4), sT0, fl))
            a.exec_(-1)
            for k in (0, 1024): a("buffer_store_dwordx4 v[12:15], v%d, %s, s%d offen offset:%d %s" % (ad, sr(R_WS, 4), sT0, k, fl))
        if not o["noclr"] & 2: clear_local(10, "")
        a.exec_(-1)
        a.lanefn(16, [(0, 6, 16)], 60, const=a.LD_ML); a("ds_write_b128 v16, v[12:15]")
        a.lanefn(vX1, [(0, 3, 32)], 60)
        a(sk + ":")
        sk = W(7); a.slice_addr(16, 8, 4)
        a("global_load_dword v28, v16, %s" % sr(P_X, 2)); a("global_load_dword v%d, v16, %s" % (vB, sr(P_B2, 2)))
        a(sk + ":")
        a("s_sub_u32 s%d, s%d, 4" % (sT1, sW))
        sk = a.skip_unless("lt", "s%d" % sT1, 3)
        a("s_mul_i32 s%d, s%d, 3" % (sT0, sX)); a("s_add_u32 s%d, s%d, s%d" % (sT0, sT0, sT1)); a("s_lshl_b32 s%d, s%d, 7" % (sT0, sT0))
        a.lanefn(16, [(0, 4, 8), (4, 2, 2)], 60, s=sT0)
        a("global_load_short_d16_hi v%d, v16, %s" % (vB, sr(P_B1, 2)))
        a(sk + ":")
        a.lanefn(8, [(1, 3, 1)], 60); a("v_lshrrev_b32 v9, 4, v0"); a("v_xor_b32 v9, v8, v9")
        a.lanefn(8, [(2, 1, 1024), (3, 1, 512), (0, 2, 128)], 60, s=sRING); a("v_lshl_add_u32 v8, v9, 4, v8"); a("v_xor_b32 v9, 64, v8")
        a.lanefn(vIDX, [(1, 1, 0xAAAA)], 60, const=0x4444)

        go_ld = "global_load_dword v%d, v%d, %s sc1" % (vX0, vX1, sr(P_DBG, 2))
        arr_ld = "buffer_load_dword v%d, v24, %s, s%d offen sc1" % (vX0, sr(R_WS, 4), sARR)
        vd_ld = go_ld.replace(" sc1", " offset:4 sc1"); sSAME = sF
        e = {k: o[k] for k in ("go_s", "go_i", "arr_s", "arr_i", "arr_c", "q_c", "vd_i", "vd_c", "warm", "preread")}
        e["p1"] = max(3, max(o["qpos"]) + 1 if o["qpos"] else 0)
        e["dec"] = e["arr_c"] + 1; e["qk"] = e["q_c"] + 1; e["ml"] = e["qk"] + 1
        assert e["go_s"] < e["go_i"] < e["arr_s"] < e["arr_i"] < e["arr_c"] < e["vd_i"] - 1 < e["vd_c"] <= 20 and e["go_s"] < e["p1"] < e["arr_s"] - 1
        assert e["dec"] < e["q_c"] and e["qk"] >= 12 and e["ml"] <= e["preread"] <= 20
        late = "r0" in order
        self.sched = dict(order=order, upto=upto, wait=wait, ev=e)
        STG = a.LD_PP
        def touch_code():
            sk = a.skip_unless("lt", "s%d" % sW, o["npad"])
            a("s_mov_b64 exec, 0")
            for k in range(1, o["npad"]): a("s_cmp_eq_u32 s%d, %d" % (sW, k)); a("s_cbranch_scc1 L_padin%d" % k)
            a("s_branch L_padin0"); a("L_padback:"); a("s_mov_b64 exec, -1")
            a(sk + ":")
        issue(upto[0])
        for s in range(24):
            if s == 21:
                a("s_branch L_tail"); a(".p2align 10"); a("L_tail:")
            a("s_waitcnt vmcnt(%d)" % wait[s])
            a.stamp("bw%d" % s)
            a("s_barrier")
            a.stamp("ba%d" % s)
            a.reads(s)
            if s < 21 or o["strip"]: issue(upto[s + 1] if s < 23 else len(order), burst=s == e["qk"] and not o["strip"])
            a("s_waitcnt lgkmcnt(0)")
            a.stamp("v_in" if s == 23 else "st%d" % s)
            if s == 11:
                a.lanefn(8, [(2, 4, 128), (3, 2, 32), (0, 2, 8)], 60, s=sRING)
                for tt in (1, 2, 3): a("v_xor_b32 v%d, %d, v8" % (8 + tt, 32 * tt))
            if s == e["warm"] and o["pads"]: touch_code()
            if o["strip"]:
                if s == 23: a("s_waitcnt vmcnt(0)"); a.stamp("out"); a("s_branch L_done")
                if s >= 21 or s > o["upto_ev"] or o["upto_ev"] == 99: continue
            if s == e["go_s"]:
                sk = W(CTRL); sk2 = a.skip_unless("eq", "s%d" % sC, 31)
                a("s_lshl_b32 s%d, s%d, 5" % (sT0, sX)); a("v_mov_b32 v16, s%d" % sT0)
                a("s_add_u32 s%d, s%d, 1" % (sT0, sXCC)); a("v_mov_b32 v12, s%d" % sT0)
                a("s_waitcnt vmcnt(%d)" % (0 if o["noclr"] else 5 if o["race"] else 4))
                a.stamp("clr_ack")
                a.exec_(1); a("global_store_dword v16, v12, %s sc1" % sr(P_DBG, 2)); a.exec_(-1)
                a(sk2 + ":"); a(sk + ":")
            if s == e["p1"] - 1 or s == e["preread"] + 2:
                sk = a.skip_unless("lt", "s%d" % sW, 5); a("s_waitcnt vmcnt(0)"); a(sk + ":")
            if s == e["p1"] - 1:
                sk = W(7); a.p1_slice_pre(0); a("s_waitcnt vmcnt(0)"); a.p1_slice_write(); a(sk + ":")
            def p1_layer0():
                sk = W(7); a.p1_slice_stats(); a(sk + ":")
                sk = a.skip_unless("lt", "s%d" % sW, 6)
                a.p1_prefetch(0, "q", 52); a.p1_mat(0, "q", 52)
                a(sk + ":")
            def arrive(off, fl):
                return ["s_lshl_b32 s%d, s%d, 2" % (sT0, sC), "s_add_u32 s%d, s%d, s%d" % (sT0, sT0, sARR), "s_mov_b64 exec, 1",
                        "buffer_store_dword v25, v0, %s, s%d offen offset:%d %s" % (sr(R_WS, 4), sT0, off, fl), "s_mov_b64 exec, -1"]
            if s == e["p1"]:
                p1_layer0(); a.stamp("q0_pub")
            if s == o["race_at"]:
                sk = W(CTRL)
                assert s < e["p1"]
                a("s_waitcnt vmcnt(0)")
                a("s_lshr_b32 s%d, s%d, 2" % (sF + 3, sXCC))
                if o["race"]:
                    a("s_sub_u32 s%d, s%d, 20" % (sT1, sAI)); sk2 = a.skip_unless("lt", "s%d" % sT1, 4)
                    a("s_mov_b32 s%d, 0" % (sF + 3))
                    a("s_load_dword s%d, s[10:11], 0" % (sF + 2)); a("s_load_dword s%d, s[10:11], 8192" % (sF + 3)); a("s_waitcnt lgkmcnt(1)")
                    a(sk2 + ":")
                a("v_subrev_u32 v16, 8, v0"); a("v_cmp_gt_u32 vcc, 40, v16"); a("v_mov_b32 v16, %s" % ONES); a("v_cndmask_b32 v18, 0, v16, vcc")
                a("v_min_u32 v16, 55, v0"); a("v_lshlrev_b32 v16, 2, v16"); a("v_add_u32 v16, %d, v16" % (a.LD_XB + 160))
                a("ds_write_b32 v16, v18"); a("s_mov_b32 s%d, s%d" % (sF + 1, sF + 3)); a("s_waitcnt lgkmcnt(0)")
                a(sk + ":")
            if s == e["go_i"]:
                sk = W(CTRL); a(go_ld); a(sk + ":")
            if s == e["arr_s"] - 1:
                sk = a.skip_unless("lg", "s%d" % sW, LOADER); a("s_waitcnt vmcnt(0)"); a.stamp("ack_ok"); a(sk + ":")
            if s == e["arr_s"]:
                sk = W(CTRL)
                w = a.lab("L_cw"); r = a.lab("L_cr")
                a(w + ":")
                a("v_readlane_b32 s%d, v%d, s%d" % (sT0, vX0, sX)); a("s_cmp_eq_u32 s%d, 0" % sT0); a("s_cbranch_scc1 " + r)
                a.ool += [r + ":"] + a.budget() + [go_ld, "s_waitcnt vmcnt(0)", "s_branch " + w]
                far = a.lab("L_far"); bk = a.lab("L_fb")
                a("s_lshr_b32 s%d, s%d, 2" % (sT1, sXCC)); a("s_xor_b32 s%d, s%d, s%d" % (sT1, sT1, sF + 1))
                a("s_and_b32 s%d, s%d, 1" % (sT1, sT1)); a("v_mov_b32 v25, s%d" % sT1)
                a("s_sub_u32 s%d, s%d, 1" % (sT0, sT0)); a("s_cmp_eq_u32 s%d, s%d" % (sT0, sXCC)); a("s_cselect_b32 s%d, 1, 0" % sSAME)
                a("s_cbranch_scc0 " + far)
                for x in arrive(0, ""): a(x)
                a(bk + ":")
                a.ool += [far + ":"] + arrive(128, "sc1") + ["s_branch " + bk]
                a.stamp("go_ok")
                a(sk + ":")
            if s == e["arr_i"]:
                sk = W(CTRL); a("v_lshlrev_b32 v24, 2, v0"); a(arr_ld); a(sk + ":")
            if s == e["vd_i"]:
                sk = W(CTRL); a(vd_ld); a(sk + ":")
            if s == e["vd_c"]:
                sk = W(CTRL)
                w = a.lab("L_cw"); r = a.lab("L_cr")
                a(w + ":"); a("s_waitcnt vmcnt(0)")
                a("v_cmp_eq_u32 vcc, 0, v%d" % vX0); a("s_cbranch_vccnz " + r)
                a.ool += [r + ":"] + a.budget() + [vd_ld, "s_branch " + w]
                if o["race"]:
                    for k in (4, 2, 1): a("v_add_u32_dpp v%d, v%d, v%d row_ror:%d row_mask:0xf bank_mask:0xf" % (vX0, vX0, vX0, k))
                    a("v_mov_b32 v60, %d" % (a.LD_FLAG + 4)); a("ds_write_b32 v60, v%d" % vX0); a("s_waitcnt lgkmcnt(0)")
                a.stamp("vd_ok")
                a(sk + ":")
            if s == e["vd_c"] + 1 and o["race"]:
                sk = a.skip_unless("ge", "s%d" % sW, 6)
                a("v_mov_b32 v60, %d" % (a.LD_FLAG + 4)); a("ds_read_b32 v60, v60"); a("s_lshr_b32 s%d, s%d, 2" % (sT1, sXCC)); a("s_waitcnt lgkmcnt(0)")
                a("v_readfirstlane_b32 s%d, v60" % sT0); a("s_cmp_gt_u32 s%d, %d" % (sT0, 16 + 8)); a("s_cselect_b32 s%d, 1, 0" % sT0)
                a("s_xor_b32 s%d, s%d, s%d" % (sT0, sT0, sT1)); a("s_lshl_b32 s%d, s%d, 13" % (sT0, sT0)); a("s_add_u32 s%d, s%d, s%d" % (sXPR, sXPB, sT0))
                a(sk + ":")
            if s == e["arr_c"]:
                sk = W(CTRL)
                w = a.lab("L_cw"); r = a.lab("L_cr"); dn = a.lab("L_cd")
                a(w + ":"); a("s_waitcnt vmcnt(0)")
                a("v_cmp_ne_u32 vcc, -1, v%d" % vX0); a("s_mov_b32 s%d, 0" % sT0); a("s_mov_b32 s%d, 2" % (sF + 4))
                a("s_cmp_eq_u32 s%d, 0" % sSAME); a("s_cbranch_scc1 " + dn)
                a("s_cmp_lg_u32 vcc_hi, 0"); a("s_cbranch_scc1 " + dn)
                a("s_cmp_lg_u32 vcc_lo, -1"); a("s_cbranch_scc1 " + r)
                a.ool += [r + ":"] + a.budget() + [arr_ld, "s_branch " + w]
                a("v_cmp_eq_u32 vcc, 1, v%d" % vX0); a("s_bcnt1_i32_b32 s%d, vcc_lo" % (sF + 4))
                a("s_mov_b32 s%d, %d" % (sT0, 0 if o["force_global"] else 1))
                a(dn + ":")
                a("v_mov_b32 v37, %d" % a.LD_FLAG); a("v_mov_b32 v38, s%d" % sT0); a("ds_write_b32 v37, v38"); a("s_waitcnt lgkmcnt(0)")
                a.stamp("arr_ok")
                a(sk + ":")
            if s == e["dec"]:
                a("v_mov_b32 v41, %d" % a.LD_FLAG); a("ds_read_b32 v42, v41"); a("s_waitcnt lgkmcnt(0)"); a("v_readfirstlane_b32 s%d, v42" % sFLAG)
                a("s_cmp_eq_u32 s%d, 0" % sFLAG); a("s_cbranch_scc1 L_spread"); a("L_spread_back:")
                keep = a.L; a.L = []
                a("L_spread:")
                a("s_add_u32 s%d, s%d, %d" % (sLOC, sLOC, LOC_B))
                sk = W(CTRL)
                a("v_mov_b64 v[12:13], -1"); a("v_mov_b64 v[14:15], -1"); a("v_lshlrev_b32 v16, 4, v0"); clear_local(16, "sc1")
                a(sk + ":")
                sk = W(7); a.p1_slice_pre(0); a("v_cvt_pk_bf16_f32 v28, v%d, v%d" % (vX0, vX1)); a(sk + ":")
                p1_layer0()
                a("s_waitcnt vmcnt(0)"); a("s_barrier")
                sk = W(CTRL)
                a("v_mov_b32 v25, 0")
                for x in arrive(256, "sc1"): a(x)
                a.lanefn(16, [(0, 5, 4)], 39)
                a.poll(["buffer_load_dword v17, v16, %s, s%d offen offset:256 sc1" % (sr(R_WS, 4), sARR)], [17], 18)
                a(sk + ":")
                a("s_barrier"); a("s_branch L_spread_back")
                self.cold = a.L; a.L = keep
                sk = W(CTRL); sk2 = a.skip_unless("eq", "s%d" % sC, 31)
                a("s_lshl_b32 s%d, s%d, 5" % (sT0, sX)); a("v_mov_b32 v16, s%d" % sT0); a("s_add_u32 s%d, s%d, 1" % (sT0, sF + 4)); a("v_mov_b32 v12, s%d" % sT0)
                a.exec_(1); a("global_store_dword v16, v12, %s offset:4 sc1" % sr(P_DBG, 2)); a.exec_(-1)
                a(sk2 + ":"); a(sk + ":")
                a("s_sub_u32 s%d, s%d, 1" % (sT1, sW)); sk = a.skip_unless("lt", "s%d" % sT1, 3)
                a.q_base(0, sT2, sT3); a("s_lshl_b32 s%d, s%d, 11" % (sT0, sT1)); a.lanefn(48, [(0, 6, 16)], 60, s=sT0); a.lanefn(49, [(0, 3, 8)], 60)
                a("s_add_u32 s%d, s%d, 6144" % (sT0, sT2))
                for x in a.two(12, 48, sT2, o["qf"]) + a.two(28, 48, sT0, o["qf"]): a(x)
                a("buffer_load_dwordx2 v[24:25], v49, %s, s%d offen %s" % (sr(R_WS, 4), sT3, o["qf"]))
                a(sk + ":")
            if s == e["q_c"]:
                a("s_sub_u32 s%d, s%d, 1" % (sT1, sW)); sk = a.skip_unless("lt", "s%d" % sT1, 3)
                a("s_lshl_b32 s%d, s%d, 7" % (sT0, sT1)); a.lanefn(51, a.POSU, 60, s=sT0, const=STG); a.consts(47)
                a("s_waitcnt vmcnt(0)"); a.stamp("q0_in")
                for x in a.sum8(28, 36): a(x)
                a("v_mul_f32 v%d, %s, v36" % (vCS, f32(a.QC)))
                a.centre(24, 48, vCS, 50, 47); a.q_out(48, 51); a("s_waitcnt lgkmcnt(0)")
                a(sk + ":")
                a.att_prep(0)
            if s == e["qk"]:
                a.lanefn(5, [(4, 2, 32), (1, 1, 16)], 60, const=STG); a.q_reads()
                a.zero(24, 48); a("s_waitcnt lgkmcnt(0)")
                a.qk(); ls = a.softmax()
                for x in ls: a(x)
                a("s_waitcnt lgkmcnt(0)")
                a.stamp("qk0")
            if s == e["ml"]:
                a("ds_read_b32 v36, v62"); a("s_waitcnt lgkmcnt(0)")
                for x in a.g_ops(): a(x)
                sk = a.skip_unless("lt", "s%d" % sW, 2)
                a.combine_addr(); a.m_publish(0)
                a(sk + ":")
                sk = W(2); a.p3_final_addr(); a(sk + ":")
            e3 = o["early3"]
            if e3 and s in (e3, e3 + 2, e3 + 3):
                assert e3 > e["ml"] and e3 + 2 > e["vd_c"] + 1 and e3 + 3 <= 23 and LOADER == 6
                sk = a.skip_unless("lt", "s%d" % sAI, 20)
                if s == e3:
                    mld = a.p3_addr(0); a("s_cmp_lg_u32 s%d, %d" % (sW, LOADER)); a("s_cbranch_scc0 " + sk)
                    for x in mld: a(x)
                elif s == e3 + 2:
                    w = a.lab("L_cw"); r = a.lab("L_cr")
                    a.p3_addr2(); a("s_cmp_lg_u32 s%d, %d" % (sW, LOADER)); a("s_cbranch_scc0 " + sk)
                    a(w + ":"); a("s_waitcnt vmcnt(0)"); a.check([52, 54, 55], 53); a("s_cbranch_vccnz " + r)
                    a.ool += [r + ":"] + mld + a.budget() + ["s_branch " + w]
                    a.p3_weights()
                    a("s_cmp_eq_u32 s%d, 7" % sW); a("s_cbranch_scc0 " + sk)
                    a("v_add_u32 v62, %d, v57" % a.LD_PB); a("ds_write_b128 v62, v[52:55]"); a("s_waitcnt lgkmcnt(0)")
                else:
                    a("s_cmp_eq_u32 s%d, %d" % (sW, LOADER)); a("s_cbranch_scc0 " + sk)
                    a("v_add_u32 v62, %d, v57" % a.LD_PB); a("ds_read_b128 v[52:55], v62")
                a(sk + ":")
            if s == e["preread"]:
                sk = W(2); a("s_sub_u32 s%d, s%d, 20" % (sT0, sAI)); sk2 = a.skip_unless("lt", "s%d" % sT0, 4)
                a.preread(0, o["pref"], 50)
                a.preread(1, o["pref"], 51); a.preread(2, o["pref"], 49)
                a(sk2 + ":"); a(sk + ":")
            if s >= 21:
                seg = s - 21
                for T in range(4 * seg, 4 * seg + 4): a.pv(T)
                if s < 23: issue(upto[s + 1])
                assert s < 23 or done[0] == len(order)
                if s == 22:
                    for x in a.l_write(): a(x)
                if s == 23:
                    if o["prio"]: a("s_setprio 0")
                    a("s_cmp_lt_u32 s%d, 2" % sW); a.pv_end()
        for l in (0, 1):
            cb = "L_comb_%d" % l
            a("s_cbranch_scc1 " + cb); a("s_waitcnt lgkmcnt(0)"); a("s_barrier"); a(cb + "b:")
            def comb():
                a(cb + ":")
                if l == 1: a.m_publish(1); a.stamp("ml_end")
                a.combine(l); a("s_branch " + cb + "b")
            a.aside(comb)
            if l == 0 and late:
                sk = W(LOADER); a("s_waitcnt vmcnt(0)"); a(sk + ":"); a("s_barrier")
            tb = "L_typeB_%d" % l
            nxt = "L_done" if l == 1 else "L_p1"
            a("s_cmp_lt_u32 s%d, 20" % sAI); a("s_cbranch_scc0 " + tb)
            a.p3(l)
            a("s_sub_u32 s%d, s%d, 4" % (sT0, sW))
            sk = a.skip_unless("lt", "s%d" % sT0, 3)
            a.p4b(l)
            a(sk + ":")
            a("s_branch " + nxt)
            a(tb + ":")
            lc = a.lab("L_typeC"); a("s_cmp_eq_u32 s%d, 3" % sHL); a("s_cbranch_scc0 " + lc)
            def typec():
                a(lc + ":")
                a("s_cmp_eq_u32 s%d, 6" % sW); a("s_cbranch_scc0 " + nxt)
                rl = [ph for ph in (2 * l, 2 * l + 1) if ph in o["relay"]]
                if rl:
                    if o["dual"]: sk = a.lab("L_skip"); a("s_bitcmp1_b32 s%d, 0" % sAI); a("s_cbranch_scc0 " + sk)
                    else: sk = a.skip_unless("eq", "s%d" % sAI, 21)
                    a.lanefn(11, [(0, 2, 128), (2, 4, 1 << 24)], 60)
                    for ph in rl:
                        a("s_add_u32 s%d, s%d, %d" % (sT1, sLOC, L_CAN + 4 * ph)); a.notice_poll(ph, True)
                        a.local_store("buffer_store_dword v%d, v11, %s, s%d offen" % (vL, sr(R_WS, 4), sT1))
                    a("s_waitcnt vmcnt(1)"); a("s_branch " + nxt); a(sk + ":")
                two = o["dual"] and (rl or o["dual"] == 2)
                if two and not rl: a("s_bitcmp1_b32 s%d, 0" % sAI); a("s_cbranch_scc1 " + nxt)
                if not two: a("s_cmp_eq_u32 s%d, 20" % sAI); a("s_cbranch_scc0 " + nxt)
                a("s_lshl_b32 s%d, s%d, 9" % (sT2, sX)); a("s_add_u32 s%d, s%d, s%d" % (sT2, sT2, sXPB)); a("s_add_u32 s%d, s%d, %d" % (sT2, sT2, NTC))
                a.lanefn(10, [(0, 1, 8192), (1, 5, 1 << 24)], 60)
                for ph in (2 * l, 2 * l + 1):
                    sk = a.skip_unless("eq", "s%d" % sAI, 20) if two and ph not in rl and o["dual"] < 2 else None
                    if ph % 2 == 0: a("s_add_u32 s%d, s%d, %d" % (sT1, sLOC, L_O[l] + 1568)); a.lanefn(9, [(3, 3, OB), (0, 3, 4)], 60)
                    else: a("s_add_u32 s%d, s%d, %d" % (sT1, sLOC, L_STH + 128 * l)); a.lanefn(9, [(0, 4, 4)], 60)
                    a.poll(["buffer_load_dword v%d, v9, %s, s%d offen sc1" % (12 + ph % 2, sr(R_WS, 4), sT1)], [12 + ph % 2], 14, depth=o["dw"])
                    a("buffer_store_dword v%d, v10, %s, s%d offen offset:%d sc1" % (vL, sr(R_WS, 4), sT2, 4 * ph))
                    if sk: a(sk + ":")
                a("s_waitcnt vmcnt(1)"); a("s_branch " + nxt)
            a.aside(typec)
            a.slab(l, "h", 2 * l)
            if l == 1:
                a("s_cmp_eq_u32 s%d, 7" % sW); a("s_cbranch_scc0 L_done")
                a("s_cmp_eq_u32 s%d, 0" % sX); a("s_cbranch_scc0 L_done")
                a.gather(3, pre=lambda sh: a.notice_poll(3, sh=sh), setup=lambda: (a.add_b2(), a.slice_addr(7, 8, 4)))
                a("global_store_dword v7, v28, %s" % sr(P_OUT, 2))
                a.stamp("out")
                a("s_branch L_done")
                break
            a("L_p1:")
            a.att_prep(1)
            a("s_sub_u32 s%d, s%d, 1" % (sT0, sW)); a("s_lshl_b32 s%d, s%d, 11" % (sT1, sT0)); a.lanefn(7, [(0, 6, 16)], 60, s=sT1)
            a("s_lshl_b32 s%d, s%d, 7" % (sT1, sT0)); a.lanefn(8, a.POSU, 60, s=sT1, const=a.LD_QS)
            a.slab(1, "q", 1, lazy=True)
            a.attention1()
        for x in a.ool: a(x)
        a("L_tail_end:")
        for x in a.cold: a(x)
        a("L_done:")
        if o["diag_hold"]:
            a("s_waitcnt lgkmcnt(0)"); a("s_cmp_eq_u64 s[100:101], 0"); a("s_cbranch_scc1 L_exit")
            if o["diag_a"]:
                a("s_cmp_eq_u64 s[92:93], 0"); a("s_cbranch_scc1 L_exit"); a("s_cmp_eq_u64 s[94:95], 0"); a("s_cbranch_scc1 L_exit")
                if o["diag_c"]:
                    a("s_cmp_eq_u32 s%d, 0" % sJ); a("s_cbranch_scc0 L_exit")
                    a("s_sub_u32 s94, s94, s92"); a("s_lshl_b32 s94, s94, 2")
                    a("s_sub_u32 s92, s92, s100"); a("s_sub_u32 s92, s92, 1400"); a("s_lshr_b32 s92, s92, 6"); a("s_min_u32 s92, s92, 28"); a("s_mul_i32 s92, s92, 5000")
                    a("s_sub_u32 s90, s90, s100"); a("s_lshr_b32 s90, s90, 5"); a("s_min_u32 s90, s90, 30"); a("s_mul_i32 s90, s90, 150000")
                    a("s_min_u32 s94, s94, 4900"); a("s_add_u32 s94, s94, s92"); a("s_add_u32 s94, s94, s90"); a("s_add_u32 s100, s100, s94")
                else:
                    a("s_sub_u32 s94, s94, s92"); a("s_lshl_b32 s94, s94, 3"); a("s_add_u32 s100, s100, s94")
            a("L_hold:"); a("s_memrealtime s[98:99]"); a("s_waitcnt lgkmcnt(0)"); a("s_sub_u32 s98, s98, s100")
            a("s_cmp_lt_i32 s98, %d" % o["diag_hold"]); a("s_cbranch_scc1 L_hold")
        if o["stamps"]:
            n = len(o["stamps"])
            a("s_mov_b64 exec, -1"); a("s_waitcnt vmcnt(0) lgkmcnt(0)")
            for i in range(n): a("v_writelane_b32 v12, s%d, %d" % (sST + 2 * i, i))
            a("s_getreg_b32 s%d, hwreg(4, 0, 16)" % sT0); a("s_lshl_b32 s%d, s%d, 16" % (sT1, sXCC)); a("s_or_b32 s%d, s%d, s%d" % (sT0, sT0, sT1)); a("v_writelane_b32 v12, s%d, 13" % sT0)
            a("v_writelane_b32 v12, s%d, 14" % sBUD); a("s_sub_u32 s%d, s%d, s%d" % (sT0, sXPR, sXPB)); a("s_or_b32 s%d, s%d, s%d" % (sT0, sT0, sFLAG)); a("s_lshl_b32 s%d, s%d, 16" % (sT1, sF + 4)); a("s_or_b32 s%d, s%d, s%d" % (sT0, sT0, sT1)); a("v_writelane_b32 v12, s%d, 15" % sT0)
            a("s_lshl_b32 s%d, s2, 3" % sT0); a("s_add_u32 s%d, s%d, s%d" % (sT0, sT0, sW)); a("s_lshl_b32 s%d, s%d, 6" % (sT0, sT0))
            a("s_add_u32 s%d, s%d, %d" % (sT0, sT0, STAMP_OFF))
            a.lanefn(13, [(0, 6, 4)], 60, s=sT0)
            a.exec_(0xffff)
            a("global_store_dword v13, v12, %s" % sr(P_WS, 2))
        a("L_exit:")
        a("s_endpgm")
        L = a.L
        if o["stamps"]:
            pre = ["s_mov_b64 %s, 0" % sr(sST + 2 * i, 2) for i in range(len(o["stamps"]))]
            L = pre + L
        L = [re.sub(r"L_padin(\d)", r"L_padback ; in\1", x) for x in L]
        L, nops = fix_hazards(L)
        al = r"L_(%s)" % o["align"]
        L, npad, tb = layout(L, al, ("L_tail", "L_tail_end", "L_padback", o["padstep"], o["npad"]) if o["pads"] else None)
        L = [re.sub(r"L_padback ; in(\d)", r"L_pad\1", x) for x in L]
        self.info = (nops, npad, tb)
        return L

ABOUT = """
Generated by gen/gen.py (own generator, hand-scheduled). One persistent launch, one workgroup per CU; workgroups >= 256 exit.
Workgroup = (group wg%8, head 4*group + c%4, key chunk c/4), c = wg/8. Each wave keeps 64 keys of K and V in v64..v255 for both
layers; wave 6 streams K, V, wq, wo/w1 in through an LDS ring (LDS-DMA), weights stay in LDS. All products are 2:4-sparse MFMAs
with the vector as the sparse operand (two rows) and K / V / weights as the dense one.
Per layer: x slice (80) * wq slab -> partial q | scores, softmax with the true (per-wave, then merged) maximum, PV | wo columns
(20 workgroups per group) | x slice * w1 slab (8 per group) | GELU, w2 columns. LayerNorm is applied after the product:
rstd * (x.W - mean * colsum(W)), in fp32, with mean / variance from exchanged partial sums.
Hand-offs go through d_ws: every word is set to 0xFFFFFFFF at the start of the launch (arrival words + d_debug order that before
any use) and readers repeat their loads until no word is empty. Inside a group plain stores are used only after the arrival words
have shown that all 32 workgroups run on one XCD; otherwise a second region is used with device-scope stores. Device-wide sums are
written twice; a reader takes the copy nearer to its XCD and starts after an early notice (both speed only). Every wait is bounded.
"""

def render(name=NAME + "_kernel", **kw):
    g = G(**kw); L = g.build()
    ref = open("cdna_kernels/%s.s.ref" % NAME).read().split("\n") if name.startswith(NAME) else []
    head = [x for x in ref if x.startswith(";") and "@launch" not in x and "Override" not in x and "grid=ceil" not in x]
    out = head + ["; " + x for x in ABOUT.strip().split("\n")] + [
                  "; @launch grid=(256,1,1) block=(512,1,1) lds=%d" % g.LDS,
                  '.amdgcn_target "amdgcn-amd-amdhsa--gfx950"', ".text", ".fill 64, 4, 0xbf800000", ".globl " + name, ".p2align 8", ".type %s,@function" % name, name + ":"]
    out += [x if x.endswith(":") or x.startswith(".") else "    " + x for x in L]
    out += ['.section .rodata,"a"', ".p2align 6", ".amdhsa_kernel " + name, "  .amdhsa_next_free_vgpr 256", "  .amdhsa_next_free_sgpr 102",
            "  .amdhsa_accum_offset 256", "  .amdhsa_group_segment_fixed_size 0", "  .amdhsa_kernarg_size 104", "  .amdhsa_user_sgpr_count 2",
            "  .amdhsa_user_sgpr_kernarg_segment_ptr 1", "  .amdhsa_system_sgpr_workgroup_id_x 1", "  .amdhsa_float_denorm_mode_32 3", ".end_amdhsa_kernel"]
    return "\n".join(out) + "\n", g

if __name__ == "__main__":
    kw = {}
    path = "cdna_kernels/%s.s" % NAME
    for x in sys.argv[1:]:
        k, v = x.split("=")
        if k == "out": path = v
        else: kw[k] = int(v) if v.lstrip('-').isdigit() else tuple(int(t) for t in v.split(',') if t) if ',' in v else v
    txt, g = render(**kw)
    open(path, "w").write(txt)
    print("wrote", path, "lds", g.LDS, "nops/pads/tailbytes", g.info, g.sched)
```

```python
import sys, math, struct
from asmlib import *

NAME = "interleave_layers__sliding_block_cached__dense_activation_gelu__decode"

def f32(x): return "0x%08x" % struct.unpack("<I", struct.pack("<f", x))[0]

DEF = dict(
    W=24, Wb=24, Wbb=36, Wr=0, burst_st=24, prio=3, pairs=(3, 0, 1, 2), lay=0,
    qpos=(-1, -1), qn=8,
    wpos=(0, 1), nwl=24,
    go_s=0, race_at=3, go_i=4, arr_s=8, arr_i=11, arr_c=14, q_c=18, vd_i=21, vd_c=24, warm=1, preread=25, early3=25, lag=3,
    dc=1, dw=1, dh=1, dg=1, gs=2, gd=(0, 0, 0, 0), relay=(1,), dual=1, shd=(0, 1, 0, 0), stb=2, ahead=1, qahead=1, race=1, budget=0x10000,
    lpre=2, mgap=1, split=0, pads=1, padstep=512, npad=4, l2warm=1, align='pr|comb_.b|se|p1|finb',
    wqf='nt', wlf='nt', qf='sc1 nt', pref='sc1 nt',
    stamps=None, force_global=0, strip=0, upto_ev=99, noclr=0, pol=0, diag_hold=0, diag_at='start', diag_a='', diag_b='', diag_c='')

LOC = 120832
CLR = 2208
OB = 1664
L_P1 = 26624
L_O, L_H, L_Q1 = (0, L_P1), (8 * OB, L_P1 + 8 * OB), L_P1 + 8 * OB + 6144
L_CS1, L_ST1, L_STH, L_CAN = 19456, 25600, 25856, 26112
L_Q0 = 32 * CLR; Q0S = 12416
LOC_B = 8 * LOC
XP = 0; XPS = 65536 + 512
PRB = 262144; NTC = PRB + 4096
ARR = XP + PRB + 32768
LOC0 = ARR + 8 * 512
WS_BYTES = LOC0 + 16 * LOC
STAMP_OFF = 3 << 20
P_X, P_K, P_V, P_WQ, P_WO, P_W1, P_B1, P_W2, P_B2, P_OUT, P_DBG, P_WS = 4, 6, 8, 10, 12, 16, 18, 20, 22, 24, 26, 28
sW, sX = 30, 31
R_K, R_V, R_WS, R_WQ, R_WL = 32, 36, 40, 44, 48
sC, sHL, sJ, sFLAG, sBUD, sT0, sT1, sT2, sT3, sRING, sLOC, sXCC = 52, 53, 54, 55, 56, 57, 58, 59, 60, 61, 62, 63
sF = 64
sARR, sH, sM1 = 72, 73, 74
sXPW, sXPR = 6, 7
sXPB = 8
sPAIR = 9
sST = 76
sWA, sWB, sAI = 14, 15, 3
LOADER, CTRL = 6, 5
vL, vIDX, vX0, vX1, vB, vCS = 0, 1, 2, 3, 4, 6
KB, VB = 64, 160
LAY = ((98304, 49152, 24576, 3072), (98304, 49152, 3072, 6144), (98304, 6144, 3072, 12288), (12288, 6144, 3072, 24576), (6144, 98304, 3072, 12288),
       (49152, 24576, 98304, 3072), (6144, 3072, 98304, 12288))
NST, SB = 32, 12288
ONES = "0x3f803f80"

class G:
    def __init__(self, **kw):
        assert set(kw) <= set(DEF), set(kw) - set(DEF)
        self.o = dict(DEF); self.o.update(kw)
        self.L = []; self.ool = []; self.cold = []; self.n = 0
        R = self.R = 5
        self.LD_WQ = 0; self.LD_WL = 30720; self.LD_W2 = self.LD_WL + 49152
        self.LD_RING = self.LD_W2 + 12288; self.LD_PP = self.LD_RING + R * SB
        self.LD_ML = self.LD_PP + 2048; self.LD_HX = self.LD_ML + 128; self.LD_PB = self.LD_PP + 1024; self.LD_FLAG = self.LD_HX + 768 + 128; self.LD_XB = self.LD_FLAG + 64; self.LDS = self.LD_XB + 384
        self.LD_OC = self.LD_W2; self.OCL = 12288
        self.LD_QS = self.LD_RING + 32768
        assert self.LDS <= 163840
    def __call__(self, s): self.L.extend(s.split("\n"))
    def lab(self, p="L"):
        self.n += 1; return "%s_%d" % (p, self.n)
    def stamp(self, name):
        if self.o["diag_hold"] and name == self.o["diag_at"]: self("s_memrealtime s[100:101]")
        if name == self.o["diag_a"]: self("s_memrealtime s[92:93]")
        if name == self.o["diag_b"]: self("s_memrealtime s[94:95]")
        if name == self.o["diag_c"]: self("s_memrealtime s[90:91]")
        st = self.o["stamps"]
        if st and name in st:
            i = st.index(name); self("s_memrealtime %s" % sr(sST + 2 * i, 2))
        if st and "c_" + name in st:
            i = st.index("c_" + name); self("s_memtime %s" % sr(sST + 2 * i, 2))
    def lanefn(self, dst, terms, tmp, s=None, const=0, src=vL):
        a = self; first = True
        for sh, nb, mul in terms:
            t = dst if first else tmp
            p2 = mul & (mul - 1) == 0
            if nb >= 6 - sh and src == vL:
                if sh: a("v_lshrrev_b32 v%d, %d, v%d" % (t, sh, src)); x = t
                else: x = src
            elif sh == 0: a("v_and_b32 v%d, %d, v%d" % (t, (1 << nb) - 1, src)); x = t
            else: a("v_bfe_u32 v%d, v%d, %d, %d" % (t, src, sh, nb)); x = t
            if first:
                if p2:
                    if mul > 1 or x != dst: a("v_lshlrev_b32 v%d, %d, v%d" % (dst, mul.bit_length() - 1, x))
                else: a("v_mul_u32_u24 v%d, %d, v%d" % (dst, mul, x))
            elif p2: a("v_lshl_add_u32 v%d, v%d, %d, v%d" % (dst, x, mul.bit_length() - 1, dst))
            else:
                a("v_mul_u32_u24 v%d, %d, v%d" % (tmp, mul, x)); a("v_add_u32 v%d, v%d, v%d" % (dst, tmp, dst))
            first = False
        if s is not None: a("v_add_u32 v%d, s%d, v%d" % (dst, s, dst))
        if const: a("v_add_u32 v%d, %d, v%d" % (dst, const, dst))
    def srd(self, r, p, nbytes, off=None):
        a = self
        if off is None: a("s_mov_b32 s%d, s%d" % (r, p)); a("s_mov_b32 s%d, s%d" % (r + 1, p + 1))
        else: a("s_add_u32 s%d, s%d, s%d" % (r, p, off)); a("s_addc_u32 s%d, s%d, 0" % (r + 1, p + 1))
        a("s_mov_b32 s%d, %s" % (r + 2, nbytes)); a("s_mov_b32 s%d, 0x20000" % (r + 3))
    def skip_unless(self, cmp, a_, b_):
        l = self.lab("L_skip"); self("s_cmp_%s_u32 %s, %s" % (cmp, a_, b_)); self("s_cbranch_scc0 " + l); return l
    def exec_(self, m):
        if m == -1: self("s_mov_b64 exec, -1")
        elif m < (1 << 31): self("s_mov_b64 exec, 0x%x" % m)
        else: self("s_mov_b32 exec_lo, 0x%x" % (m & 0xffffffff)); self("s_mov_b32 exec_hi, 0x%x" % (m >> 32))
    def flag_cmp(self): self("s_cmp_eq_u32 s%d, 0" % sFLAG)
    def oob(self, dst, cmp, n, tmp):
        a = self; a("v_mov_b32 v%d, 0x7f000000" % tmp); a("v_cmp_%s_u32 vcc, %d, v%d" % (cmp, n, vL)); a("v_cndmask_b32 v%d, v%d, v%d, vcc" % (dst, dst, tmp))
    def aside(self, fn):
        keep = self.L; self.L = []; fn(); blk = self.L; self.L = keep; self.ool += blk
    def local_store(self, ins, pre=False):
        a = self; l = a.lab("L_gs"); b = a.lab("L_gb")
        if not pre: a.flag_cmp()
        a("s_cbranch_scc1 " + l); a(ins); a(b + ":")
        a.ool += [l + ":", ins + " sc1", "s_branch " + b]
    def budget(self):
        return ["s_sub_u32 s%d, s%d, 1" % (sBUD, sBUD), "s_cbranch_scc1 L_done"]
    def check(self, rs, t):
        a = self; rs = list(rs)
        if len(rs) == 1: a("v_cmp_eq_u32 vcc, -1, v%d" % rs[0]); return
        if len(rs) == 2: a("v_max_u32 v%d, v%d, v%d" % (t, rs[0], rs[1])); rs = []
        else: a("v_max3_u32 v%d, v%d, v%d, v%d" % (t, rs[0], rs[1], rs[2])); rs = rs[3:]
        while len(rs) >= 2: a("v_max3_u32 v%d, v%d, v%d, v%d" % (t, t, rs[0], rs[1])); rs = rs[2:]
        if rs: a("v_max_u32 v%d, v%d, v%d" % (t, t, rs[0]))
        a("v_cmp_eq_u32 vcc, -1, v%d" % t)
    def poll(self, loads, rs, t, shadow=None, depth=1):
        a = self; w = a.lab("L_pw"); r = a.lab("L_pr"); n = len(loads)
        for d in range(depth - 1):
            for x in loads: a(x)
            if d == 0 and shadow: shadow()
            else: a("s_sleep %d" % (2 if depth == 2 else 1))
        if depth == 1 and shadow:
            for x in loads: a(x)
            shadow(); a("s_branch " + w)
        a(r + ":")
        for x in loads: a(x)
        for x in a.budget(): a(x)
        a(w + ":")
        a("s_waitcnt vmcnt(%d)" % (n * (depth - 1)))
        a.check(rs, t)
        a("s_cbranch_vccnz " + r)

    def dma_loop(self, n, lds, R, vo, so, step, flags, pace, alt=None):
        a = self; k = len(so); l = a.lab("L_dma")
        for i, x in enumerate(so):
            if isinstance(x, int): a("s_mov_b32 s%d, %d" % (sT0 + i, x - 1024 * i))
            else: x(sT0 + i)
        if alt: a("s_mov_b32 s%d, %s" % (sT3, step)); alt ^= int(step); step = "s%d" % sT3
        a("s_mov_b32 m0, %d" % lds)
        a(l + ":")
        if pace: a("s_waitcnt vmcnt(%d)" % (pace - k // 2 - 1))
        for i in range(k):
            a("buffer_load_dwordx4 v%d, %s, s%d offen offset:%d %s lds" % (vo[i], sr(R, 4), sT0 + i, 1024 * i, flags))
        for i in range(k): a("s_add_u32 s%d, s%d, %s" % (sT0 + i, sT0 + i, step))
        if alt: a("s_xor_b32 s%d, s%d, %d" % (sT3, sT3, alt))
        a("s_add_u32 m0, m0, %d" % (1024 * k))
        a("s_cmp_lg_u32 m0, %d" % (lds + 1024 * k * n)); a("s_cbranch_scc1 " + l)
    def stage(self, s):
        return (s % 16) // 8, (s % 8) // 2, s % 2
    def block(self, b, pace):
        a = self; o = a.o
        if isinstance(b, int):
            t, p, h = a.stage(b); K = b < 16
            Sa, Sb, Sw, Sj = LAY[o["lay"]]; alt = (Sb if K else Sa) - Sw
            so = [(4 * t + p) * 196608 + h * (Sa if K else Sb) + 128 * i + 2048 for i in range(3)]
            a.dma_loop(4, a.LD_RING + (b % a.R) * SB, R_K if K else R_V, (5 if K else 7,) * 3, so, str(Sw), "nt", pace, None if alt == Sw else alt & 0xffffffff)
        elif b[0] == "q":
            n0, cnt = (0, o["qn"]) if b == "q0" else (o["qn"], 10 - o["qn"])
            a.dma_loop(cnt, a.LD_WQ + n0 * 3072, R_WQ, (vX0,) * 3, [n0 * 98304 + 128 * i + 2048 for i in range(3)], "98304", o["wqf"], pace)
        else:
            n, cnt = a.wblk[b]
            if b[0] == "r": pace = o["Wr"] or None
            f0 = lambda d: a("s_mul_i32 s%d, s%d, %d" % (d, sWA, n))
            f1 = lambda d: a("s_add_u32 s%d, s%d, s%d" % (d, sT0, sWB))
            a.dma_loop(cnt, a.LD_WL + n * 2048, R_WL, (vX1, vX1), [f0, f1], "s%d" % sWA, o["wlf"], pace)
    def reads(self, s):
        a = self; t, p, h = a.stage(s); slot = (s % a.R) * SB
        for seg in range(3):
            if s < 16:
                d = KB + 24 * (2 * t + h) + 8 * seg
                for i in range(2): a("ds_read_b128 %s, v%d offset:%d" % (vr(d + 4 * i, 4), 8 + i, slot + 1024 * seg))
            else:
                for tt in range(4): a("ds_read_b64_tr_b16 %s, v%d offset:%d" % (vr(VB + 8 * (4 * seg + tt) + 2 * (2 * t + h), 2), 8 + tt, slot + 1024 * seg))
    def plan(self):
        o = self.o; order = []
        qp, wp, n0 = list(o["qpos"]), list(o["wpos"]), o["nwl"] // 2
        split = lambda tag, lo, hi, k: {tag + str(i): (lo + (hi - lo) * i // k, (hi - lo) * (i + 1) // k - (hi - lo) * i // k) for i in range(k)}
        self.wblk = dict(split("w", 0, n0, len(wp)), **split("r", n0, 24, 2))
        for s in range(-1, NST):
            if s >= 0: order.append(s)
            order += ["q%d" % i for i, p in enumerate(qp) if p == s] + ["w%d" % i for i, p in enumerate(wp) if p == s and n0 > 0]
        if 0 <= n0 < 23: order += ["r0", "r1"]
        size = lambda b: 12 if isinstance(b, int) else 3 * o["qn"] if b == "q0" else 30 - 3 * o["qn"] if b == "q1" else 2 * self.wblk[b][1]
        upto = []; k = 0
        for s in range(NST):
            p = order.index(s); k = max(k, p + 1)
            lead = o["Wbb"] if s + 2 >= o["burst_st"] or s == o["q_c"] + 2 else o["Wb"]
            while k < len(order) and sum(map(size, order[p + 1:k])) < lead:
                if isinstance(order[k], int) and order[k] - self.R + 1 > s - 1 and order[k] >= self.R: break
                k += 1
            upto.append(k)
        wait = [sum(map(size, order[order.index(s) + 1:upto[s]])) for s in range(NST)]
        return order, upto, wait

    def gather(self, ph, pre=None, setup=None):
        a = self; w = a.lab("L_gw"); r = a.lab("L_gr"); ok = a.lab("L_gk")
        def prep():
            for n in range(4): a("s_add_u32 s%d, s%d, %d" % (sT0 + n, sXPR, ph * XPS + n * 16384))
            a.zero(36, 40)
            for i in range(4): a("v_mov_b32_dpp v%d, v%d quad_perm:[0,1,2,3] row_mask:0x%x bank_mask:0xf" % (36 + i, vX0 + i % 2, 3 if i < 2 else 12))
        if pre and a.o["shd"][ph]: pre(lambda: (setup() if setup else None, prep()))
        else:
            if setup: setup()
            prep()
            if pre: pre(None)
        d = a.o["dg"] if pre else 1; k = 4 * (d - 1)
        def loads():
            for n in range(4): a("buffer_load_dwordx4 %s, v5, %s, s%d offen sc1" % (vr(12 + 4 * n, 4), sr(R_WS, 4), sT0 + n))
        def sums(waits):
            if waits: a("s_waitcnt vmcnt(%d)" % (k + 3))
            a("v_pk_add_f32 v[28:29], v[12:13], v[36:37]"); a("v_pk_add_f32 v[30:31], v[14:15], v[38:39]")
            if waits: a("s_waitcnt vmcnt(%d)" % (k + 2))
            a("v_pk_add_f32 v[28:29], v[28:29], v[16:17]"); a("v_pk_add_f32 v[30:31], v[30:31], v[18:19]")
            if waits: a("s_waitcnt vmcnt(%d)" % (k + 1))
            a("v_pk_add_f32 v[28:29], v[28:29], v[20:21]"); a("v_pk_add_f32 v[30:31], v[30:31], v[22:23]")
            if waits: a("s_waitcnt vmcnt(%d)" % k)
            a("v_pk_add_f32 v[28:29], v[28:29], v[24:25]"); a("v_pk_add_f32 v[30:31], v[30:31], v[26:27]")
            if waits: a("v_pk_add_f32 v[32:33], v[28:29], v[30:31]"); a("v_cmp_u_f32 vcc, v32, v33")
            a("v_permlane32_swap_b32 v28, v30"); a("v_permlane32_swap_b32 v29, v31")
        for _ in range(d - 1): loads(); a("s_sleep %d" % a.o["gs"])
        a(w + ":")
        loads()
        for x in a.budget(): a(x)
        a("s_and_b32 s%d, s%d, 31" % (sM1, sBUD))
        sums(True)
        a("s_cbranch_vccnz " + r)
        a(ok + ":")
        a("v_pk_add_f32 v[28:29], v[28:29], v[30:31]")
        a("v_cvt_pk_bf16_f32 v28, v28, v29")
        def slow():
            a(r + ":"); a("s_cbranch_scc1 " + w)
            a("s_waitcnt vmcnt(0)"); a.check(range(12, 28), 32); a("s_cbranch_vccnz " + w); sums(False); a("s_branch " + ok)
        a.aside(slow)
    def preread(self, part, fl, d):
        a = self; lo, hi = ((0, L_P1), (L_P1, L_Q1), (L_Q1, L_Q1 + 24576))[part]
        a("s_sub_u32 s%d, s%d, 20" % (sT0, sAI)); a("s_lshl_b32 s%d, s%d, 6" % (sT0, sT0)); a("v_add_u32 v%d, s%d, v%d" % (d, sT0, vL))
        a("v_min_u32 v%d, %d, v%d" % (d, (hi - lo) // 128 - 1, d)); a("v_lshlrev_b32 v%d, 7, v%d" % (d, d)); a("s_add_u32 s%d, s%d, %d" % (sT0, sLOC, lo))
        a("buffer_load_dword v%d, v%d, %s, s%d offen %s" % (d, d, sr(R_WS, 4), sT0, fl))
    def unpack_x(self):
        self("v_lshlrev_b32 v%d, 16, v28" % vX0); self("v_and_b32 v%d, 0xffff0000, v28" % vX1)
    def add_b2(self):
        a = self
        a("v_lshlrev_b32 v60, 16, v%d" % vB); a("v_add_f32 v%d, v%d, v60" % (vX0, vX0))
        a("v_and_b32 v60, 0xffff0000, v%d" % vB); a("v_add_f32 v%d, v%d, v60" % (vX1, vX1))
    def q_base(self, l, dst, st, kind="q"):
        a = self
        if kind == "h":
            a("s_add_u32 s%d, s%d, %d" % (dst, sLOC, L_H[l])); a("s_add_u32 s%d, s%d, %d" % (st, sLOC, L_STH + 128 * l))
        elif l == 0:
            a("s_mul_i32 s%d, s%d, %d" % (dst, sHL, Q0S)); a("s_add_u32 s%d, s%d, s%d" % (dst, dst, sLOC)); a("s_add_u32 s%d, s%d, %d" % (dst, dst, L_Q0))
            a("s_add_u32 s%d, s%d, 12288" % (st, dst))
        else:
            a("s_mul_i32 s%d, s%d, 6144" % (dst, sHL)); a("s_add_u32 s%d, s%d, s%d" % (dst, dst, sLOC)); a("s_add_u32 s%d, s%d, %d" % (dst, dst, L_Q1))
            a("s_lshl_b32 s%d, s%d, 6" % (st, sHL)); a("s_add_u32 s%d, s%d, s%d" % (st, st, sLOC)); a("s_add_u32 s%d, s%d, %d" % (st, st, L_ST1))
    def slice_addr(self, dst, unit, hi):
        a = self
        a("v_and_b32 v60, 31, v%d" % vL); a("v_min_u32 v60, 19, v60"); a("s_mul_i32 s%d, s%d, %d" % (sT0, sJ, 20 * unit))
        a.lanefn(dst, [(5, 1, hi)], 61, s=sT0); a("v_lshl_add_u32 v%d, v60, %d, v%d" % (dst, unit.bit_length() - 1, dst))
    def p1_slice_pre(self, l, kind="q"):
        a = self
        a("v_and_b32 v60, 31, v%d" % vL); a("v_cmp_gt_u32 %s, 20, v60" % sr(sF, 2)); a("v_min_u32 v60, 19, v60")
        a.lanefn(35, [(5, 1, 4)], 61, const=a.LD_XB); a("v_lshl_add_u32 v35, v60, 3, v35")
        a.q_base(l, sF + 2, sF + 3, kind)
        a("s_lshl_b32 s%d, s%d, 3" % (sT0, sJ)); a.lanefn(34, [(5, 1, 4)], 61, s=sT0)
        a("v_and_b32 v60, 31, v%d" % vL); a("v_mov_b32 v61, 0x7f000000"); a("v_cmp_ne_u32 vcc, 31, v60"); a("v_cndmask_b32 v34, v34, v61, vcc")
        a("v_mov_b32 v61, %s" % ONES)
    def p1_slice_write(self):
        self("ds_write_b32 v35, v28"); self("s_waitcnt lgkmcnt(0)")
    def p1_slice_stats(self, bar=0):
        a = self
        a("v_cndmask_b32 v29, 0, v28, %s" % sr(sF, 2))
        a("v_dot2_f32_bf16 v33, v29, v61, 0"); a("v_dot2_f32_bf16 v32, v29, v29, 0")
        a.unpack_x(); a.flag_cmp()
        if bar == 1: a("s_waitcnt lgkmcnt(0)"); a("s_barrier")
        a("v_permlane32_swap_b32 v33, v32"); a("v_add_f32 v33, v33, v32")
        if bar == 2: a("s_waitcnt lgkmcnt(0)"); a("s_barrier")
        for k in (8, 4, 2, 1): a("v_add_f32_dpp v33, v33, v33 row_ror:%d row_mask:0xf bank_mask:0xf" % k)
        a("v_add_f32_dpp v33, v33, v33 row_bcast:15 row_mask:0xa bank_mask:0xf")
        a.local_store("buffer_store_dword v33, v34, %s, s%d offen" % (sr(R_WS, 4), sF + 3), pre=True)
        a("s_waitcnt vmcnt(1)")
    def p1_prefetch(self, l, kind, ar):
        a = self
        base, seg, rb = (a.LD_WQ, 1024, (128, 256, 512, 3072, 6144, 12288, 24576)) if kind == "q" else (a.LD_WL, 128, (384, 1024, 2048, 4096, 8192, 16384, 32768))
        a("s_lshr_b32 s%d, s%d, 1" % (sT0, sW)); a("s_mul_i32 s%d, s%d, %d" % (sT0, sT0, seg)); a("s_and_b32 s%d, s%d, 1" % (sT1, sW))
        a("s_lshl_b32 s%d, s%d, 6" % (sT1, sT1)); a("s_add_u32 s%d, s%d, s%d" % (sT0, sT0, sT1))
        a.lanefn(18, [(5, 1, rb[4]), (3, 1, rb[3]), (4, 1, rb[2]), (2, 1, rb[0]), (0, 2, 8)], 60, s=sT0, const=base)
        a.lanefn(19, [(3, 1, rb[3]), (4, 1, rb[2]), (2, 1, rb[0]), (0, 2, 8), (5, 1, 32)], 60, s=sT0, const=base + rb[6])
        for t in range(2):
            for u in range(4): a("ds_read_b64_tr_b16 %s, v18 offset:%d" % (vr(28 + 8 * t + 2 * u, 2), (u // 2) * rb[5] + (u % 2) * rb[1] + 32 * t))
        for u in range(2): a("ds_read_b64_tr_b16 %s, v19 offset:%d" % (vr(24 + 2 * u, 2), u * rb[1]))
        a.lanefn(49, [(4, 2, 32), (1, 1, 16), (3, 1, 192)], 60, const=a.LD_XB); a.lanefn(50, [(1, 1, 16), (3, 1, 192)], 60, const=a.LD_XB + 128)
        a("v_mov_b32 v60, %d" % (a.LD_XB + 160)); a("v_and_b32 v51, 5, v%d" % vL)
        a("v_cmp_eq_u32 vcc, 0, v51"); a("v_cndmask_b32 v%d, v60, v49, vcc" % ar); a("v_cmp_eq_u32 vcc, 4, v51"); a("v_cndmask_b32 v%d, v60, v49, vcc" % (ar + 1))
        a("v_lshrrev_b32 v49, 2, v%d" % vL); a("v_and_b32 v49, 12, v49"); a("v_cmp_eq_u32 vcc, v49, v51"); a("v_cndmask_b32 v48, v60, v50, vcc")
        a.zero(44, 48)
        a("s_lshr_b32 s%d, s%d, 1" % (sT0, sW)); a("s_lshl_b32 s%d, s%d, 11" % (sT0, sT0)); a("s_lshl_b32 s%d, s%d, 1" % (sT1, sT1)); a("s_add_u32 s%d, s%d, s%d" % (sT0, sT0, sT1))
        a("s_lshl_b32 s%d, s%d, 8" % (sT1, sJ)); a("s_add_u32 s%d, s%d, s%d" % (sT0, sT0, sT1))
        a.lanefn(ar + 2, [(0, 5, 4), (5, 1, 6144 if (l, kind) == (0, "q") else 1 << 30)], 60, s=sT0)
        if (l, kind) == (0, "h"): a("v_xor_b32 v49, 0x40000000, v%d" % (ar + 2))
        a.q_base(l, sT2, sT3, kind)
    def p1_mat(self, l, kind, ar):
        a = self
        a("ds_read_b128 v[12:15], v%d" % ar); a("ds_read_b128 v[16:19], v%d" % (ar + 1)); a("ds_read_b128 v[20:23], v48")
        for t in range(3):
            a("s_waitcnt lgkmcnt(%d)" % (2 - t)); a("v_smfmac_f32_16x16x64_bf16 v[44:47], %s, %s, v%d" % (vr(12 + 4 * t, 4), vr((28, 36, 24)[t], 8), vIDX))
        if kind == "c": a("s_add_u32 s%d, s%d, %d" % (sT3, sLOC, L_CS1))
        a.flag_cmp()
        a("v_add_f32 v12, v44, v46")
        a.local_store("buffer_store_dword v12, v%d, %s, s%d offen" % (49 if kind == "c" else ar + 2, sr(R_WS, 4), sT3 if kind == "c" else sT2), pre=True)
        if kind == "c": a.zero(44, 48)

    def zero(self, lo, hi):
        for r in range(lo, hi, 2): self("v_mov_b64 v[%d:%d], 0" % (r, r + 1))
    POS = [(4, 2, 32), (1, 1, 16), (2, 2, 4), (0, 1, 2)]
    POSU = [(2, 2, 32), (5, 1, 16), (0, 2, 4), (4, 1, 2)]
    def two(self, src, ad, so, fl="sc1", off=0):
        return ["buffer_load_dwordx4 %s, v%d, %s, s%d offen offset:%d %s" % (vr(src + 4 * n, 4), ad, sr(R_WS, 4), so, off + 1024 * n, fl) for n in range(2)]
    def sum8(self, src, t):
        return ["v_pk_add_f32 %s, %s, %s" % (vr(t, 2), vr(src, 2), vr(src + 4, 2)), "v_pk_add_f32 %s, %s, %s" % (vr(t + 2, 2), vr(src + 2, 2), vr(src + 6, 2)),
                "v_permlane32_swap_b32 v%d, v%d" % (t, t + 2), "v_permlane32_swap_b32 v%d, v%d" % (t + 1, t + 3),
                "v_pk_add_f32 %s, %s, %s" % (vr(t, 2), vr(t, 2), vr(t + 2, 2)), "v_permlane16_swap_b32 v%d, v%d" % (t, t + 1), "v_add_f32 v%d, v%d, v%d" % (t, t, t + 1)]
    def centre(self, st, m, cs, u, k2=60, src=12):
        a = self; sm = a.sum8(src, 20)
        red = lambda k, s0: ["v_add_f32_dpp v%d, v%d, v%d row_ror:%d row_mask:0xf bank_mask:0xf" % (m + i, s0 + i, s0 + i, k) for i in (0, 1)]
        for x in red(4, st) + sm[:2] + red(2, m) + sm[2:4] + red(1, m) + sm[4:5]: a(x)
        a("v_mul_f32 v%d, v%d, v60" % (m, m)); a("v_fma_f32 v%d, v%d, v%d, v61" % (m + 1, m + 1, k2)); a(sm[5])
        a("v_fma_f32 v%d, -v%d, v%d, v%d" % (m + 1, m, m, m + 1)); a(sm[6]); a("v_max_f32 v%d, v%d, v61" % (m + 1, m + 1)); a("v_mul_f32 v%d, v%d, v%d" % (u, cs, m))
        a("v_rsq_f32 v%d, v%d" % (m + 1, m + 1)); a("v_cmp_u_f32 vcc, v20, v20"); a("v_sub_f32 v20, v20, v%d" % u)
    QC = 192 ** -0.5 * math.log2(math.e)
    def consts(self, k2=None):
        c = self.QC if k2 else 1.0
        self("v_mov_b32 v60, %s" % f32(1.0 / 640 / c)); self("v_mov_b32 v61, %s" % f32(1e-5 / c / c))
        if k2: self("v_mov_b32 v%d, %s" % (k2, f32(1.0 / 640 / c / c)))
    def fetch(self, ad, so, sad, sso, st, m, cs, u, shadow, depth, ahead, tag, k2=60, src=12):
        a = self; two = a.two(src, ad, so); sm = a.sum8(src, 20)
        a.poll(["buffer_load_dwordx2 %s, v%d, %s, s%d offen sc1" % (vr(st, 2), sad, sr(R_WS, 4), sso)] + two, [st, st + 1], 20, shadow=shadow, depth=depth)
        r = a.lab("L_hr"); ok = a.lab("L_hk"); a.stamp(tag)
        if ahead:
            for x in two: a(x)
        a.centre(st, m, cs, u, k2, src); a("s_cbranch_vccnz " + r)
        a(ok + ":")
        def slow():
            ex = a.lab("L_hx")
            a(r + ":")
            for x in two + a.budget(): a(x)
            a("s_and_b32 s%d, s%d, 31" % (sF, sBUD)); a("s_cbranch_scc0 " + ex); a("s_waitcnt vmcnt(%d)" % (2 if ahead else 0))
            for x in sm: a(x)
            a("v_cmp_u_f32 vcc, v20, v20"); a("v_sub_f32 v20, v20, v%d" % u); a("s_cbranch_vccnz " + r); a("s_branch " + ok)
            a(ex + ":"); a("s_waitcnt vmcnt(0)"); a.check(range(src, src + 8), 20); a("s_cbranch_vccnz " + r)
            for x in sm: a(x)
            a("v_sub_f32 v20, v20, v%d" % u); a("s_branch " + ok)
        a.aside(slow)
    def q_out(self, m, ad):
        a = self
        a("v_mul_f32 v20, v20, v%d" % (m + 1)); a("v_cvt_pk_bf16_f32 v20, v20, v20"); a("ds_write_b16 v%d, v20" % ad)
    def qk(self, drain=False):
        a = self
        for g in range(4):
            for k in range(3):
                a("v_smfmac_f32_16x16x64_bf16 %s, %s, %s, v%d" % (vr(24 + 4 * g, 4), vr(12 + 4 * k, 4), vr(KB + 24 * g + 8 * k, 8), vIDX))
        a.stamp("qk_iss")
        sel = lambda g: a("v_mov_b32_dpp v24, v%d quad_perm:[0,1,2,3] row_mask:0x%x bank_mask:0xf" % (24 + 4 * g, 1 << g))
        for g in range(3):
            a("v_add_f32 v%d, v%d, v%d" % (24 + 4 * g, 24 + 4 * g, 26 + 4 * g))
            if drain and g == 0: a("s_waitcnt vmcnt(0)")
        a("v_max3_f32 v61, v24, v28, v32"); sel(1)
        a("v_add_f32 v36, v36, v38"); a("v_max_f32 v61, v61, v36"); sel(2)
        for k in (8, 4, 2, 1):
            a("v_max_f32_dpp v61, v61, v61 row_ror:%d row_mask:0xf bank_mask:0xf" % k)
            if k == 8: a("s_nop 0"); sel(3)
    def att_prep(self, l):
        a = self
        a("s_lshl_b32 s%d, s%d, 7" % (sT0, sW)); a("s_add_u32 s%d, s%d, %d" % (sT0, sT0, a.LD_PB))
        a.lanefn(58, a.POS, 60, s=sT0)
        a.lanefn(61, [(4, 2, 32), (1, 1, 16)], 60, s=sT0); a.lanefn(62, [(2, 2, 2), (0, 1, 1)], 60); a("v_mov_b32 v60, %d" % (a.LD_XB + 160))
        for v in range(6):
            a("v_cmp_eq_u32 vcc, %d, v62" % v); a("v_cndmask_b32 v%d, v60, v61, vcc" % (52 + v))
        a("s_lshl_b32 s%d, s%d, 2" % (sT1, sW)); a("s_add_u32 s%d, s%d, %d" % (sT1, sT1, a.LD_ML + 64 * l)); a("v_mov_b32 v60, s%d" % sT1)
        a.lanefn(59, [(0, 6, 4)], 61, const=a.LD_PP + 512); a("v_cmp_eq_u32 vcc, 63, v%d" % vL); a("v_cndmask_b32 v59, v59, v60, vcc")
        a.lanefn(62, [(0, 3, 4)], 61, const=a.LD_ML + 64 * l)
        a("s_lshl_b32 s%d, s%d, 10" % (sT0, sW)); a.lanefn(63, [(0, 6, 16)], 61, s=sT0, const=a.LD_OC + a.OCL * l)
    def softmax(self):
        a = self
        a("v_sub_f32 v36, v24, v61"); a("ds_write_b32 v59, v61"); a("v_exp_f32 v36, v36")
        a.stamp("mx")
        a("v_cvt_pk_bf16_f32 v39, v36, v36"); a("ds_write_b16 v58, v39")
        for v in range(6): a("ds_read_b128 %s, v%d" % (vr(12 + 4 * v, 4), 52 + v))
        return ["v_add_f32_dpp v38, v36, v36 row_ror:8 row_mask:0xf bank_mask:0xf"] + ["v_add_f32_dpp v38, v38, v38 %s bank_mask:0xf" % k for k in
                ("row_ror:4 row_mask:0xf", "row_ror:2 row_mask:0xf", "row_ror:1 row_mask:0xf", "row_bcast:15 row_mask:0xa")] + ["v_add_f32_dpp v48, v38, v38 row_bcast:31 row_mask:0x8 bank_mask:0xf"]
    def pv(self, T):
        self("v_smfmac_f32_16x16x64_bf16 %s, %s, %s, v%d" % (vr(40 + 4 * (T // 6), 4), vr(12 + 4 * (T % 6), 4), vr(VB + 8 * T, 8), vIDX))
    def g_ops(self):
        return ["v_max_f32_dpp v37, v36, v36 row_ror:4 row_mask:0xf bank_mask:0xf", "v_max_f32_dpp v37, v37, v37 row_ror:2 row_mask:0xf bank_mask:0xf",
                "v_max_f32_dpp v37, v37, v37 row_ror:1 row_mask:0xf bank_mask:0xf", "v_sub_f32 v39, v61, v37", "v_exp_f32 v39, v39"]
    def pv_end(self):
        a = self
        a("v_add_f32_dpp v48, v40, v42 quad_perm:[0,1,2,3] row_mask:0x7 bank_mask:0xf"); a("v_add_f32 v49, v41, v43"); a("v_pk_add_f32 v[50:51], v[44:45], v[46:47]")
        for r in (48, 50): a("v_pk_mul_f32 %s, %s, v[38:39] op_sel:[0,1] op_sel_hi:[1,1]" % (vr(r, 2), vr(r, 2)))
        a("ds_write_b128 v63, v[48:51]")
    def m_publish(self, l):
        a = self
        a("s_mov_b32 s%d, %d" % (sT1, L_O[l]))
        a.local_store("buffer_store_dword v37, v4, %s, s%d offen" % (sr(R_WS, 4), sT1))
    def combine_addr(self):
        a = self
        a("s_lshl_b32 s%d, s%d, 3" % (sT0, sW)); a.lanefn(2, [(0, 6, 16)], 61, s=sT0, const=a.LD_OC)
        a("v_mov_b32 v60, %d" % (a.LD_OC + 1008)); a("v_cmp_le_u32 vcc, 48, v%d" % vL); a("v_cndmask_b32 v2, v2, v60, vcc")
        a("s_lshr_b32 s%d, s%d, 1" % (sT0, sJ)); a("s_lshl_b32 s%d, s%d, 2" % (sT0, sT0)); a("s_and_b32 s%d, s%d, 1" % (sT1, sJ))
        a("s_add_u32 s%d, s%d, s%d" % (sT0, sT0, sT1))
        a("s_lshl_b32 s%d, s%d, 4" % (sT1, sT0)); a("s_lshl_b32 s%d, s%d, 3" % (sT0, sT0))
        a.lanefn(3, [(3, 2, 256), (2, 1, 32), (0, 2, 4)], 61, s=sT1)
        a.lanefn(60, [(3, 1, 256), (1, 1, 128), (2, 1, 16), (0, 1, 4)], 61, s=sT0, const=1024)
        a("v_cmp_gt_u32 vcc, 32, v%d" % vL); a("v_cndmask_b32 v3, v60, v3, vcc")
        a("s_lshl_b32 s%d, s%d, 1" % (sT0, sHL)); a("s_add_u32 s%d, s%d, s%d" % (sT0, sT0, sW)); a("s_mul_i32 s%d, s%d, %d" % (sT0, sT0, OB))
        a("s_add_u32 s%d, s%d, s%d" % (sT0, sT0, sLOC)); a("v_add_u32 v3, s%d, v3" % sT0)
        a.oob(3, "le", 48, 60)
        a("s_lshl_b32 s%d, s%d, 2" % (sT1, sJ)); a("s_add_u32 s%d, s%d, s%d" % (sT0, sT0, sT1)); a("s_add_u32 s%d, s%d, 1536" % (sT0, sT0)); a("v_mov_b32 v4, s%d" % sT0)
        a.oob(4, "ne", 48, 60)
    def combine(self, l):
        a = self
        a("s_mov_b32 s%d, %d" % (sT0, L_O[l])); a.flag_cmp()
        a("s_waitcnt lgkmcnt(0)"); a("s_barrier")
        if a.o["stamps"] and ("b2_%d" % l in a.o["stamps"] or "c_b2_%d" % l in a.o["stamps"]): a.stamp("b2_%d" % l); a("s_waitcnt lgkmcnt(0)")
        for n in range(4): a("ds_read2st64_b64 %s, v2 offset0:%d offset1:%d" % (vr(12 + 4 * n, 4), a.OCL // 512 * l + 4 * n, a.OCL // 512 * l + 4 * n + 2))
        a("s_waitcnt lgkmcnt(2)")
        a("v_pk_add_f32 v[12:13], v[12:13], v[14:15]"); a("v_pk_add_f32 v[16:17], v[16:17], v[18:19]"); a("v_pk_add_f32 v[12:13], v[12:13], v[16:17]")
        a("s_waitcnt lgkmcnt(0)")
        a("v_pk_add_f32 v[20:21], v[20:21], v[22:23]"); a("v_pk_add_f32 v[24:25], v[24:25], v[26:27]"); a("v_pk_add_f32 v[12:13], v[12:13], v[20:21]")
        a("v_pk_add_f32 v[12:13], v[12:13], v[24:25]")
        a("v_cvt_pk_bf16_f32 v14, v12, v13"); a("v_min_u32 v14, -2, v14")
        a.local_store("buffer_store_dword v14, v3, %s, s%d offen" % (sr(R_WS, 4), sT0), pre=True)
        a.local_store("buffer_store_dword v12, v4, %s, s%d offen offset:32" % (sr(R_WS, 4), sT0), pre=True)
        a.stamp("o_pub%d" % l)

    def notice_poll(self, ph, direct=False, sh=None):
        a = self
        if ph in a.o["relay"] and not direct:
            a("s_lshl_b32 s%d, s%d, 7" % (sM1, sHL)); a("s_add_u32 s%d, s%d, s%d" % (sM1 + 1, sLOC, sM1)); a("s_add_u32 s%d, s%d, %d" % (sM1 + 1, sM1 + 1, L_CAN + 4 * ph))
            a("v_mov_b32 v9, 0")
            a.poll(["buffer_load_dword v12, v9, %s, s%d offen sc1" % (sr(R_WS, 4), sM1 + 1)], [12], 13, depth=2 if sh else a.o["dc"], shadow=sh)
            a.stamp("can%d" % ph)
            return
        a("s_add_u32 s%d, s%d, %d" % (sM1 + 1, sXPR, NTC + 4 * ph)); a.lanefn(9, [(0, 3, 512)], 60)
        a.poll(["buffer_load_dword v12, v9, %s, s%d offen sc1" % (sr(R_WS, 4), sM1 + 1)], [12], 13, depth=2 if sh else a.o["dc"], shadow=sh)
        if not direct: a.stamp("can%d" % ph)
        if a.o["gd"][ph]: a("s_sleep %d" % a.o["gd"][ph])
    def p3_addr(self, l):
        a = self
        a("s_mul_i32 s%d, s%d, %d" % (sM1, sW, OB)); a("s_add_u32 s%d, s%d, s%d" % (sM1, sM1, sLOC)); a("s_add_u32 s%d, s%d, %d" % (sM1, sM1, L_O[l]))
        a.lanefn(56, [(0, 3, 4)], 53); a.lanefn(62, [(4, 2, 8)], 53)
        return ["buffer_load_dword v52, v56, %s, s%d offen offset:1536 sc1" % (sr(R_WS, 4), sM1), "buffer_load_dwordx2 v[54:55], v62, %s, s%d offen offset:1536 sc1" % (sr(R_WS, 4), sM1)]
    def p3_addr2(self):
        a = self
        a("v_lshlrev_b32 v57, 4, v%d" % vL); a("v_lshlrev_b32 v58, 3, v%d" % vL)
        a("s_mul_i32 s%d, s%d, 6144" % (sT0, sW)); a("s_add_u32 s%d, s%d, %d" % (sT0, sT0, a.LD_WL))
        a.lanefn(59, [(2, 4, 64), (4, 1, 32), (0, 2, 8)], 53, s=sT0); a("v_xor_b32 v60, 32, v59")
        a("s_lshl_b32 s%d, s%d, 8" % (sT0, sW)); a("s_add_u32 s%d, s%d, %d" % (sT0, sT0, a.LD_PP)); a("v_lshl_add_u32 v61, v%d, 2, s%d" % (vL, sT0))
    def p3_weights(self):
        a = self
        a("v_max_f32_dpp v53, v52, v52 row_ror:4 row_mask:0xf bank_mask:0xf")
        for k in (2, 1): a("v_max_f32_dpp v53, v53, v53 row_ror:%d row_mask:0xf bank_mask:0xf" % k)
        for r in (52, 54, 55): a("v_sub_f32 v%d, v%d, v53" % (r, r))
        for r in (52, 54, 55): a("v_exp_f32 v%d, v%d" % (r, r))
    def p3_final_addr(self):
        a = self
        a.lanefn(2, [(0, 6, 4)], 60, const=a.LD_PP); a.lanefn(3, [(0, 4, 4), (5, 1, 64), (4, 1, 8192)], 60)
    def p3(self, l):
        a = self
        ol = ["buffer_load_dwordx4 v[12:15], v57, %s, s%d offen sc1" % (sr(R_WS, 4), sM1),
              "buffer_load_dwordx2 v[16:17], v58, %s, s%d offen offset:1024 sc1" % (sr(R_WS, 4), sM1),
              "buffer_load_dword v18, v56, %s, s%d offen offset:1568 sc1" % (sr(R_WS, 4), sM1)]
        def operands():
            for t in range(2):
                for m in range(6): a("ds_read_b64_tr_b16 %s, v%d offset:%d" % (vr(28 + 12 * t + 2 * m, 2), 59 + t, 1024 * m))
            a.zero(20, 28); a("s_add_u32 s%d, s%d, %d" % (sT1, sXPW, 2 * l * XPS))
        if l == 0 and a.o["early3"]: sh = operands
        else:
            a.poll(a.p3_addr(l), [52, 54, 55], 53, shadow=lambda: (a.p3_addr2(), operands())); sh = a.p3_weights
        red = ["v_add_f32_dpp v53, v53, v53 row_ror:%d row_mask:0xf bank_mask:0xf" % k for k in (4, 2, 1)]
        mm = ["v_smfmac_f32_16x16x64_bf16 v[20:23], v[12:15], v[28:35], v%d" % vIDX, "v_smfmac_f32_16x16x64_bf16 v[24:27], v[12:15], v[40:47], v%d" % vIDX,
              "v_smfmac_f32_16x16x32_bf16 v[20:23], v[16:17], v[36:39], v%d" % vIDX, "v_smfmac_f32_16x16x32_bf16 v[24:27], v[16:17], v[48:51], v%d" % vIDX]
        w = a.lab("L_ow"); r = a.lab("L_or")
        for x in ol: a(x)
        sh(); a("s_waitcnt lgkmcnt(0)"); a("s_branch " + w)
        a(r + ":")
        for x in ol + a.budget(): a(x)
        a.zero(20, 28)
        a(w + ":"); a("s_waitcnt vmcnt(2)")
        a(mm[0]); a("s_nop 2"); a(mm[1]); a("s_waitcnt vmcnt(0)"); a("v_mul_f32 v53, v52, v18"); a(mm[2]); a(mm[3])
        a(red[0]); a("v_max3_u32 v19, v12, v13, v14"); a("v_max3_u32 v62, v15, v16, v17"); a(red[1])
        a("v_max3_u32 v19, v19, v62, v18"); a("s_cmp_eq_u32 s%d, 2" % sW); a(red[2]); a("v_cmp_eq_u32 vcc, -1, v19"); a("v_rcp_f32 v53, v53")
        a("s_cbranch_vccnz " + r)
        a.stamp("o_in%d" % l)
        for t in range(2): a("v_pk_add_f32 %s, %s, %s" % (vr(20 + 4 * t, 2), vr(20 + 4 * t, 2), vr(22 + 4 * t, 2)))
        a("v_pk_mul_f32 v[54:55], v[54:55], v[52:53] op_sel:[0,1] op_sel_hi:[1,1]")
        for t in range(2): a("v_mul_f32 v%d, v%d, v54" % (20 + 4 * t, 20 + 4 * t))
        for t in range(2): a("v_fmac_f32 v%d, v%d, v55" % (20 + 4 * t, 21 + 4 * t))
        a("v_permlane32_swap_b32 v20, v24"); a("v_add_f32 v20, v20, v24")
        a("ds_write_b32 v61, v20")
        bk = a.lab("L_finb")
        a("s_waitcnt lgkmcnt(0)"); a("s_barrier"); a("s_cbranch_scc0 " + bk)
        for n in range(4): a("ds_read2st64_b32 %s, v2 offset0:%d offset1:%d" % (vr(12 + 2 * n, 2), 2 * n, 2 * n + 1))
        a("s_waitcnt lgkmcnt(2)"); a("v_pk_add_f32 v[12:13], v[12:13], v[14:15]")
        a("s_waitcnt lgkmcnt(0)"); a("v_pk_add_f32 v[16:17], v[16:17], v[18:19]")
        a("v_pk_add_f32 v[12:13], v[12:13], v[16:17]"); a("v_add_f32 v14, v12, v13"); a("v_add_f32 v15, v12, v13")
        a("v_permlane16_swap_b32 v14, v15"); a("v_add_f32 v12, v14, v15")
        a("buffer_store_dword v12, v3, %s, s%d offen sc1" % (sr(R_WS, 4), sT1))
        a.stamp("xp_pub%d" % (2 * l))
        a(bk + ":")
    def p4b(self, l):
        a = self
        a("s_sub_u32 s%d, s%d, 4" % (sT3, sW))
        a("s_lshl_b32 s%d, s%d, 11" % (sT0, sT3)); a.lanefn(11, [(0, 6, 16)], 60, s=sT0)
        a("s_add_u32 s%d, s%d, %d" % (sF + 1, sLOC, L_CS1))
        cs = a.two(52, 11, sF + 1)
        for x in cs: a(x)
        a("s_lshl_b32 s%d, s%d, 12" % (sT2, sT3)); a("s_add_u32 s%d, s%d, %d" % (sT2, sT2, a.LD_W2))
        if l == 0:
            a.srd(R_WQ, P_W2, 1536 * 1280)
            a("s_mul_i32 s%d, s%d, 3" % (sT0, sX)); a("s_add_u32 s%d, s%d, s%d" % (sT0, sT0, sT3)); a("s_mul_i32 s%d, s%d, %d" % (sT0, sT0, 64 * 1280))
            a("s_lshl_b32 s%d, s%d, 6" % (sF, sAI)); a("s_add_u32 s%d, s%d, s%d" % (sT0, sT0, sF))
            a.lanefn(5, [(2, 4, 1280), (0, 2, 16)], 60, s=sT0)
            for m in range(4):
                a("s_add_u32 m0, s%d, %d" % (sT2, 1024 * m)); a("s_mov_b32 s%d, %d" % (sT0, m * 16 * 1280))
                a("buffer_load_dwordx4 v5, %s, s%d offen nt lds" % (sr(R_WQ, 4), sT0))
        a.lanefn(35, [(4, 1, 32 * 64), (2, 2, 4 * 64), (5, 1, 64), (0, 2, 8)], 60, s=sT2)
        k2 = -2.0 * math.log2(math.e) * math.sqrt(2.0 / math.pi)
        a("v_mov_b32 v9, %s" % f32(k2 * 0.044715)); a("v_mov_b32 v10, %s" % f32(k2))
        a("s_lshl_b32 s%d, s%d, 7" % (sT0, sT3)); a("s_add_u32 s%d, s%d, %d" % (sT0, sT0, a.LD_HX + 384 * l))
        a.lanefn(32, [(0, 6, 8)], 60, s=sT0); a.lanefn(33, [(0, 6, 8)], 60, const=a.LD_QS + 4096)
        a("v_cmp_gt_u32 vcc, 16, v%d" % vL); a("v_cndmask_b32 v32, v33, v32, vcc")
        a.lanefn(33, [(0, 4, 8), (5, 1, 4)], 60, const=a.LD_HX + 384 * l)
        a.lanefn(34, [(0, 4, 4), (5, 1, 64), (4, 1, 8192)], 60)
        a("s_add_u32 s%d, s%d, %d" % (sT3, sXPW, (2 * l + 1) * XPS))
        a.q_base(l, sT1, sT0, "h"); a.lanefn(7, [(0, 3, 8)], 60)
        a.consts(); a.stamp("p4_set%d" % l)
        a("s_waitcnt vmcnt(0)"); a.stamp("w2_in%d" % l)
        def sh():
            for t in range(2):
                for u in range(4): a("ds_read_b64_tr_b16 %s, v35 offset:%d" % (vr(36 + 8 * t + 2 * u, 2), (16 * (u % 2) + 2 * (u // 2)) * 64 + 32 * t))
            cw = a.lab("L_sw"); cr = a.lab("L_sr")
            a(cw + ":"); a.check(range(52, 60), 20); a("s_cbranch_vccnz " + cr)
            a.ool += [cr + ":"] + cs + a.budget() + ["s_waitcnt vmcnt(0)", "s_branch " + cw]
            for x in a.sum8(52, 28): a(x)
            a.zero(52, 60); a("s_waitcnt lgkmcnt(0)")
        a.fetch(11, sT1, 7, sT0, 24, 2, 28, 26, sh, a.o["dh"], a.o["ahead"], "st_in%d" % l)
        a("v_fma_f32 v20, v20, v3, v%d" % vB)
        a.stamp("h_in%d" % l)
        a("v_mul_f32 v21, v20, v20"); a("v_mul_f32 v22, v20, v9"); a("v_mul_f32 v23, v20, v10"); a("v_fma_f32 v21, v21, v22, v23")
        a("v_exp_f32 v21, v21"); a("v_add_f32 v21, 1.0, v21"); a("v_rcp_f32 v21, v21")
        a("v_mul_f32 v20, v20, v21")
        a("v_mov_b32_dpp v21, v20 row_shl:1 row_mask:0xf bank_mask:0xf bound_ctrl:0")
        a("v_cvt_pk_bf16_f32 v28, v20, v21")
        for r_ in (1, 2, 3): a("v_mov_b32_dpp v%d, v28 row_shl:%d row_mask:0xf bank_mask:0xf bound_ctrl:0" % (28 + r_, 4 * r_))
        for t in range(2): a("v_smfmac_f32_16x16x64_bf16 %s, v[28:31], %s, v%d" % (vr(52 + 4 * t, 4), vr(36 + 8 * t, 8), vIDX))
        sk = a.lab("L_skip"); a("s_cmp_eq_u32 s%d, 4" % sW)
        a("v_add_f32 v22, v52, v54"); a("v_add_f32 v23, v56, v58")
        a("ds_write_b64 v32, v[22:23]")
        a("s_cbranch_scc0 " + sk)
        lw = a.lab("L_xw")
        a(lw + ":")
        a("ds_read2_b32 v[20:21], v33 offset0:0 offset1:32"); a("ds_read_b32 v22, v33 offset:256")
        for x in a.budget(): a(x)
        a("s_waitcnt lgkmcnt(0)")
        a("v_max3_u32 v23, v20, v21, v22"); a("v_add_f32 v20, v20, v21"); a("v_cmp_eq_u32 vcc, -1, v23"); a("v_add_f32 v20, v20, v22")
        a("s_cbranch_vccnz " + lw)
        a("buffer_store_dword v20, v34, %s, s%d offen sc1" % (sr(R_WS, 4), sT3))
        a.stamp("xp_pub%d" % (2 * l + 1))
        if l == 0:
            e = a.lab("L_pe"); a("s_waitcnt vmcnt(1)"); a("s_branch " + e)
            a(sk + ":"); a("s_waitcnt vmcnt(0)"); a(e + ":")
        else: a(sk + ":")
    def slab(self, l, kind, ph, lazy=False):
        a = self; w7 = a.lab("L_w7"); end = a.lab("L_se")
        a("s_cmp_eq_u32 s%d, 7" % sW); a("s_cbranch_scc1 " + w7)
        sk = a.skip_unless("lt", "s%d" % sW, 6)
        a.p1_prefetch(l, kind, 9)
        if kind == "h" and l == 0: a.p1_mat(l, "c", 9)
        a(sk + ":")
        a("s_cmp_lt_u32 s%d, 6" % sW)
        a("s_barrier")
        if a.o["stamps"] and "bx%d" % ph in a.o["stamps"]: a.stamp("bx%d" % ph); a("s_waitcnt lgkmcnt(0)")
        a("s_cbranch_scc0 " + end)
        a.p1_mat(l, kind, 9)
        a.stamp("q1_pub" if kind == "q" else "h_pub%d" % l)
        a(end + ":")
        def wave7():
            a(w7 + ":")
            a.slice_addr(5, 16, 4096)
            if kind == "q": a.p1_slice_pre(l, kind)
            if lazy:
                sk2 = a.skip_unless("lg", "s%d" % sHL, 3)
                a("s_add_u32 s%d, s%d, %d" % (sT0, sLOC, L_STH)); a("v_mov_b32 v9, 0")
                a.poll(["buffer_load_dword v12, v9, %s, s%d offen sc1" % (sr(R_WS, 4), sT0)], [12], 13)
                a.gather(ph - 1); a.unpack_x()
                a(sk2 + ":")
            a.gather(ph, pre=lambda sh: a.notice_poll(ph, sh=sh), setup=a.add_b2 if kind == "q" else lambda: a.p1_slice_pre(l, kind))
            a.stamp("xp_in%d" % ph)
            if a.o["stb"]: a("ds_write_b32 v35, v28")
            else: a.p1_slice_write(); a("s_barrier")
            a.p1_slice_stats(a.o["stb"])
            a("s_branch " + end)
        a.aside(wave7)
    def q_reads(self):
        for k in range(3): self("ds_read_b128 %s, v5 offset:%d" % (vr(12 + 4 * k, 4), 128 * k))
    def attention1(self):
        a = self; qa = a.o["qahead"]
        def prep():
            a.zero(24, 40 if qa else 48); a.lanefn(5, [(4, 2, 32), (1, 1, 16)], 60, const=a.LD_QS)
        oth = a.lab("L_qo"); bar = a.lab("L_qb")
        a("s_sub_u32 s%d, s%d, 1" % (sT0, sW)); a("s_cmp_lt_u32 s%d, 3" % sT0); a("s_cbranch_scc0 " + oth)
        a.lanefn(9, [(0, 3, 8)], 60)
        a.fetch(7, sT2, 9, sT3, 10, 48, vCS, 50, lambda: (prep(), a.consts(51)), 1, qa, "st_q", 51, 40 if qa else 12)
        a.q_out(48, 8)
        a(bar + ":")
        a("s_waitcnt lgkmcnt(0)")
        a.aside(lambda: (a(oth + ":"), prep(), a("s_branch " + bar)))
        a("s_barrier")
        if a.o["stamps"] and ("q1_in" in a.o["stamps"] or "c_q1_in" in a.o["stamps"]): a.stamp("q1_in"); a("s_waitcnt lgkmcnt(0)")
        a.q_reads(); a("s_cmp_lt_u32 s%d, 4" % sW); a("s_waitcnt lgkmcnt(0)")
        a.qk(qa)
        a.stamp("qk_end"); ls = a.softmax(); n0 = a.o["lpre"]
        for i, x in enumerate(ls[:n0]):
            a(x)
            if qa and i < 2: a.zero(40 + 4 * i, 44 + 4 * i)
        g = a.g_ops(); mg = a.o["mgap"]
        fill = {mg: ["ds_read_b32 v36, v62"], 5: ["s_waitcnt lgkmcnt(0)", g[0]], 7: [g[1]], 8: ["v_cmp_eq_u32 vcc, -1, v36"], 9: [g[2]], 10: [g[3]], 11: [g[4]]}
        for i, x in enumerate(ls[n0:]): fill.setdefault(2 * i, []).append(x)
        cnt = not (a.o["stamps"] and any(x.endswith("mx") or x.endswith("qk_end") or x.endswith("qk_iss") for x in a.o["stamps"]))
        r = a.lab("L_mr"); ok = a.lab("L_mk")
        def run(fill, mg):
            for n in range(12):
                if n in (0, 2, 4) and (cnt or n == 0): a("s_waitcnt lgkmcnt(%d)" % ((5 - n // 2 + (mg < n)) if cnt else 0))
                if n == 0: a.stamp("sm_end") if not cnt else None
                a.pv(6 * (n % 2) + n // 2)
                for x in fill.get(n, []): a(x)
        if a.o["split"]:
            eo = a.lab("L_eo"); a("s_cbranch_scc1 " + eo)
            f2 = {5: ["s_waitcnt lgkmcnt(0)"]}
            for i, x in enumerate(ls[n0:]): f2.setdefault(2 * i, []).append(x)
            a.aside(lambda: (a(eo + ":"), run(f2, 99), a.stamp("pv_iss"), a("s_branch " + r) if a.o["stamps"] else None))
        run(fill, mg)
        a.stamp("pv_iss")
        a("s_cbranch_vccnz " + r); a(ok + ":")
        def late():
            a(r + ":"); a("ds_read_b32 v36, v62")
            for x in a.budget(): a(x)
            a("s_waitcnt lgkmcnt(0)"); a("v_cmp_eq_u32 vcc, -1, v36"); a("s_cbranch_vccnz " + r)
            for x in g: a(x)
            a("s_branch " + ok)
        a.aside(late)
        a("s_cmp_lt_u32 s%d, 2" % sW)
        a.pv_end()
        a.stamp("pv1")

    def build(self):
        a = self; o = a.o
        W = lambda w: a.skip_unless("eq", "s%d" % sW, w)
        if o["diag_hold"]: a("s_mov_b64 s[100:101], 0"); a("s_mov_b64 s[92:93], 0"); a("s_mov_b64 s[94:95], 0")
        a.stamp("start")
        rest = lambda: (a("s_load_dwordx8 s[20:27], s[0:1], 64"), a("s_load_dwordx2 s[28:29], s[0:1], 96"))
        a("s_load_dwordx16 s[4:19], s[0:1], 0")
        a("s_cmp_ge_u32 s2, 256"); a("s_cbranch_scc1 L_exit")
        def warm():
            a("s_getpc_b64 %s" % sr(sM1, 2)); a("L_pc:")
            a("v_min_u32 v62, L_exit-L_pc, v62"); a("global_load_dword v63, v62, %s" % sr(sM1, 2))
        a("v_lshrrev_b32 v5, 6, v0"); a("v_lshlrev_b32 v62, 6, v0"); a("v_readfirstlane_b32 s%d, v5" % sW); a("v_and_b32 v0, 63, v0")
        if o["l2warm"]: warm()
        if o["prio"]: sk = W(LOADER); a("s_setprio %d" % o["prio"]); a(sk + ":")
        a("s_and_b32 s%d, s2, 7" % sX); a("s_lshr_b32 s%d, s2, 3" % sC); a("s_and_b32 s%d, s%d, 3" % (sHL, sC)); a("s_lshr_b32 s%d, s%d, 2" % (sJ, sC))
        a("s_lshl_b32 s%d, s%d, 2" % (sH, sX)); a("s_add_u32 s%d, s%d, s%d" % (sH, sH, sHL))
        order, upto, wait = a.plan(); done = [0]; qf = order[0] == "q0"
        def wq_pre():
            a.lanefn(vX0, [(3, 3, 12288), (0, 3, 16)], 60)
            a("s_mul_i32 s%d, s%d, 384" % (sF + 1, sH)); a("s_mul_i32 s%d, s%d, %d" % (sT3, sJ, 80 * 12288)); a("s_add_u32 s%d, s%d, s%d" % (sF + 1, sF + 1, sT3))
            a("s_sub_u32 s%d, %d, s%d" % (R_WQ + 2, 640 * 12288 + 2048, sF + 1)); a("s_mov_b32 s%d, 0x20000" % (R_WQ + 3))
        def wq_post():
            a("s_add_u32 s%d, s%d, s%d" % (R_WQ, P_WQ, sF + 1)); a("s_addc_u32 s%d, s%d, 0" % (R_WQ + 1, P_WQ + 1))
            a("s_sub_u32 s%d, s%d, 2048" % (R_WQ, R_WQ)); a("s_subb_u32 s%d, s%d, 0" % (R_WQ + 1, R_WQ + 1))
        if qf: wq_pre()
        a.lanefn(8, [(5, 1, 4), (4, 1, 1)], 60); a("v_and_b32 v9, 7, v0"); a("v_xor_b32 v8, v8, v9")
        a.lanefn(10, [(3, 3, 384)], 60); a("v_lshl_add_u32 v5, v8, 4, v10")
        a("s_mul_i32 s%d, s%d, 12582912" % (sF, sH)); a("s_mul_i32 s%d, s%d, %d" % (sT1, sJ, LAY[o["lay"]][3]))
        a("s_add_u32 s%d, s%d, s%d" % (sF, sF, sT1)); a("s_add_u32 s%d, s%d, %d" % (sF, sF, 11010048 - 2048))
        a("s_sub_u32 s%d, %d, s%d" % (R_K + 2, 1572864 + 2048, sT1)); a("s_mov_b32 s%d, 0x20000" % (R_K + 3))
        def others():
            a("s_mul_i32 s%d, s%d, 3" % (sAI, sJ)); a("s_add_u32 s%d, s%d, s%d" % (sAI, sAI, sHL)); a("s_cmp_eq_u32 s%d, 3" % sHL); a("s_cselect_b32 s%d, 31, s%d" % (sAI, sAI))
            a.lanefn(8, [(4, 2, 2)], 60); a("v_xor_b32 v8, v8, v9"); a("v_lshl_add_u32 v7, v8, 4, v10")
            if not qf: wq_pre(); wq_post()
            a("s_and_b32 s%d, s%d, 1" % (sRING, sW)); a("s_mul_i32 s%d, s%d, 3072" % (sRING, sRING)); a("s_lshr_b32 s%d, s%d, 1" % (sPAIR, sW)); a("s_add_u32 s%d, s%d, %d" % (sRING, sRING, a.LD_RING))
            a("s_mul_i32 s%d, s%d, %d" % (sLOC, sX, LOC)); a("s_add_u32 s%d, s%d, %d" % (sLOC, sLOC, LOC0))
            a("s_lshl_b32 s%d, s%d, 9" % (sARR, sX)); a("s_add_u32 s%d, s%d, %d" % (sARR, sARR, ARR))
            a("s_mov_b32 s%d, %d" % (sBUD, o["budget"])); a("s_mov_b32 s%d, 1" % sFLAG)
            a("s_getreg_b32 s%d, hwreg(20, 0, 3)" % sXCC)
            for r in (vX1, vB, 11, 24, 34): a("v_mov_b32 v%d, 0" % r)
            a("v_mov_b64 v[12:13], -1"); a("v_mov_b64 v[14:15], -1"); a("v_lshlrev_b32 v10, 4, v0")
        assert qf or order[:2] == [0, 1]
        keep = a.L; a.L = []; a.block(order[0], None); blk = a.L; a.L = keep; k = [i for i, x in enumerate(blk) if x.endswith(":")][0]
        for x in blk[:k]: a(x)
        sk = a.lab("L_skip"); a("s_cmp_eq_u32 s%d, %d" % (sW, LOADER)); a("s_cselect_b64 vcc, -1, 0")
        a.stamp("pre_wait"); a("s_waitcnt lgkmcnt(0)"); a.stamp("args")
        k_post = lambda: (a("s_add_u32 s%d, s%d, s%d" % (R_K, P_K, sF)), a("s_addc_u32 s%d, s%d, 0" % (R_K + 1, P_K + 1)))
        wq_post() if qf else k_post()
        rest()
        a("s_cbranch_vccz " + sk)
        for x in blk[k:]: a(x)
        a.stamp("d_iss")
        if not qf: a.block(1, None)
        a(sk + ":"); done[0] = 1 if qf else 2
        if qf: k_post()
        a.srd(R_V, P_V, "s%d" % (R_K + 2), off=sF)
        others(); a("s_waitcnt lgkmcnt(0)")
        a.srd(R_WS, P_WS, WS_BYTES)
        a.stamp("pre_dma")
        def wl_setup():
            lb = a.lab("L_wb"); le = a.lab("L_we")
            a("s_cmp_lg_u32 s%d, 3" % sHL); a("s_cbranch_scc0 " + lb)
            a("s_mul_i32 s%d, s%d, %d" % (sT0, sX, 768 * 1280)); a("s_lshl_b32 s%d, s%d, 6" % (sT1, sAI)); a("s_add_u32 s%d, s%d, s%d" % (sT0, sT0, sT1))
            a.lanefn(38, [(4, 1, 2)], 39); a("v_xor_b32 v38, v38, v0"); a("v_and_b32 v38, 3, v38")
            a.lanefn(vX1, [(5, 1, 8 * 1280), (4, 1, 2 * 1280), (3, 1, 4 * 1280), (2, 1, 16 * 1280)], 39, s=sT0); a("v_lshl_add_u32 v%d, v38, 4, v%d" % (vX1, vX1))
            a("s_mov_b32 s%d, %d" % (sWA, 32 * 1280)); a("s_mov_b32 s%d, %d" % (sWB, 1280 - 1024))
            a("s_branch " + le)
            a(lb + ":")
            a("s_mul_i32 s%d, s%d, 384" % (sT0, sX)); a("s_mul_i32 s%d, s%d, %d" % (sT1, sJ, 80 * 3072)); a("s_add_u32 s%d, s%d, s%d" % (sT0, sT0, sT1))
            a.lanefn(vX1, [(0, 6, 16)], 39, s=sT0)
            a("v_mov_b32 v38, %d" % (3072 - 384)); a("v_cmp_lt_u32 vcc, 23, v0"); a("v_cndmask_b32 v38, 0, v38, vcc"); a("v_add_u32 v%d, v38, v%d" % (vX1, vX1))
            a("v_mov_b32 v38, 0x7f000000"); a("v_cmp_lt_u32 vcc, 47, v0"); a("v_cndmask_b32 v%d, v%d, v38, vcc" % (vX1, vX1))
            a("s_mov_b32 s%d, %d" % (sWA, 4 * 3072)); a("s_mov_b32 s%d, %d" % (sWB, 2 * 3072 - 1024))
            a(le + ":")
        def issue(k, burst=False):
            if done[0] >= k: return
            sk = W(LOADER)
            for i in range(done[0], k):
                a.block(order[i], None if burst or i >= (order.index(o["burst_st"]) if o["burst_st"] < NST else 999) else o["W"])
            a(sk + ":"); done[0] = k
        a.stamp("post_dma")
        a("s_cmp_lt_u32 s%d, 20" % sAI); a("s_cselect_b32 s%d, %d, 0" % (sT0, 6144 * 1280))
        a("s_add_u32 s%d, s%d, 1" % (sT1, sJ)); a("s_mul_i32 s%d, s%d, %d" % (sT1, sT1, 80 * 3072))
        a("s_cmp_lg_u32 s%d, 3" % sHL); a("s_cselect_b64 %s, %s, %s" % (sr(R_WL, 2), sr(P_WO, 2), sr(P_W1, 2)))
        a("s_cselect_b32 s%d, s%d, s%d" % (R_WL + 2, sT0, sT1)); a("s_mov_b32 s%d, 0x20000" % (R_WL + 3))
        a("s_add_u32 s%d, s%d, %d" % (sT0, P_WS, XP)); a("s_sub_u32 s%d, 0, s%d" % (sT0, sT0)); a("s_and_b32 s%d, s%d, 0x3fff" % (sT0, sT0)); a("s_add_u32 s%d, s%d, %d" % (sT0, sT0, XP))
        a("s_lshr_b32 s%d, s%d, 1" % (sT1, sX)); a("s_lshl_b32 s%d, s%d, 14" % (sT1, sT1)); a("s_add_u32 s%d, s%d, s%d" % (sXPW, sT0, sT1))
        a("s_and_b32 s%d, s%d, 1" % (sT1, sX)); a("s_lshl_b32 s%d, s%d, 12" % (sT1, sT1)); a("s_add_u32 s%d, s%d, s%d" % (sXPW, sXPW, sT1))
        a("s_lshl_b32 s%d, s%d, 7" % (sT1, sAI)); a("s_add_u32 s%d, s%d, s%d" % (sXPW, sXPW, sT1))
        a("s_mov_b32 s%d, s%d" % (sXPB, sT0))
        a("s_and_b32 s%d, s%d, 3" % (sT2, sAI)); a("s_lshl_b32 s%d, s%d, 2" % (sT1, sX)); a("s_add_u32 s%d, s%d, s%d" % (sT2, sT2, sT1)); a("s_lshl_b32 s%d, s%d, 7" % (sT2, sT2))
        a("s_add_u32 s%d, s%d, s%d" % (sT2, sT2, sT0)); a("s_add_u32 s%d, s%d, %d" % (sT2, sT2, PRB))
        a("s_add_u32 s10, s%d, s%d" % (P_WS, sT2)); a("s_addc_u32 s11, s%d, 0" % (P_WS + 1))
        a("s_lshr_b32 s%d, s%d, 2" % (sT1, sXCC)); a("s_xor_b32 s%d, s%d, %d" % (sT1, sT1, o["pol"])); a("s_mul_i32 s%d, s%d, %d" % (sT1, sT1, 8192)); a("s_add_u32 s%d, s%d, s%d" % (sXPR, sT0, sT1))
        sk = W(9 if o["strip"] & 2 else CTRL)
        sk2 = a.skip_unless("eq", "s%d" % sC, 31)
        a.exec_(0xffffff)
        a("buffer_store_dwordx4 v[12:15], v10, %s, s%d offen sc1" % (sr(R_WS, 4), sARR))
        a.exec_(-1)
        a(sk2 + ":")
        sk2 = a.skip_unless("lt", "s%d" % sAI, 20)
        if not o["noclr"] & 1:
            a.lanefn(16, [(0, 3, 16), (3, 1, 8192), (4, 2, XPS)], 17)
            a("buffer_store_dwordx4 v[12:15], v16, %s, s%d offen sc1" % (sr(R_WS, 4), sXPW))
        a(sk2 + ":")
        if True:
            sk2 = a.skip_unless("eq", "s%d" % sAI, 20)
            a("s_lshl_b32 s%d, s%d, 9" % (sT1, sX)); a("s_add_u32 s%d, s%d, s%d" % (sT1, sT1, sXPB)); a("s_add_u32 s%d, s%d, %d" % (sT1, sT1, NTC))
            a.lanefn(16, [(0, 3, 16), (3, 1, 8192), (4, 2, 1 << 28)], 60)
            a("buffer_store_dwordx4 v[12:15], v16, %s, s%d offen sc1" % (sr(R_WS, 4), sT1))
            a(sk2 + ":")
        if o["race"]:
            a("s_sub_u32 s%d, s%d, 20" % (sT1, sAI)); a("s_cmp_lt_u32 s%d, 4" % sT1); a("s_cselect_b32 s%d, s%d, 0x7f000000" % (sT2, sT2))
            a.lanefn(16, [(0, 3, 16), (3, 1, 8192), (4, 2, 1 << 28)], 60)
            a("buffer_store_dwordx4 v[12:15], v16, %s, s%d offen sc1" % (sr(R_WS, 4), sT2))
        def clear_local(ad, fl):
            a("s_mul_i32 s%d, s%d, %d" % (sT0, sC, CLR)); a("s_add_u32 s%d, s%d, s%d" % (sT0, sT0, sLOC))
            a.exec_((1 << ((CLR - 2048) // 16)) - 1)
            a("buffer_store_dwordx4 v[12:15], v%d, %s, s%d offen offset:2048 %s" % (ad, sr(R_WS, 4), sT0, fl))
            a.exec_(-1)
            for k in (0, 1024): a("buffer_store_dwordx4 v[12:15], v%d, %s, s%d offen offset:%d %s" % (ad, sr(R_WS, 4), sT0, k, fl))
        if not o["noclr"] & 2: clear_local(10, "")
        a.exec_(-1)
        a.lanefn(16, [(0, 6, 16)], 60, const=a.LD_ML); a("ds_write_b128 v16, v[12:15]")
        a.lanefn(vX1, [(0, 3, 32)], 60)
        a(sk + ":")
        sk = W(7); a.slice_addr(16, 8, 4)
        a("global_load_dword v28, v16, %s" % sr(P_X, 2)); a("global_load_dword v%d, v16, %s" % (vB, sr(P_B2, 2)))
        a(sk + ":")
        a("s_sub_u32 s%d, s%d, 4" % (sT1, sW))
        sk = a.skip_unless("lt", "s%d" % sT1, 3)
        a("s_mul_i32 s%d, s%d, 3" % (sT0, sX)); a("s_add_u32 s%d, s%d, s%d" % (sT0, sT0, sT1)); a("s_lshl_b32 s%d, s%d, 7" % (sT0, sT0))
        a.lanefn(16, [(0, 4, 8), (4, 2, 2)], 60, s=sT0)
        a("global_load_short_d16_hi v%d, v16, %s" % (vB, sr(P_B1, 2)))
        a(sk + ":")
        a.lanefn(8, [(3, 1, 4), (1, 1, 1)], 60); a("v_lshrrev_b32 v9, 4, v0"); a("v_xor_b32 v9, v8, v9")
        a.lanefn(8, [(2, 1, 6144), (3, 1, 512), (0, 2, 128)], 60, s=sRING); a("v_lshl_add_u32 v8, v9, 4, v8"); a("v_xor_b32 v9, 64, v8")
        a.lanefn(vIDX, [(1, 1, 0xAAAA)], 60, const=0x4444)

        go_ld = "global_load_dword v%d, v%d, %s sc1" % (vX0, vX1, sr(P_DBG, 2))
        arr_ld = "buffer_load_dword v%d, v24, %s, s%d offen sc1" % (vX0, sr(R_WS, 4), sARR)
        vd_ld = go_ld.replace(" sc1", " offset:4 sc1"); sSAME = sF
        e = {k: o[k] for k in ("go_s", "go_i", "arr_s", "arr_i", "arr_c", "q_c", "vd_i", "vd_c", "warm", "preread")}
        e["p1"] = max(o["race_at"] + 1, max(o["qpos"]) + 1 if o["qpos"] else 0)
        e["dec"] = e["arr_c"] + 1; e["qk"] = e["q_c"] + 1; e["ml"] = e["qk"] + 1
        assert e["go_s"] < e["go_i"] < e["arr_s"] < e["arr_i"] < e["arr_c"] < e["vd_i"] - 1 < e["vd_c"] < NST - 2 and e["go_s"] < e["p1"] < e["arr_s"] - 1
        assert e["dec"] < e["q_c"] and e["qk"] >= 16 and e["ml"] < 25 and e["ml"] <= e["preread"] <= NST - 2 - o["lag"]
        late = "r0" in order
        self.sched = dict(order=order, upto=upto, wait=wait, ev=e)
        STG = a.LD_PP
        def touch_code():
            sk = a.skip_unless("lt", "s%d" % sW, o["npad"])
            a("s_mov_b64 exec, 0")
            for k in range(1, o["npad"]): a("s_cmp_eq_u32 s%d, %d" % (sW, k)); a("s_cbranch_scc1 L_padin%d" % k)
            a("s_branch L_padin0"); a("L_padback:"); a("s_mov_b64 exec, -1")
            a(sk + ":")
        sk = W(LOADER); wl_setup(); a(sk + ":")
        issue(upto[0])
        last = NST - 1
        for s in range(NST):
            if s == NST - 3: a("s_branch L_tail"); a(".p2align 10"); a("L_tail:")
            t, p, h = a.stage(s); full = s >= 16 and t == 1 and h == 1 and not o["strip"]
            a("s_cmp_eq_u32 s%d, %d" % (sPAIR, o["pairs"][p])); mine = a.lab("L_skip")
            a("s_waitcnt vmcnt(%d)" % wait[s])
            a.stamp("bw%d" % s)
            a("s_barrier")
            a.stamp("v_in" if s == last else "ba%d" % s)
            if s == last and o["stamps"]: a("s_waitcnt lgkmcnt(0)")
            a("s_cbranch_scc0 " + mine); a.reads(s)
            ld = o["pairs"][p] == LOADER // 2; assert not (ld and s >= NST - 2)
            def products():
                for T in range(12):
                    if T % 4 == 0: a("s_waitcnt lgkmcnt(%d)" % (8 - T))
                    a.pv(T)
                a.pv_end()
            if full and not ld: products()
            a(mine + ":")
            issue(upto[s + 1] if s < last else len(order), burst=(s == e["qk"] or full and ld) and not o["strip"])
            if full and ld: sk = a.skip_unless("eq", "s%d" % sPAIR, o["pairs"][p]); products(); a(sk + ":")
            if s < last or o["strip"]: a("s_waitcnt lgkmcnt(0)")
            a.stamp("st%d" % s)
            if s == 15:
                a.lanefn(8, [(5, 1, 6144), (2, 3, 128), (3, 2, 32), (0, 2, 8)], 60, s=sRING)
                for tt in (1, 2, 3): a("v_xor_b32 v%d, %d, v8" % (8 + tt, 32 * tt))
            if s == e["warm"] and o["pads"]: touch_code()
            if o["strip"]:
                if s == last: a("s_waitcnt vmcnt(0)"); a.stamp("out"); a("s_branch L_done")
                if s > o["upto_ev"] or o["upto_ev"] == 99: continue
            if s == e["go_s"]:
                sk = W(CTRL); sk2 = a.skip_unless("eq", "s%d" % sC, 31)
                a("s_lshl_b32 s%d, s%d, 5" % (sT0, sX)); a("v_mov_b32 v16, s%d" % sT0)
                a("s_add_u32 s%d, s%d, 1" % (sT0, sXCC)); a("v_mov_b32 v12, s%d" % sT0)
                a("s_waitcnt vmcnt(%d)" % (0 if o["noclr"] else 5 if o["race"] else 4))
                a.stamp("clr_ack")
                a.exec_(1); a("global_store_dword v16, v12, %s sc1" % sr(P_DBG, 2)); a.exec_(-1)
                a(sk2 + ":"); a(sk + ":")
            if s == e["p1"] - 1 or s == e["preread"] + o["lag"]:
                sk = a.skip_unless("lt", "s%d" % sW, 5); a("s_waitcnt vmcnt(0)"); a(sk + ":")
            if s == e["p1"] - 1:
                sk = W(7); a.p1_slice_pre(0); a("s_waitcnt vmcnt(0)"); a.p1_slice_write(); a(sk + ":")
            def p1_layer0():
                sk = W(7); a.p1_slice_stats(); a(sk + ":")
                sk = a.skip_unless("lt", "s%d" % sW, 6)
                a.p1_prefetch(0, "q", 52); a.p1_mat(0, "q", 52)
                a(sk + ":")
            def arrive(off, fl):
                return ["s_lshl_b32 s%d, s%d, 2" % (sT0, sC), "s_add_u32 s%d, s%d, s%d" % (sT0, sT0, sARR), "s_mov_b64 exec, 1",
                        "buffer_store_dword v25, v0, %s, s%d offen offset:%d %s" % (sr(R_WS, 4), sT0, off, fl), "s_mov_b64 exec, -1"]
            if s == e["p1"]:
                p1_layer0(); a.stamp("q0_pub")
            if s == o["race_at"]:
                sk = W(CTRL)
                assert s < e["p1"]
                a("s_waitcnt vmcnt(0)")
                a("s_lshr_b32 s%d, s%d, 2" % (sF + 3, sXCC))
                if o["race"]:
                    a("s_sub_u32 s%d, s%d, 20" % (sT1, sAI)); sk2 = a.skip_unless("lt", "s%d" % sT1, 4)
                    a("s_mov_b32 s%d, 0" % (sF + 3))
                    a("s_load_dword s%d, s[10:11], 0" % (sF + 2)); a("s_load_dword s%d, s[10:11], 8192" % (sF + 3)); a("s_waitcnt lgkmcnt(1)")
                    a(sk2 + ":")
                a("v_subrev_u32 v16, 8, v0"); a("v_cmp_gt_u32 vcc, 40, v16"); a("v_mov_b32 v16, %s" % ONES); a("v_cndmask_b32 v18, 0, v16, vcc")
                a("v_min_u32 v16, 55, v0"); a("v_lshlrev_b32 v16, 2, v16"); a("v_add_u32 v16, %d, v16" % (a.LD_XB + 160))
                a("ds_write_b32 v16, v18"); a("s_mov_b32 s%d, s%d" % (sF + 1, sF + 3)); a("s_waitcnt lgkmcnt(0)")
                a(sk + ":")
            if s == e["go_i"]:
                sk = W(CTRL); a(go_ld); a(sk + ":")
            if s == e["arr_s"] - 1:
                sk = a.skip_unless("lg", "s%d" % sW, LOADER); a("s_waitcnt vmcnt(0)"); a.stamp("ack_ok"); a(sk + ":")
            if s == e["arr_s"]:
                sk = W(CTRL)
                w = a.lab("L_cw"); r = a.lab("L_cr")
                a(w + ":")
                a("v_readlane_b32 s%d, v%d, s%d" % (sT0, vX0, sX)); a("s_cmp_eq_u32 s%d, 0" % sT0); a("s_cbranch_scc1 " + r)
                a.ool += [r + ":"] + a.budget() + [go_ld, "s_waitcnt vmcnt(0)", "s_branch " + w]
                far = a.lab("L_far"); bk = a.lab("L_fb")
                a("s_lshr_b32 s%d, s%d, 2" % (sT1, sXCC)); a("s_xor_b32 s%d, s%d, s%d" % (sT1, sT1, sF + 1))
                a("s_and_b32 s%d, s%d, 1" % (sT1, sT1)); a("v_mov_b32 v25, s%d" % sT1)
                a("s_sub_u32 s%d, s%d, 1" % (sT0, sT0)); a("s_cmp_eq_u32 s%d, s%d" % (sT0, sXCC)); a("s_cselect_b32 s%d, 1, 0" % sSAME)
                a("s_cbranch_scc0 " + far)
                for x in arrive(0, ""): a(x)
                a(bk + ":")
                a.ool += [far + ":"] + arrive(128, "sc1") + ["s_branch " + bk]
                a.stamp("go_ok")
                a(sk + ":")
            if s == e["arr_i"]:
                sk = W(CTRL); a("v_lshlrev_b32 v24, 2, v0"); a(arr_ld); a(sk + ":")
            if s == e["vd_i"]:
                sk = W(CTRL); a(vd_ld); a(sk + ":")
            if s == e["vd_c"]:
                sk = W(CTRL)
                w = a.lab("L_cw"); r = a.lab("L_cr")
                a(w + ":"); a("s_waitcnt vmcnt(0)")
                a("v_cmp_eq_u32 vcc, 0, v%d" % vX0); a("s_cbranch_vccnz " + r)
                a.ool += [r + ":"] + a.budget() + [vd_ld, "s_branch " + w]
                if o["race"]:
                    for k in (4, 2, 1): a("v_add_u32_dpp v%d, v%d, v%d row_ror:%d row_mask:0xf bank_mask:0xf" % (vX0, vX0, vX0, k))
                    a("v_mov_b32 v60, %d" % (a.LD_FLAG + 4)); a("ds_write_b32 v60, v%d" % vX0); a("s_waitcnt lgkmcnt(0)")
                a.stamp("vd_ok")
                a(sk + ":")
            if s == e["vd_c"] + 1 and o["race"]:
                sk = a.skip_unless("ge", "s%d" % sW, 6)
                a("v_mov_b32 v60, %d" % (a.LD_FLAG + 4)); a("ds_read_b32 v60, v60"); a("s_lshr_b32 s%d, s%d, 2" % (sT1, sXCC)); a("s_waitcnt lgkmcnt(0)")
                a("v_readfirstlane_b32 s%d, v60" % sT0); a("s_cmp_gt_u32 s%d, %d" % (sT0, 16 + 8)); a("s_cselect_b32 s%d, 1, 0" % sT0)
                a("s_xor_b32 s%d, s%d, s%d" % (sT0, sT0, sT1)); a("s_lshl_b32 s%d, s%d, 13" % (sT0, sT0)); a("s_add_u32 s%d, s%d, s%d" % (sXPR, sXPB, sT0))
                a(sk + ":")
            if s == e["arr_c"]:
                sk = W(CTRL)
                w = a.lab("L_cw"); r = a.lab("L_cr"); dn = a.lab("L_cd")
                a(w + ":"); a("s_waitcnt vmcnt(0)")
                a("v_cmp_ne_u32 vcc, -1, v%d" % vX0); a("s_mov_b32 s%d, 0" % sT0); a("s_mov_b32 s%d, 2" % (sF + 4))
                a("s_cmp_eq_u32 s%d, 0" % sSAME); a("s_cbranch_scc1 " + dn)
                a("s_cmp_lg_u32 vcc_hi, 0"); a("s_cbranch_scc1 " + dn)
                a("s_cmp_lg_u32 vcc_lo, -1"); a("s_cbranch_scc1 " + r)
                a.ool += [r + ":"] + a.budget() + [arr_ld, "s_branch " + w]
                a("v_cmp_eq_u32 vcc, 1, v%d" % vX0); a("s_bcnt1_i32_b32 s%d, vcc_lo" % (sF + 4))
                a("s_mov_b32 s%d, %d" % (sT0, 0 if o["force_global"] else 1))
                a(dn + ":")
                a("v_mov_b32 v37, %d" % a.LD_FLAG); a("v_mov_b32 v38, s%d" % sT0); a("ds_write_b32 v37, v38"); a("s_waitcnt lgkmcnt(0)")
                a.stamp("arr_ok")
                a(sk + ":")
            if s == e["dec"]:
                a("v_mov_b32 v41, %d" % a.LD_FLAG); a("ds_read_b32 v42, v41"); a("s_waitcnt lgkmcnt(0)"); a("v_readfirstlane_b32 s%d, v42" % sFLAG)
                a("s_cmp_eq_u32 s%d, 0" % sFLAG); a("s_cbranch_scc1 L_spread"); a("L_spread_back:")
                keep = a.L; a.L = []
                a("L_spread:")
                a("s_add_u32 s%d, s%d, %d" % (sLOC, sLOC, LOC_B))
                sk = W(CTRL)
                a("v_mov_b64 v[12:13], -1"); a("v_mov_b64 v[14:15], -1"); a("v_lshlrev_b32 v16, 4, v0"); clear_local(16, "sc1")
                a(sk + ":")
                sk = W(7); a.p1_slice_pre(0); a("v_cvt_pk_bf16_f32 v28, v%d, v%d" % (vX0, vX1)); a(sk + ":")
                p1_layer0()
                a("s_waitcnt vmcnt(0)"); a("s_barrier")
                sk = W(CTRL)
                a("v_mov_b32 v25, 0")
                for x in arrive(256, "sc1"): a(x)
                a.lanefn(16, [(0, 5, 4)], 39)
                a.poll(["buffer_load_dword v17, v16, %s, s%d offen offset:256 sc1" % (sr(R_WS, 4), sARR)], [17], 18)
                a(sk + ":")
                a("s_barrier"); a("s_branch L_spread_back")
                self.cold = a.L; a.L = keep
                sk = W(CTRL); sk2 = a.skip_unless("eq", "s%d" % sC, 31)
                a("s_lshl_b32 s%d, s%d, 5" % (sT0, sX)); a("v_mov_b32 v16, s%d" % sT0); a("s_add_u32 s%d, s%d, 1" % (sT0, sF + 4)); a("v_mov_b32 v12, s%d" % sT0)
                a.exec_(1); a("global_store_dword v16, v12, %s offset:4 sc1" % sr(P_DBG, 2)); a.exec_(-1)
                a(sk2 + ":"); a(sk + ":")
                a("s_sub_u32 s%d, s%d, 1" % (sT1, sW)); sk = a.skip_unless("lt", "s%d" % sT1, 3)
                a.q_base(0, sT2, sT3); a("s_lshl_b32 s%d, s%d, 11" % (sT0, sT1)); a.lanefn(48, [(0, 6, 16)], 60, s=sT0); a.lanefn(49, [(0, 3, 8)], 60)
                a("s_add_u32 s%d, s%d, 6144" % (sT0, sT2))
                for x in a.two(12, 48, sT2, o["qf"]) + a.two(28, 48, sT0, o["qf"]): a(x)
                a("buffer_load_dwordx2 v[24:25], v49, %s, s%d offen %s" % (sr(R_WS, 4), sT3, o["qf"]))
                a(sk + ":")
            if s == e["q_c"]:
                a("s_sub_u32 s%d, s%d, 1" % (sT1, sW)); sk = a.skip_unless("lt", "s%d" % sT1, 3)
                a("s_lshl_b32 s%d, s%d, 7" % (sT0, sT1)); a.lanefn(51, a.POSU, 60, s=sT0, const=STG); a.consts(47)
                a("s_waitcnt vmcnt(0)"); a.stamp("q0_in")
                for x in a.sum8(28, 36): a(x)
                a("v_mul_f32 v%d, %s, v36" % (vCS, f32(a.QC)))
                a.centre(24, 48, vCS, 50, 47); a.q_out(48, 51); a("s_waitcnt lgkmcnt(0)")
                a(sk + ":")
                a.att_prep(0)
            if s == e["qk"]:
                a.lanefn(5, [(4, 2, 32), (1, 1, 16)], 60, const=STG); a.q_reads()
                a.zero(24, 48); a("s_waitcnt lgkmcnt(0)")
                a.qk(); ls = a.softmax()
                for x in ls: a(x)
                a("s_waitcnt lgkmcnt(0)")
                a.stamp("qk0")
            if s == e["ml"]:
                a("ds_read_b32 v36, v62"); a("s_waitcnt lgkmcnt(0)")
                for x in a.g_ops(): a(x)
                sk = a.skip_unless("lt", "s%d" % sW, 2)
                a.combine_addr(); a.m_publish(0)
                a(sk + ":")
                sk = W(2); a.p3_final_addr(); a(sk + ":")
            e3 = o["early3"]
            ec = e3 + o["lag"]
            if e3 and s in (e3, ec, ec + 1):
                assert e3 > e["ml"] and ec > e["vd_c"] + 1 and ec + 1 < last and LOADER == 6
                sk = a.skip_unless("lt", "s%d" % sAI, 20)
                if s == e3:
                    mld = a.p3_addr(0); a("s_cmp_lg_u32 s%d, %d" % (sW, LOADER)); a("s_cbranch_scc0 " + sk)
                    for x in mld: a(x)
                elif s == ec:
                    w = a.lab("L_cw"); r = a.lab("L_cr")
                    a.p3_addr2(); a("s_cmp_lg_u32 s%d, %d" % (sW, LOADER)); a("s_cbranch_scc0 " + sk)
                    a(w + ":"); a("s_waitcnt vmcnt(0)"); a.check([52, 54, 55], 53); a("s_cbranch_vccnz " + r)
                    a.ool += [r + ":"] + mld + a.budget() + ["s_branch " + w]
                    a.p3_weights()
                    a("s_cmp_eq_u32 s%d, 7" % sW); a("s_cbranch_scc0 " + sk)
                    a("v_add_u32 v62, %d, v57" % a.LD_PB); a("ds_write_b128 v62, v[52:55]"); a("s_waitcnt lgkmcnt(0)")
                else:
                    a("s_cmp_eq_u32 s%d, %d" % (sW, LOADER)); a("s_cbranch_scc0 " + sk)
                    a("v_add_u32 v62, %d, v57" % a.LD_PB); a("ds_read_b128 v[52:55], v62")
                a(sk + ":")
            if s == e["preread"]:
                sk = W(2); a("s_sub_u32 s%d, s%d, 20" % (sT0, sAI)); sk2 = a.skip_unless("lt", "s%d" % sT0, 4)
                a.preread(0, o["pref"], 52)
                a.preread(1, o["pref"], 53); a.preread(2, o["pref"], 54)
                a(sk2 + ":"); a(sk + ":")
        assert done[0] == len(order)
        if o["prio"]: a("s_setprio 0")
        a("s_cmp_lt_u32 s%d, 2" % sW)
        for l in (0, 1):
            cb = "L_comb_%d" % l
            a("s_cbranch_scc1 " + cb); a("s_waitcnt lgkmcnt(0)"); a("s_barrier"); a(cb + "b:")
            def comb():
                a(cb + ":")
                if l == 1: a.m_publish(1); a.stamp("ml_end")
                a.combine(l); a("s_branch " + cb + "b")
            a.aside(comb)
            if l == 0 and late:
                sk = W(LOADER); a("s_waitcnt vmcnt(0)"); a(sk + ":"); a("s_barrier")
            tb = "L_typeB_%d" % l
            nxt = "L_done" if l == 1 else "L_p1"
            a("s_cmp_lt_u32 s%d, 20" % sAI); a("s_cbranch_scc0 " + tb)
            a.p3(l)
            a("s_sub_u32 s%d, s%d, 4" % (sT0, sW))
            sk = a.skip_unless("lt", "s%d" % sT0, 3)
            a.p4b(l)
            a(sk + ":")
            a("s_branch " + nxt)
            a(tb + ":")
            lc = a.lab("L_typeC"); a("s_cmp_eq_u32 s%d, 3" % sHL); a("s_cbranch_scc0 " + lc)
            def typec():
                a(lc + ":")
                a("s_cmp_eq_u32 s%d, 6" % sW); a("s_cbranch_scc0 " + nxt)
                rl = [ph for ph in (2 * l, 2 * l + 1) if ph in o["relay"]]
                if rl:
                    if o["dual"]: sk = a.lab("L_skip"); a("s_bitcmp1_b32 s%d, 0" % sAI); a("s_cbranch_scc0 " + sk)
                    else: sk = a.skip_unless("eq", "s%d" % sAI, 21)
                    a.lanefn(11, [(0, 2, 128), (2, 4, 1 << 24)], 60)
                    for ph in rl:
                        a("s_add_u32 s%d, s%d, %d" % (sT1, sLOC, L_CAN + 4 * ph)); a.notice_poll(ph, True)
                        a.local_store("buffer_store_dword v%d, v11, %s, s%d offen" % (vL, sr(R_WS, 4), sT1))
                    a("s_waitcnt vmcnt(1)"); a("s_branch " + nxt); a(sk + ":")
                two = o["dual"] and (rl or o["dual"] == 2)
                if two and not rl: a("s_bitcmp1_b32 s%d, 0" % sAI); a("s_cbranch_scc1 " + nxt)
                if not two: a("s_cmp_eq_u32 s%d, 20" % sAI); a("s_cbranch_scc0 " + nxt)
                a("s_lshl_b32 s%d, s%d, 9" % (sT2, sX)); a("s_add_u32 s%d, s%d, s%d" % (sT2, sT2, sXPB)); a("s_add_u32 s%d, s%d, %d" % (sT2, sT2, NTC))
                a.lanefn(10, [(0, 1, 8192), (1, 5, 1 << 24)], 60)
                for ph in (2 * l, 2 * l + 1):
                    sk = a.skip_unless("eq", "s%d" % sAI, 20) if two and ph not in rl and o["dual"] < 2 else None
                    if ph % 2 == 0: a("s_add_u32 s%d, s%d, %d" % (sT1, sLOC, L_O[l] + 1568)); a.lanefn(9, [(3, 3, OB), (0, 3, 4)], 60)
                    else: a("s_add_u32 s%d, s%d, %d" % (sT1, sLOC, L_STH + 128 * l)); a.lanefn(9, [(0, 4, 4)], 60)
                    a.poll(["buffer_load_dword v%d, v9, %s, s%d offen sc1" % (12 + ph % 2, sr(R_WS, 4), sT1)], [12 + ph % 2], 14, depth=o["dw"])
                    a("buffer_store_dword v%d, v10, %s, s%d offen offset:%d sc1" % (vL, sr(R_WS, 4), sT2, 4 * ph))
                    if sk: a(sk + ":")
                a("s_waitcnt vmcnt(1)"); a("s_branch " + nxt)
            a.aside(typec)
            a.slab(l, "h", 2 * l)
            if l == 1:
                a("s_cmp_eq_u32 s%d, 7" % sW); a("s_cbranch_scc0 L_done")
                a("s_cmp_eq_u32 s%d, 0" % sX); a("s_cbranch_scc0 L_done")
                a.gather(3, pre=lambda sh: a.notice_poll(3, sh=sh), setup=lambda: (a.add_b2(), a.slice_addr(7, 8, 4)))
                a("global_store_dword v7, v28, %s" % sr(P_OUT, 2))
                a.stamp("out")
                a("s_branch L_done")
                break
            a("L_p1:")
            a.att_prep(1)
            a("s_sub_u32 s%d, s%d, 1" % (sT0, sW)); a("s_lshl_b32 s%d, s%d, 11" % (sT1, sT0)); a.lanefn(7, [(0, 6, 16)], 60, s=sT1)
            a("s_lshl_b32 s%d, s%d, 7" % (sT1, sT0)); a.lanefn(8, a.POSU, 60, s=sT1, const=a.LD_QS)
            a.slab(1, "q", 1, lazy=True)
            a.attention1()
        for x in a.ool: a(x)
        a("L_tail_end:")
        for x in a.cold: a(x)
        a("L_done:")
        if o["diag_hold"]:
            a("s_waitcnt lgkmcnt(0)"); a("s_cmp_eq_u64 s[100:101], 0"); a("s_cbranch_scc1 L_exit")
            if o["diag_a"]:
                a("s_cmp_eq_u64 s[92:93], 0"); a("s_cbranch_scc1 L_exit"); a("s_cmp_eq_u64 s[94:95], 0"); a("s_cbranch_scc1 L_exit")
                if o["diag_c"]:
                    a("s_cmp_eq_u32 s%d, 0" % sJ); a("s_cbranch_scc0 L_exit")
                    a("s_sub_u32 s94, s94, s92"); a("s_lshl_b32 s94, s94, 2")
                    a("s_sub_u32 s92, s92, s100"); a("s_sub_u32 s92, s92, 1400"); a("s_lshr_b32 s92, s92, 6"); a("s_min_u32 s92, s92, 28"); a("s_mul_i32 s92, s92, 5000")
                    a("s_sub_u32 s90, s90, s100"); a("s_lshr_b32 s90, s90, 5"); a("s_min_u32 s90, s90, 30"); a("s_mul_i32 s90, s90, 150000")
                    a("s_min_u32 s94, s94, 4900"); a("s_add_u32 s94, s94, s92"); a("s_add_u32 s94, s94, s90"); a("s_add_u32 s100, s100, s94")
                else:
                    a("s_sub_u32 s94, s94, s92"); a("s_lshl_b32 s94, s94, 3"); a("s_add_u32 s100, s100, s94")
            a("L_hold:"); a("s_memrealtime s[98:99]"); a("s_waitcnt lgkmcnt(0)"); a("s_sub_u32 s98, s98, s100")
            a("s_cmp_lt_i32 s98, %d" % o["diag_hold"]); a("s_cbranch_scc1 L_hold")
        if o["stamps"]:
            n = len(o["stamps"])
            a("s_mov_b64 exec, -1"); a("s_waitcnt vmcnt(0) lgkmcnt(0)")
            for i in range(n): a("v_writelane_b32 v12, s%d, %d" % (sST + 2 * i, i))
            a("s_getreg_b32 s%d, hwreg(4, 0, 16)" % sT0); a("s_lshl_b32 s%d, s%d, 16" % (sT1, sXCC)); a("s_or_b32 s%d, s%d, s%d" % (sT0, sT0, sT1)); a("v_writelane_b32 v12, s%d, 13" % sT0)
            a("v_writelane_b32 v12, s%d, 14" % sBUD); a("s_sub_u32 s%d, s%d, s%d" % (sT0, sXPR, sXPB)); a("s_or_b32 s%d, s%d, s%d" % (sT0, sT0, sFLAG)); a("s_lshl_b32 s%d, s%d, 16" % (sT1, sF + 4)); a("s_or_b32 s%d, s%d, s%d" % (sT0, sT0, sT1)); a("v_writelane_b32 v12, s%d, 15" % sT0)
            a("s_lshl_b32 s%d, s2, 3" % sT0); a("s_add_u32 s%d, s%d, s%d" % (sT0, sT0, sW)); a("s_lshl_b32 s%d, s%d, 6" % (sT0, sT0))
            a("s_add_u32 s%d, s%d, %d" % (sT0, sT0, STAMP_OFF))
            a.lanefn(13, [(0, 6, 4)], 60, s=sT0)
            a.exec_(0xffff)
            a("global_store_dword v13, v12, %s" % sr(P_WS, 2))
        a("L_exit:")
        a("s_endpgm")
        L = a.L
        if o["stamps"]:
            pre = ["s_mov_b64 %s, 0" % sr(sST + 2 * i, 2) for i in range(len(o["stamps"]))]
            L = pre + L
        L = [re.sub(r"L_padin(\d)", r"L_padback ; in\1", x) for x in L]
        L, nops = fix_hazards(L)
        al = r"L_(%s)" % o["align"]
        L, npad, tb = layout(L, al, ("L_tail", "L_tail_end", "L_padback", o["padstep"], o["npad"]) if o["pads"] else None)
        L = [re.sub(r"L_padback ; in(\d)", r"L_pad\1", x) for x in L]
        self.info = (nops, npad, tb)
        return L

ABOUT = """
Generated by gen/gen.py (own generator, hand-scheduled). One persistent launch, one workgroup per CU; workgroups >= 256 exit.
Workgroup = (group wg%8, head 4*group + c%4, key chunk c/4), c = wg/8. Each wave keeps 64 keys of K and V in v64..v255 for both
layers; wave 6 streams K, V, wq, wo/w1 in through an LDS ring (LDS-DMA), weights stay in LDS. All products are 2:4-sparse MFMAs
with the vector as the sparse operand (two rows) and K / V / weights as the dense one.
Per layer: x slice (80) * wq slab -> partial q | scores, softmax with the true (per-wave, then merged) maximum, PV | wo columns
(20 workgroups per group) | x slice * w1 slab (8 per group) | GELU, w2 columns. LayerNorm is applied after the product:
rstd * (x.W - mean * colsum(W)), in fp32, with mean / variance from exchanged partial sums.
Hand-offs go through d_ws: every word is set to 0xFFFFFFFF at the start of the launch (arrival words + d_debug order that before
any use) and readers repeat their loads until no word is empty. Inside a group plain stores are used only after the arrival words
have shown that all 32 workgroups run on one XCD; otherwise a second region is used with device-scope stores. Device-wide sums are
written twice; a reader takes the copy nearer to its XCD and starts after an early notice (both speed only). Every wait is bounded.
"""

def render(name=NAME + "_kernel", **kw):
    g = G(**kw); L = g.build()
    ref = open("cdna_kernels/%s.s.ref" % NAME).read().split("\n") if name.startswith(NAME) else []
    head = [x for x in ref if x.startswith(";") and "@launch" not in x and "Override" not in x and "grid=ceil" not in x]
    out = head + ["; " + x for x in ABOUT.strip().split("\n")] + [
                  "; @launch grid=(256,1,1) block=(512,1,1) lds=%d" % g.LDS,
                  '.amdgcn_target "amdgcn-amd-amdhsa--gfx950"', ".text", ".fill 64, 4, 0xbf800000", ".globl " + name, ".p2align 8", ".type %s,@function" % name, name + ":"]
    out += [x if x.endswith(":") or x.startswith(".") else "    " + x for x in L]
    out += ['.section .rodata,"a"', ".p2align 6", ".amdhsa_kernel " + name, "  .amdhsa_next_free_vgpr 256", "  .amdhsa_next_free_sgpr 102",
            "  .amdhsa_accum_offset 256", "  .amdhsa_group_segment_fixed_size 0", "  .amdhsa_kernarg_size 104", "  .amdhsa_user_sgpr_count 2",
            "  .amdhsa_user_sgpr_kernarg_segment_ptr 1", "  .amdhsa_system_sgpr_workgroup_id_x 1", "  .amdhsa_float_denorm_mode_32 3", ".end_amdhsa_kernel"]
    return "\n".join(out) + "\n", g

if __name__ == "__main__":
    kw = {}
    path = "cdna_kernels/%s.s" % NAME
    for x in sys.argv[1:]:
        k, v = x.split("=")
        if k == "out": path = v
        else: kw[k] = int(v) if v.lstrip('-').isdigit() else tuple(int(t) for t in v.split(',') if t) if ',' in v else v
    txt, g = render(**kw)
    open(path, "w").write(txt)
    print("wrote", path, "lds", g.LDS, "nops/pads/tailbytes", g.info, g.sched)
```
